```python
import torch

def _softmax(x, axis=-1):
    return torch.softmax(x, dim=axis)
def _gelu(x):
    return torch.nn.functional.gelu(x, approximate="tanh")
def _silu(x):
    return torch.nn.functional.silu(x)
def _sigmoid(x):
    return torch.sigmoid(x)
def _layernorm(x, axis=-1, eps=1e-5):
    m = x.mean(dim=axis, keepdim=True)
    v = x.var(dim=axis, keepdim=True, unbiased=False)
    return (x - m) / torch.sqrt(v + eps)
def _scatter_add(tgt, idx, src, axis=0):
    return tgt.clone().index_add_(axis, idx, src)
def _segment_sum(src, seg, n):
    out = torch.zeros((n,) + src.shape[1:], dtype=src.dtype)
    return out.index_add_(0, seg, src)
def _pad(x, pw):
    flat = tuple(v for pair in reversed(pw) for v in pair)
    return torch.nn.functional.pad(x, flat)

kernel_name = 'gated_mix__mha_block_cached__mixer_channel_mlp__decode'

def setup_inputs():

    _w = (lambda a: (lambda t: t.to(torch.bfloat16) if t.is_floating_point() else t)(torch.as_tensor(a)))
    def _A_setup():
        B, Sq, D = 2, 1, 576
        H, Sk, Dh = 32, 4096, 128
        return {
            "x": _w((lambda *s: torch.randn(*s, dtype=torch.bfloat16) * 0.05)(B, Sq, D)),
            "k_cache": _w((lambda *s: torch.randn(*s, dtype=torch.bfloat16) * 6.4)(B, H, Sk, Dh)),
            "v_cache": _w((lambda *s: torch.randn(*s, dtype=torch.bfloat16) * 1.6)(B, H, Sk, Dh)),
            "wq": _w((lambda *s: torch.randn(*s, dtype=torch.bfloat16) * 6.4)(D, H * Dh) * (D ** -0.5)),
            "wo": _w((lambda *s: torch.randn(*s, dtype=torch.bfloat16) * 1.6)(H * Dh, D) * ((H * Dh) ** -0.5)),
        }
    _A_in = _A_setup()

    def _B_setup():
        B, S, D, F = 2, 1, 576, 4608
        return {
            "x": _w((lambda *s: torch.randn(*s, dtype=torch.bfloat16) * 0.05)(B, S, D)),
            "w1": _w((lambda *s: torch.randn(*s, dtype=torch.bfloat16) * 3.2)(D, F) * (D ** -0.5)),
            "b1": _w((lambda *s: torch.randn(*s, dtype=torch.bfloat16) * 1.6)(F)),
            "w2": _w((lambda *s: torch.randn(*s, dtype=torch.bfloat16) * 0.1)(F, D) * (F ** -0.5)),
            "b2": _w((lambda *s: torch.randn(*s, dtype=torch.bfloat16) * 0.1)(D)),
        }
    _B_in = _B_setup()

    return {
        "A_x": _A_in["x"],
        "A_k_cache": _A_in["k_cache"],
        "A_v_cache": _A_in["v_cache"],
        "A_wq": _A_in["wq"],
        "A_wo": _A_in["wo"],
        "B_x": _B_in["x"],
        "B_w1": _B_in["w1"],
        "B_b1": _B_in["b1"],
        "B_w2": _B_in["w2"],
        "B_b2": _B_in["b2"],
        "gate_w": _w((lambda *s: torch.randn(*s, dtype=torch.bfloat16) * 0.05)(576) * 16.0),
    }

def reference(A_x, A_k_cache, A_v_cache, A_wq, A_wo, B_x, B_w1, B_b1, B_w2, B_b2, gate_w):
    def _A_ref(x, k_cache, v_cache, wq, wo):
        B, Sq, D = x.shape
        H, Dh = 32, 128
        q = (lambda x, *d: x.permute(*d))((x @ wq).reshape(B, Sq, H, Dh), 0, 2, 1, 3)
        scores = torch.einsum("bhqd,bhkd->bhqk", q, k_cache) * (Dh ** -0.5)
        p = _softmax(scores, axis=-1)
        o = torch.einsum("bhqk,bhkd->bhqd", p, v_cache)
        return (lambda x, *d: x.permute(*d))(o, 0, 2, 1, 3).reshape(B, Sq, H * Dh) @ wo

    def _B_ref(x, w1, b1, w2, b2):
        y = _layernorm(x, axis=-1)
        h = _gelu(torch.einsum("bsd,df->bsf", y, w1) + b1)
        return torch.einsum("bsf,fd->bsd", h, w2) + b2

    x = A_x
    g = _sigmoid((x * gate_w).sum(-1, keepdims=True))
    a = _A_ref(x, A_k_cache, A_v_cache, A_wq, A_wo)
    b = _B_ref(x, B_w1, B_b1, B_w2, B_b2)
    return g * a + (1 - g) * b
```

```python
import re

TRANS = ('v_exp_f32', 'v_log_f32', 'v_rcp_f32', 'v_rsq_f32', 'v_sqrt_f32', 'v_sin_f32', 'v_cos_f32')

def _regs(tok):
    tok = tok.strip()
    tok = tok.lstrip('-')
    m = re.match(r'^abs\((.*)\)$', tok) or re.match(r'^\|(.*)\|$', tok)
    if m:
        tok = m.group(1)
    m = re.match(r'^([vsa])\[(\d+):(\d+)\]$', tok)
    if m:
        return {(m.group(1), i) for i in range(int(m.group(2)), int(m.group(3)) + 1)}
    m = re.match(r'^([vsa])(\d+)$', tok)
    if m:
        return {(m.group(1), int(m.group(2)))}
    if tok == 'vcc':
        return {('s', 'vcc')}
    if tok == 'exec':
        return {('s', 'exec')}
    if tok == 'm0':
        return {('s', 'm0')}
    return set()

class Ins:
    def __init__(self, text):
        self.text = text
        t = text.split(';')[0].strip()
        parts = t.split(None, 1)
        self.op = parts[0]
        rest = parts[1] if len(parts) > 1 else ''
        ops, cur, depth = [], '', 0
        for ch in rest:
            if ch in '[(':
                depth += 1
            if ch in '])':
                depth -= 1
            if ch == ',' and depth == 0:
                ops.append(cur.strip()); cur = ''
            else:
                cur += ch
        if cur.strip():
            ops.append(cur.strip())
        mods = ''
        if ops:
            sp = ops[-1].split(None, 1)
            ops[-1] = sp[0]
            mods = sp[1] if len(sp) > 1 else ''
        self.ops, self.mods = ops, mods
        op = self.op
        self.w, self.r = set(), set()
        self.srcC = set()
        self.states = 1
        self.kind = 'other'
        R = [_regs(o) for o in ops]
        def allr(lst):
            s = set()
            for x in lst:
                s |= x
            return s
        if op == 's_nop':
            self.kind = 'nop'; self.states = int(ops[0], 0) + 1
        elif op.startswith('v_mfma'):
            self.kind = 'mfma'; self.w = R[0]; self.r = allr(R[1:]); self.srcC = R[3]
            self.srcAB = R[1] | R[2]
        elif op.startswith('v_'):
            self.kind = 'valu'
            if op.startswith('v_cmp'):
                self.w = R[0]; self.r = allr(R[1:])
            elif op.startswith('v_permlane') and 'swap' in op:
                self.w = R[0] | R[1]; self.r = R[0] | R[1]
            elif op.startswith(('v_add_co', 'v_sub_co', 'v_addc_co', 'v_subb_co')):
                self.w = R[0] | R[1]; self.r = allr(R[2:])
            else:
                self.w = R[0]; self.r = allr(R[1:])
                if op.startswith(('v_fmac', 'v_dot2c', 'v_writelane')) or '_dpp' in op:
                    self.r |= R[0]
                if op.startswith('v_cndmask') and len(ops) == 3:
                    self.r |= {('s', 'vcc')}
        elif op.startswith(('buffer_load', 'global_load')):
            self.kind = 'vload'
            if 'lds' in mods.split() or op.startswith('global_load_lds'):
                self.r = allr(R)
            else:
                self.w = R[0]; self.r = allr(R[1:])
        elif op.startswith(('buffer_store', 'global_store', 'buffer_atomic', 'global_atomic')):
            self.kind = 'vstore'; self.r = allr(R)
            if 'atomic' in op and 'sc0' in mods.split():
                self.w = R[0]
            self.wide = op.endswith(('x3', 'x4'))
            self.data = R[0] if op.startswith('buffer') else R[1]
        elif op.startswith('ds_read') or op.startswith(('ds_bpermute', 'ds_swizzle')):
            self.kind = 'ds'; self.w = R[0]; self.r = allr(R[1:])
        elif op.startswith('ds_'):
            self.kind = 'ds'; self.r = allr(R)
        elif op.startswith('s_'):
            self.kind = 'salu'
            if op.startswith(('s_cmp', 's_cbranch', 's_branch', 's_waitcnt', 's_barrier', 's_sleep', 's_endpgm', 's_setprio')):
                self.r = allr(R)
            else:
                self.w = R[0] if R else set(); self.r = allr(R[1:])
        self.dpp = '_dpp' in op
        self.trans = op.replace('_e32', '').replace('_e64', '') in TRANS
        self.permlane = op.startswith('v_permlane')
        self.readlane = op.startswith(('v_readlane', 'v_readfirstlane'))

def vonly(s):
    return {x for x in s if x[0] in 'va'}
def sonly(s):
    return {x for x in s if x[0] == 's'}

def need(p, c):
    n = 0
    pv = p.kind == 'valu'
    if pv:
        wv = vonly(p.w); ws = sonly(p.w)
        if c.kind == 'mfma' and wv & c.r: n = max(n, 2)
        if c.kind == 'valu':
            if c.dpp and wv & c.r: n = max(n, 2)
            if c.permlane and wv & c.r: n = max(n, 2)
            if c.readlane and wv & c.r: n = max(n, 1)
            if p.trans and wv & c.r: n = max(n, 1)
            if ws & c.r: n = max(n, 4 if c.readlane else 2)
        if c.kind in ('vload', 'vstore') and ws & c.r: n = max(n, 5)
        if c.kind == 'salu' and ws & c.r: n = max(n, 2)
    if p.kind == 'mfma':
        if c.kind == 'mfma':
            if p.w & c.srcAB: n = max(n, 8)
            if p.w & c.srcC and p.w != c.srcC: n = max(n, 6)
            if p.w & c.w and p.w != c.srcC: n = max(n, 8)
        elif c.kind in ('valu', 'vload', 'vstore', 'ds'):
            if p.w & (c.r | c.w): n = max(n, 8)
            if c.kind == 'valu' and p.srcC & c.w: n = max(n, 3)
    if p.kind == 'vstore' and getattr(p, 'wide', False):
        if p.data & c.w: n = max(n, 2)
    if p.kind == 'salu' and ('s', 'm0') in p.w and c.kind == 'vload': n = max(n, 1)
    return n

class Asm:
    def __init__(self):
        self.lines = []
        self.hist = []
        self.vm = []
        self.nops = 0
    def raw(self, s):
        self.lines.append(s)
    def comment(self, s):
        self.lines.append('    ; ' + s)
    def label(self, name):
        self.lines.append(name + ':')
    def fence(self, n=8):
        self('s_nop %d' % (n - 1))
    def __call__(self, text, tag=None):
        c = Ins(text)
        dist, req = 0, 0
        for p in reversed(self.hist[-24:]):
            k = need(p, c) - dist
            req = max(req, k)
            dist += p.states
            if dist >= 12:
                break
        if req > 0:
            nop = Ins('s_nop %d' % (req - 1))
            self.lines.append('    s_nop %d' % (req - 1))
            self.hist.append(nop)
            self.nops += 1
        self.lines.append('    ' + text)
        self.hist.append(c)
        if c.kind in ('vload', 'vstore'):
            self.vm.append(tag)
            assert len(self.vm) <= 63 or True
        return c
    def wait_vm(self, tag):
        idx = [i for i, t in enumerate(self.vm) if t == tag]
        if not idx:
            return
        n = len(self.vm) - 1 - idx[-1]
        assert n <= 63, (tag, n)
        self('s_waitcnt vmcnt(%d)' % n)
        self.vm = self.vm[idx[-1] + 1:]
    def wait_vm0(self):
        self('s_waitcnt vmcnt(0)')
        self.vm = []
    def outstanding(self):
        return len(self.vm)
    def text(self):
        return '\n'.join(self.lines) + '\n'
```

```python
import sys, os, math, struct, argparse
sys.path.insert(0, os.path.dirname(os.path.abspath(__file__)))
from asmlib import Asm

NAME = 'gated_mix__mha_block_cached__mixer_channel_mlp__decode'

def f2u(x):
    return struct.unpack('<I', struct.pack('<f', x))[0]

HEADER = open(os.path.join(os.path.dirname(os.path.abspath(__file__)), '..', 'cdna_kernels', NAME + '.s.ref')).read().split('; Override launch')[0]

QPART, HPART, QB, HB, OBUF, YBUF, RED = 0, 8192, 16384, 16896, 17408, 21504, 58368
LDS_BYTES = 58368 + 1024 + 1024
PART_BYTES = 256 * 4608
GR = PART_BYTES
WS_BYTES = GR + 64 * 32 * 16
DIAG = 0x200000
OOB = 0x80000000

def gen(P):
    a = Asm()
    RING = P.ring
    nt = ' nt' if P.nt else ''
    wnt = ' nt' if P.wnt else ''
    vT, vL, vKo, vVo = 0, 1, 2, 3
    MASK = 4; AF = [8, 12]; BQ = 16; SC = 32; SACC = [40, 44]; OACC = 48; PACC = 52
    T = list(range(76, 88))
    WR = 88; RB = 256 - 16 * RING
    assert RB >= 160
    W1R = 16; XD = 32; B1 = 42; QACC = 48; XS = 52; GW = 62
    vB2 = 86
    vMC = 84
    sW, sH, sS, sB, sC0, sKV, sT0, sT1, sT2, sROT = 3, 4, 5, 6, 7, 8, 9, 10, 11, 12
    pX, pK, pV, pWQ, pWO, pW1, pB1, pW2, pB2, pGW, pOUT, pDBG, pWS = 16, 18, 20, 22, 24, 28, 30, 32, 34, 36, 38, 40, 42
    rK, rV, rWQ, rWO, rW1, rW2, rWS, rDBG, rB1, rB2 = 44, 48, 52, 56, 60, 64, 68, 72, 76, 96
    sMU0, sMU1, sRS0, sRS1, sG0, sG1 = 80, 81, 82, 83, 84, 85
    sSELL, sSELH, sHI, sC, sBB, sM = 88, 89, 90, 91, 92, 94
    sSPIN = 13
    sST = 14
    def v(n, k=1):
        return 'v%d' % n if k == 1 else 'v[%d:%d]' % (n, n + k - 1)
    def s(n, k=1):
        return 's%d' % n if k == 1 else 's[%d:%d]' % (n, n + k - 1)
    def srd(r, p, nbytes):
        a('s_mov_b32 %s, %s' % (s(r), s(p)))
        a('s_mov_b32 %s, %s' % (s(r + 1), s(p + 1)))
        a('s_mov_b32 %s, 0x%x' % (s(r + 2), nbytes))
        a('s_mov_b32 %s, 0x20000' % s(r + 3))
    def smask(val16):
        w = val16 | (val16 << 16)
        a('s_mov_b32 %s, 0x%x' % (s(sM), w)); a('s_mov_b32 %s, 0x%x' % (s(sM + 1), w))
    DPP = ' row_mask:0xf bank_mask:0xf'
    stampn = [0]
    def stamp():
        if not P.diag:
            return
        n = stampn[0]; stampn[0] += 1
        a('s_memrealtime %s' % s(sST, 2))
        a('s_waitcnt lgkmcnt(0)')
        a('v_mov_b32 v%d, %s' % (P.dv, s(sST)))
        a('s_lshl_b32 s100, s2, 3'); a('s_add_u32 s100, s100, %s' % s(sW)); a('s_lshl_b32 s100, s100, 7')
        a('s_add_u32 s100, s100, 0x%x' % (DIAG + n * 4))
        a('v_cmp_eq_u32 vcc, 0, %s' % v(vL))
        a('v_mov_b32 v%d, 0x%x' % (P.dv + 1, OOB))
        a('v_cndmask_b32 v%d, v%d, 0, vcc' % (P.dv + 1, P.dv + 1))
        a('buffer_store_dword v%d, v%d, %s, s100 offen' % (P.dv, P.dv + 1, s(rWS, 4)), tag='stamp')

    def red32(x, t, op):
        for d in ('quad_perm:[1,0,3,2]', 'quad_perm:[2,3,0,1]', 'row_ror:4', 'row_ror:8'):
            a('%s_dpp %s, %s, %s %s%s' % (op, v(x), v(x), v(x), d, DPP))
        a('v_mov_b32 %s, %s' % (v(t), v(x)))
        a('v_permlane16_swap_b32 %s, %s' % (v(x), v(t)))
        a('%s %s, %s, %s' % (op, v(x), v(x), v(t)))
    def redquads64(x, t, op):
        for d in ('row_ror:4', 'row_ror:8'):
            a('%s_dpp %s, %s, %s %s%s' % (op, v(x), v(x), v(x), d, DPP))
        for sw in ('v_permlane16_swap_b32', 'v_permlane32_swap_b32'):
            a('v_mov_b32 %s, %s' % (v(t), v(x)))
            a('%s %s, %s' % (sw, v(x), v(t)))
            a('%s %s, %s, %s' % (op, v(x), v(x), v(t)))
    def delta(dst, src):
        for d in range(4):
            a('v_and_b32 %s, %s, %s' % (v(dst + d), v(src), v(MASK + d)))
    def mfma(d, A, B, c=None):
        a('v_mfma_f32_16x16x32_bf16 %s, %s, %s, %s' % (v(d, 4), v(A, 4), v(B, 4), '0' if c is None else v(d, 4)))

    def issue_group(n):
        slot = RB + 16 * (n % RING)
        g = n & 7
        if P.rot:
            a('s_add_u32 %s, %s, %d' % (s(sT0), s(sROT), g))
            a('s_and_b32 %s, %s, 7' % (s(sT0), s(sT0)))
            a('s_lshl_b32 %s, %s, 12' % (s(sT0), s(sT0)))
            a('s_add_u32 %s, %s, %s' % (s(sT0), s(sT0), s(sKV)))
        else:
            a('s_add_u32 %s, %s, 0x%x' % (s(sT0), s(sKV), g << 12))
        for i in range(4):
            a('buffer_load_dwordx4 %s, %s, %s, %s offen offset:%d%s' % (
                v(slot + 4 * i, 4), v(vKo if n < 8 else vVo), s(rK if n < 8 else rV, 4), s(sT0), 1024 * i, nt), tag='g%d_%d' % (n, i))

    K1 = NAME + '_kernel'
    a.raw('.amdgcn_target "amdgcn-amd-amdhsa--gfx950"')
    a.raw('.text'); a.raw('.globl ' + K1); a.raw('.p2align 8'); a.raw('.type %s,@function' % K1)
    a.label(K1)
    a('s_cmp_ge_u32 s2, 256'); a('s_cbranch_scc1 L_end')
    a('s_load_dwordx16 s[16:31], s[0:1], 0')
    a('s_load_dwordx8 s[32:39], s[0:1], 64')
    a('s_load_dwordx4 s[40:43], s[0:1], 96')
    a('v_lshrrev_b32 %s, 6, v0' % v(T[0]))
    a('v_and_b32 %s, 63, v0' % v(vL))
    a('v_readfirstlane_b32 %s, %s' % (s(sW), v(T[0])))
    a('s_and_b32 %s, s2, 7' % s(sT0))
    a('s_lshr_b32 %s, s2, 3' % s(sT1))
    a('s_and_b32 %s, %s, 3' % (s(sH), s(sT1)))
    a('s_lshl_b32 %s, %s, 2' % (s(sT2), s(sT0)))
    a('s_add_u32 %s, %s, %s' % (s(sH), s(sH), s(sT2)))
    a('s_lshr_b32 %s, %s, 2' % (s(sS), s(sT1)))
    a('s_mul_i32 %s, %s, 576' % (s(sC0), s(sT0)))
    a('s_mul_i32 %s, %s, 18' % (s(sT2), s(sT1)))
    a('s_add_u32 %s, %s, %s' % (s(sC0), s(sC0), s(sT2)))
    a('s_lshr_b32 %s, %s, 2' % (s(sB), s(sW)))
    a('s_lshl_b32 %s, %s, 25' % (s(sKV), s(sB)))
    a('s_lshl_b32 %s, %s, 20' % (s(sT2), s(sH))); a('s_add_u32 %s, %s, %s' % (s(sKV), s(sKV), s(sT2)))
    a('s_lshl_b32 %s, %s, 17' % (s(sT2), s(sS))); a('s_add_u32 %s, %s, %s' % (s(sKV), s(sKV), s(sT2)))
    a('s_and_b32 %s, %s, 3' % (s(sT2), s(sW)))
    a('s_lshl_b32 %s, %s, 15' % (s(sT2), s(sT2))); a('s_add_u32 %s, %s, %s' % (s(sKV), s(sKV), s(sT2)))
    if P.rot:
        a('s_add_u32 %s, %s, %s' % (s(sROT), s(sT1), s(sW)))
    vG, vN, vBB = T[1], T[2], T[3]
    a('v_lshrrev_b32 %s, 4, %s' % (v(vG), v(vL)))
    a('v_and_b32 %s, 15, %s' % (v(vN), v(vL)))
    a('v_bfe_u32 %s, %s, 3, 1' % (v(vBB), v(vL)))
    a('v_lshlrev_b32 %s, 4, %s' % (v(vVo), v(vL)))
    a('v_bfe_u32 %s, %s, 2, 2' % (v(T[0]), v(vL)))
    a('v_lshlrev_b32 %s, 8, %s' % (v(vKo), v(T[0])))
    a('v_lshl_add_u32 %s, %s, 6, %s' % (v(vKo), v(vG), v(vKo)))
    a('v_and_b32 %s, 3, %s' % (v(T[0]), v(vL)))
    a('v_lshl_add_u32 %s, %s, 4, %s' % (v(vKo), v(T[0]), v(vKo)))
    vXd, vXs, vGw = T[4], T[5], T[6]
    a('v_mul_u32_u24 %s, 0x480, %s' % (v(vXd), v(vBB)))
    a('v_mad_u32_u24 %s, %s, 36, %s' % (v(vXd), v(vG), v(vXd)))
    a('s_mul_i32 %s, %s, 144' % (s(sT2), s(sW)))
    a('v_add_u32 %s, %s, %s' % (v(vXd), s(sT2), v(vXd)))
    a('v_and_b32 %s, 31, %s' % (v(vGw), v(vL)))
    a('v_mul_u32_u24 %s, 36, %s' % (v(vGw), v(vGw)))
    a('v_lshrrev_b32 %s, 5, %s' % (v(vXs), v(vL)))
    a('v_mul_u32_u24 %s, 0x480, %s' % (v(vXs), v(vXs)))
    a('v_add_u32 %s, %s, %s' % (v(vXs), v(vXs), v(vGw)))
    a('s_waitcnt lgkmcnt(0)')
    srd(rK, pK, 1 << 26)
    srd(rWS, pWS, (DIAG + 0x40000) if P.diag else WS_BYTES)
    stamp()
    for n in range(P.kfirst):
        issue_group(n)
    for (dst, off, base, tag) in ((XS, vXs, pX, 'xs'), (GW, vGw, pGW, 'gw'), (XD, vXd, pX, 'xd')):
        a('global_load_dwordx4 %s, %s, %s' % (v(dst, 4), v(off), s(base, 2)), tag=tag)
        a('global_load_dwordx4 %s, %s, %s offset:16' % (v(dst + 4, 4), v(off), s(base, 2)), tag=tag)
        a('global_load_dword %s, %s, %s offset:32' % (v(dst + 8), v(off), s(base, 2)), tag=tag)
    srd(rW1, pW1, 576 * 9216)
    vO, vO2 = T[4], T[5]
    a('v_mul_u32_u24 %s, 11, %s' % (v(T[0]), v(vN)))
    a('v_lshrrev_b32 %s, 5, %s' % (v(T[0]), v(T[0])))
    a('v_mul_u32_u24 %s, 3, %s' % (v(T[7]), v(T[0])))
    a('v_sub_u32 %s, %s, %s' % (v(T[7]), v(vN), v(T[7])))
    a('v_mad_u32_u24 %s, %s, 18, %s' % (v(T[0]), v(vG), v(T[0])))
    a('v_mul_u32_u24 %s, 0x2400, %s' % (v(vO), v(T[0])))
    a('v_lshl_add_u32 %s, %s, 4, %s' % (v(vO), v(T[7]), v(vO)))
    a('s_mul_i32 %s, %s, %d' % (s(sT0), s(sW), 72 * 9216))
    a('s_lshl_b32 %s, %s, 1' % (s(sT1), s(sC0)))
    a('s_add_u32 %s, %s, %s' % (s(sT0), s(sT0), s(sT1)))
    for u in range(4):
        a('buffer_load_dwordx4 %s, %s, %s, %s offen' % (v(W1R + 4 * u, 4), v(vO), s(rW1, 4), s(sT0)), tag='w1')
        if u < 3:
            a('s_add_u32 %s, %s, %d' % (s(sT0), s(sT0), 5 * 9216))
    if P.single or True:
        a('s_mul_i32 %s, s2, 4608' % s(sT0))
        a('v_lshl_add_u32 %s, v0, 4, %s' % (v(vO), s(sT0)))
        a('v_subrev_u32 %s, 288, v0' % v(T[0]))
        a('v_lshrrev_b32 %s, 2, %s' % (v(T[7]), v(T[0])))
        a('v_lshlrev_b32 %s, 14, %s' % (v(T[7]), v(T[7])))
        a('v_and_b32 %s, 3, %s' % (v(vO2), v(T[0])))
        a('v_lshl_add_u32 %s, %s, 4, %s' % (v(T[7]), v(vO2), v(T[7])))
        a('s_lshl_b32 %s, %s, 9' % (s(sT0), s(sH)))
        a('s_lshl_b32 %s, %s, 6' % (s(sT1), s(sS)))
        a('s_add_u32 %s, %s, %s' % (s(sT0), s(sT0), s(sT1)))
        a('s_add_u32 %s, %s, 0x%x' % (s(sT0), s(sT0), GR))
        a('v_add_u32 %s, %s, %s' % (v(T[7]), s(sT0), v(T[7])))
        a('v_cmp_gt_u32 vcc, 288, v0')
        a('v_cndmask_b32 %s, %s, %s, vcc' % (v(vO), v(T[7]), v(vO)))
        a('v_mov_b32 %s, 0x%x' % (v(T[7]), OOB))
        a('v_cmp_gt_u32 vcc, 296, v0')
        a('v_cndmask_b32 %s, %s, %s, vcc' % (v(vO), v(T[7]), v(vO)))
        for d in range(4):
            a('v_mov_b32 %s, -1' % v(AF[0] + d))
        a('buffer_store_dwordx4 %s, %s, %s, 0 offen sc1' % (v(AF[0], 4), v(vO), s(rWS, 4)), tag='clear')
    srd(rB1, pB1, 9216)
    a('v_and_b32 %s, 1, %s' % (v(T[0]), v(vG)))
    a('v_lshlrev_b32 %s, 3, %s' % (v(T[0]), v(T[0])))
    a('v_lshl_add_u32 %s, %s, 4, %s' % (v(vO), v(vN), v(T[0])))
    a('s_lshl_b32 %s, %s, 1' % (s(sT1), s(sC0)))
    a('buffer_load_dwordx2 %s, %s, %s, %s offen' % (v(B1, 2), v(vO), s(rB1, 4), s(sT1)), tag='b1')
    srd(rB2, pB2, 1152)
    a('v_lshlrev_b32 %s, 3, v0' % v(vO))
    a('v_subrev_u32 %s, 0x480, %s' % (v(vO2), v(vO)))
    a('v_cmp_gt_u32 vcc, 144, v0')
    a('v_cndmask_b32 %s, %s, %s, vcc' % (v(vO), v(vO2), v(vO)))
    a('s_cmp_eq_u32 s2, 0')
    a('s_cselect_b32 %s, 0, 0x10000' % s(sT1))
    a('buffer_load_dwordx2 %s, %s, %s, %s offen' % (v(vB2, 2), v(vO), s(rB2, 4), s(sT1)), tag='b2')
    for n in range(P.kfirst, P.kmid):
        issue_group(n)
    srd(rWQ, pWQ, 576 * 8192)
    a('v_mul_u32_u24 %s, 18, %s' % (v(vO), v(vG)))
    a('v_lshlrev_b32 %s, 13, %s' % (v(vO), v(vO)))
    a('v_lshl_add_u32 %s, %s, 4, %s' % (v(vO), v(vN), v(vO)))
    a('s_mul_i32 %s, %s, %d' % (s(sT0), s(sW), 72 * 8192))
    a('s_lshl_b32 %s, %s, 8' % (s(sT1), s(sH)))
    a('s_add_u32 %s, %s, %s' % (s(sT0), s(sT0), s(sT1)))
    for i in range(18):
        a('buffer_load_dwordx4 %s, %s, %s, %s offen' % (v(WR + 4 * i, 4), v(vO), s(rWQ, 4), s(sT0)), tag='wq%d' % i)
        if i < 17:
            a('s_add_u32 %s, %s, 0x2000' % (s(sT0), s(sT0)))
    srd(rV, pV, 1 << 26)
    for n in range(P.kmid, RING):
        issue_group(n)
    assert a.outstanding() <= 63, a.outstanding()
    srd(rWO, pWO, 4096 * 1152)
    srd(rW2, pW2, 4608 * 1152)
    srd(rDBG, pDBG, 256)
    a('s_mov_b32 %s, 0x01000100' % s(sSELL)); a('s_mov_b32 %s, 0x03020302' % s(sSELH))
    a('s_mov_b32 %s, 0xffff0000' % s(sHI))
    a('s_mov_b32 %s, 0x%x' % (s(sC), f2u(math.log2(math.e) / math.sqrt(128.0))))
    a('s_mov_b32 %s, 0xff00ff00' % s(sBB)); a('s_mov_b32 %s, 0xff00ff00' % s(sBB + 1))
    a('v_and_b32 %s, 1, %s' % (v(T[0]), v(vL)))
    a('v_lshlrev_b32 %s, 4, %s' % (v(T[0]), v(T[0])))
    a('v_mov_b32 %s, 0xffff' % v(T[7]))
    a('v_lshlrev_b32 %s, %s, %s' % (v(T[0]), v(T[0]), v(T[7])))
    for d in range(4):
        smask(0x0303 << (2 * d))
        a('v_cndmask_b32 %s, 0, %s, %s' % (v(MASK + d), v(T[0]), s(sM, 2)))
    a.wait_vm('gw')
    S1, GD, t0, t1, t2, t3 = T[4], T[5], T[6], T[7], T[0], 44
    a('v_mov_b32 %s, 0' % v(S1)); a('v_mov_b32 %s, 0' % v(GD))
    for k in range(9):
        a('v_lshlrev_b32 %s, 16, %s' % (v(t0), v(XS + k)))
        a('v_and_b32 %s, %s, %s' % (v(t1), s(sHI), v(XS + k)))
        a('v_lshlrev_b32 %s, 16, %s' % (v(t2), v(GW + k)))
        a('v_and_b32 %s, %s, %s' % (v(t3), s(sHI), v(GW + k)))
        a('v_add_f32 %s, %s, %s' % (v(S1), v(S1), v(t0)))
        a('v_fmac_f32 %s, %s, %s' % (v(GD), v(t0), v(t2)))
        a('v_add_f32 %s, %s, %s' % (v(S1), v(S1), v(t1)))
        a('v_fmac_f32 %s, %s, %s' % (v(GD), v(t1), v(t3)))
    red32(S1, t0, 'v_add_f32')
    red32(GD, t0, 'v_add_f32')
    a('v_mul_f32 %s, 0x%x, %s' % (v(S1), f2u(1.0 / 576), v(S1)))
    S2 = t3
    a('v_mov_b32 %s, 0' % v(S2))
    for k in range(9):
        a('v_lshlrev_b32 %s, 16, %s' % (v(t0), v(XS + k)))
        a('v_and_b32 %s, %s, %s' % (v(t1), s(sHI), v(XS + k)))
        a('v_sub_f32 %s, %s, %s' % (v(t0), v(t0), v(S1)))
        a('v_sub_f32 %s, %s, %s' % (v(t1), v(t1), v(S1)))
        a('v_fmac_f32 %s, %s, %s' % (v(S2), v(t0), v(t0)))
        a('v_fmac_f32 %s, %s, %s' % (v(S2), v(t1), v(t1)))
    red32(S2, t0, 'v_add_f32')
    a('v_mov_b32 %s, 0x%x' % (v(t0), f2u(1e-5)))
    a('v_fmac_f32 %s, 0x%x, %s' % (v(t0), f2u(1.0 / 576), v(S2)))
    a('v_rsq_f32 %s, %s' % (v(S2), v(t0)))
    a('v_mul_f32 %s, 0x%x, %s' % (v(GD), f2u(-math.log2(math.e)), v(GD)))
    a('v_exp_f32 %s, %s' % (v(GD), v(GD)))
    a('v_add_f32 %s, 1.0, %s' % (v(GD), v(GD)))
    a('v_rcp_f32 %s, %s' % (v(GD), v(GD)))
    a('v_readlane_b32 %s, %s, 0' % (s(sMU0), v(S1))); a('v_readlane_b32 %s, %s, 32' % (s(sMU1), v(S1)))
    a('v_readlane_b32 %s, %s, 0' % (s(sRS0), v(S2))); a('v_readlane_b32 %s, %s, 32' % (s(sRS1), v(S2)))
    a('v_readlane_b32 %s, %s, 0' % (s(sG0), v(GD))); a('v_readlane_b32 %s, %s, 32' % (s(sG1), v(GD)))
    MU, RS = T[4], T[5]
    a('v_mov_b32 %s, %s' % (v(MU), s(sMU0))); a('v_mov_b32 %s, %s' % (v(t0), s(sMU1)))
    a('v_cndmask_b32 %s, %s, %s, %s' % (v(MU), v(MU), v(t0), s(sBB, 2)))
    a('v_mov_b32 %s, %s' % (v(RS), s(sRS0))); a('v_mov_b32 %s, %s' % (v(t0), s(sRS1)))
    a('v_cndmask_b32 %s, %s, %s, %s' % (v(RS), v(RS), v(t0), s(sBB, 2)))
    a.wait_vm('w1')
    for i in range(18):
        u, t = divmod(i, 5)
        A = AF[i & 1]
        if i & 1:
            a('v_and_b32 %s, %s, %s' % (v(t0), s(sHI), v(XD + i // 2)))
        else:
            a('v_lshlrev_b32 %s, 16, %s' % (v(t0), v(XD + i // 2)))
        a('v_sub_f32 %s, %s, %s' % (v(t0), v(t0), v(MU)))
        a('v_mul_f32 %s, %s, %s' % (v(t0), v(t0), v(RS)))
        a('v_cvt_pk_bf16_f32 %s, %s, %s' % (v(t0), v(t0), v(t0)))
        delta(A, t0)
        mfma(PACC + 4 * t, A, W1R + 4 * u, None if u == 0 else 1)
    a('v_lshlrev_b32 %s, 4, v0' % v(t1))
    for t in range(5):
        w = (0x7 << (3 * t)); w |= w << 16
        a('s_mov_b32 exec_lo, 0x%x' % w); a('s_mov_b32 exec_hi, 0x%x' % w)
        a('ds_write_b128 %s, %s offset:%d' % (v(t1), v(PACC + 4 * t, 4), HPART))
    a('s_mov_b64 exec, -1')
    for i in range(18):
        A = AF[i & 1]
        a('v_perm_b32 %s, %s, %s, %s' % (v(t0), v(XD + i // 2), v(XD + i // 2), s(sSELH if i & 1 else sSELL)))
        delta(A, t0)
        a.wait_vm('wq%d' % i)
        mfma(QACC, A, WR + 4 * i, None if i == 0 else 1)
    a('v_lshrrev_b32 %s, 5, v0' % v(t0))
    a('v_lshlrev_b32 %s, 9, %s' % (v(t0), v(t0)))
    a('v_lshl_add_u32 %s, %s, 5, %s' % (v(t0), v(vN), v(t0)))
    a('v_and_b32 %s, 16, %s' % (v(t1), v(vL)))
    a('v_add_u32 %s, %s, %s' % (v(t0), v(t0), v(t1)))
    a('ds_write_b128 %s, %s offset:%d' % (v(t0), v(QACC, 4), QPART))
    a('v_mul_u32_u24 %s, 0x480, %s' % (v(vO), v(vG)))
    a('v_lshl_add_u32 %s, %s, 4, %s' % (v(vO), v(vN), v(vO)))
    a('s_lshl_b32 %s, %s, 2' % (s(sT0), s(sW)))
    a('v_add_u32 %s, %s, %s' % (v(t1), s(sT0), v(vG)))
    a('v_cmp_gt_u32 vcc, 18, %s' % v(t1))
    a('v_mov_b32 %s, 0x%x' % (v(t1), OOB))
    a('v_cndmask_b32 %s, %s, %s, vcc' % (v(vO), v(t1), v(vO)))
    a('s_add_u32 %s, %s, %s' % (s(sT0), s(sT0), s(sC0)))
    a('s_mul_i32 %s, %s, 0x480' % (s(sT0), s(sT0)))
    for t in range(5):
        a('buffer_load_dwordx4 %s, %s, %s, %s offen offset:%d%s' % (v(WR + 4 * t, 4), v(vO), s(rW2, 4), s(sT0), 256 * t, wnt), tag='w2')
    vWo, vWoH = T[6], T[7]
    a('v_mul_u32_u24 %s, 0x1200, %s' % (v(vWo), v(vG)))
    a('v_mul_u32_u24 %s, 0x480, %s' % (v(vWoH), v(vBB)))
    a('v_add_u32 %s, %s, %s' % (v(vWoH), v(vWoH), v(vWo)))
    a('v_and_b32 %s, 7, %s' % (v(T[0]), v(vL)))
    a('v_lshl_add_u32 %s, %s, 4, %s' % (v(vWoH), v(T[0]), v(vWoH)))
    a('v_lshl_add_u32 %s, %s, 4, %s' % (v(vWo), v(vN), v(vWo)))
    sWO = 86; sWO2 = 87
    a('s_lshl_b32 %s, %s, 7' % (s(sWO), s(sH)))
    a('s_lshl_b32 %s, %s, 4' % (s(sT0), s(sW)))
    a('s_add_u32 %s, %s, %s' % (s(sWO), s(sWO), s(sT0)))
    a('s_mul_i32 %s, %s, 0x480' % (s(sWO), s(sWO)))
    a('s_add_u32 %s, %s, 0x900' % (s(sWO2), s(sWO)))
    def wo_load(k):
        if k < 16:
            i, t = k >> 2, k & 3
            a('buffer_load_dwordx4 %s, %s, %s, %s offen offset:%d' % (v(WR + 4 * k, 4), v(vWo), s(rWO, 4), s(sWO if i < 2 else sWO2), (i & 1) * 1152 + t * 256), tag='wo')
        else:
            a('buffer_load_dwordx4 %s, %s, %s, %s offen offset:%d' % (v(WR + 4 * k, 4), v(vWoH), s(rWO, 4), s(sWO if k == 16 else sWO2), 1024), tag='wo')
    for k in range(5, 18):
        wo_load(k)
    a('s_waitcnt lgkmcnt(0)')
    a('s_barrier')
    stamp()
    a('v_mov_b32 %s, 0x%x' % (v(T[0]), OOB))
    a('v_cmp_eq_u32 vcc, 0, v0')
    a('v_cndmask_b32 %s, %s, 0, vcc' % (v(T[0]), v(T[0])))
    a('v_mov_b32 %s, 1' % v(T[4]))
    a('buffer_atomic_add %s, %s, %s, 0 offen sc1' % (v(T[4]), v(T[0]), s(rDBG, 4)), tag='cnt')
    a('s_cmp_gt_u32 %s, 4' % s(sW)); a('s_cbranch_scc1 L_bar2')
    a('s_cmp_eq_u32 %s, 4' % s(sW)); a('s_cbranch_scc1 L_hfin')
    a('v_lshlrev_b32 %s, 2, v0' % v(T[0]))
    for w in range(8):
        a('ds_read_b32 %s, %s offset:%d' % (v(BQ + w), v(T[0]), QPART + 1024 * w))
    a('s_waitcnt lgkmcnt(0)')
    for st in (1, 2, 4):
        for w in range(0, 8, 2 * st):
            a('v_add_f32 %s, %s, %s' % (v(BQ + w), v(BQ + w), v(BQ + w + st)))
    a('v_cvt_pk_bf16_f32 %s, %s, %s' % (v(BQ), v(BQ), v(BQ)))
    a('v_lshlrev_b32 %s, 1, v0' % v(T[0]))
    a('ds_write_b16 %s, %s offset:%d' % (v(T[0]), v(BQ), QB))
    a('s_branch L_bar2')
    a.label('L_hfin'); a.hist = []
    HR = PACC
    hregs = [PACC + 4 * k for k in range(6)] + [BQ, BQ + 4]
    for w in range(8):
        a('ds_read_b128 %s, %s offset:%d' % (v(hregs[w], 4), v(vVo), HPART + 1024 * w))
    a('s_waitcnt lgkmcnt(0)')
    for st in (1, 2, 4):
        for w in range(0, 8, 2 * st):
            for r in range(4):
                a('v_add_f32 %s, %s, %s' % (v(hregs[w] + r), v(hregs[w] + r), v(hregs[w + st] + r)))
    H = hregs[0]; HA = hregs[1]
    for r in range(4):
        a('v_add_f32_dpp %s, %s, %s row_shl:3%s bound_ctrl:0' % (v(HA + r), v(H + r), v(H + r), DPP))
    for r in range(4):
        a('v_add_f32_dpp %s, %s, %s row_shl:6%s bound_ctrl:0' % (v(HA + r), v(HA + r), v(HA + r), DPP))
    for r in range(4):
        a('v_add_f32_dpp %s, %s, %s row_shl:12%s bound_ctrl:0' % (v(HA + r), v(H + r), v(HA + r), DPP))
    for r in range(4):
        if r & 1:
            a('v_and_b32 %s, %s, %s' % (v(H + r), s(sHI), v(B1 + r // 2)))
        else:
            a('v_lshlrev_b32 %s, 16, %s' % (v(H + r), v(B1 + r // 2)))
        a('v_add_f32 %s, %s, %s' % (v(HA + r), v(HA + r), v(H + r)))
    a('v_mov_b32 %s, %s' % (v(T[0]), s(sG0))); a('v_mov_b32 %s, %s' % (v(T[4]), s(sG1)))
    a('v_cmp_lt_u32 vcc, 31, %s' % v(vL))
    a('v_cndmask_b32 %s, %s, %s, vcc' % (v(T[0]), v(T[0]), v(T[4])))
    a('v_sub_f32 %s, 1.0, %s' % (v(T[0]), v(T[0])))
    kz = -2.0 * math.sqrt(2.0 / math.pi) * math.log2(math.e)
    for r in range(4):
        x, z = HA + r, H + r
        a('v_mul_f32 %s, %s, %s' % (v(z), v(x), v(x)))
        a('v_mul_f32 %s, 0x%x, %s' % (v(z), f2u(0.044715), v(z)))
        a('v_add_f32 %s, 1.0, %s' % (v(z), v(z)))
        a('v_mul_f32 %s, %s, %s' % (v(z), v(z), v(x)))
        a('v_mul_f32 %s, 0x%x, %s' % (v(z), f2u(kz), v(z)))
        a('v_exp_f32 %s, %s' % (v(z), v(z)))
        a('v_add_f32 %s, 1.0, %s' % (v(z), v(z)))
        a('v_rcp_f32 %s, %s' % (v(z), v(z)))
        a('v_mul_f32 %s, %s, %s' % (v(x), v(x), v(z)))
        a('v_mul_f32 %s, %s, %s' % (v(x), v(x), v(T[0])))
    a('v_cvt_pk_bf16_f32 %s, %s, %s' % (v(H), v(HA), v(HA + 1)))
    a('v_cvt_pk_bf16_f32 %s, %s, %s' % (v(H + 1), v(HA + 2), v(HA + 3)))
    a('v_lshrrev_b32 %s, 5, %s' % (v(T[0]), v(vL)))
    a('v_mul_u32_u24 %s, 48, %s' % (v(T[0]), v(T[0])))
    a('v_lshl_add_u32 %s, %s, 4, %s' % (v(T[0]), v(vN), v(T[0])))
    a('v_and_b32 %s, 1, %s' % (v(T[4]), v(vG)))
    a('v_lshl_add_u32 %s, %s, 3, %s' % (v(T[0]), v(T[4]), v(T[0])))
    a('s_mov_b32 exec_lo, 0x00070007'); a('s_mov_b32 exec_hi, 0x00070007')
    a('ds_write_b64 %s, %s offset:%d' % (v(T[0]), v(H, 2), HB))
    a('s_mov_b64 exec, -1')
    a.label('L_bar2'); a.hist = []
    a('s_waitcnt lgkmcnt(0)')
    a('s_barrier')
    a('v_and_b32 %s, 3, %s' % (v(T[0]), v(vL)))
    a('v_lshl_add_u32 %s, %s, 2, %s' % (v(T[0]), v(vG), v(T[0])))
    a('s_lshl_b32 %s, %s, 8' % (s(sT0), s(sB)))
    a('v_lshl_add_u32 %s, %s, 4, %s' % (v(T[0]), v(T[0]), s(sT0)))
    a('ds_read_b128 %s, %s offset:%d' % (v(AF[0], 4), v(T[0]), QB))
    vHV = T[5]
    a('s_lshl_b32 %s, %s, 2' % (s(sT0), s(sW)))
    a('v_add_u32 %s, %s, %s' % (v(T[4]), s(sT0), v(vG)))
    a('v_cmp_gt_u32 vcc, 18, %s' % v(T[4]))
    a('v_mul_u32_u24 %s, 48, %s' % (v(T[0]), v(vBB)))
    a('v_lshl_add_u32 %s, %s, 1, %s' % (v(T[0]), v(T[4]), v(T[0])))
    a('ds_read_u16 %s, %s offset:%d' % (v(vHV), v(T[0]), HB))
    a('s_waitcnt lgkmcnt(0)')
    a('v_cndmask_b32 %s, 0, %s, vcc' % (v(vHV), v(vHV)))
    a('v_lshl_or_b32 %s, %s, 16, %s' % (v(vHV), v(vHV), v(vHV)))
    for i in range(4):
        smask(0xf << (4 * i))
        for d in range(4):
            a('v_cndmask_b32 %s, 0, %s, %s' % (v(BQ + 4 * i + d), v(AF[0] + d), s(sM, 2)))
    stamp()
    def score(n):
        acc = SACC[n & 1]
        a('v_mov_b32_dpp %s, %s quad_perm:[0,0,0,0]%s' % (v(SC + n), v(acc), DPP))
        for c in range(1, 4):
            a('v_add_f32_dpp %s, %s, %s quad_perm:[%d,%d,%d,%d]%s' % (v(SC + n), v(acc + c), v(SC + n), c, c, c, c, DPP))
    nxt = [RING]
    vCNT = T[4]
    for n in range(8):
        slot = RB + 16 * (n % RING)
        for i in range(4):
            a.wait_vm('g%d_%d' % (n, i))
            mfma(SACC[n & 1], slot + 4 * i, BQ + 4 * i, None if i == 0 else 1)
        if nxt[0] < 16:
            issue_group(nxt[0]); nxt[0] += 1
        if n == P.cnt_at:
            a('v_mov_b32 %s, 0' % v(T[0]))
            a('buffer_load_dword %s, %s, %s, 0 offen sc1' % (v(vCNT), v(T[0]), s(rDBG, 4)), tag='cntld')
        if n > 0:
            score(n - 1)
        if n == P.mlp2_at:
            a.wait_vm('w2')
            delta(AF[0], vHV)
            for t in range(5):
                mfma(PACC + 4 * t, AF[0], WR + 4 * t, None)
            for r in range(4):
                a('v_mov_b32 %s, 0' % v(PACC + 20 + r))
            for k in range(5):
                wo_load(k)
    score(7)
    stamp()
    M_, L_ = vMC, vMC + 1
    a('v_max3_f32 %s, %s, %s, %s' % (v(M_), v(SC), v(SC + 1), v(SC + 2)))
    a('v_max3_f32 %s, %s, %s, %s' % (v(M_), v(M_), v(SC + 3), v(SC + 4)))
    a('v_max3_f32 %s, %s, %s, %s' % (v(M_), v(M_), v(SC + 5), v(SC + 6)))
    a('v_max_f32 %s, %s, %s' % (v(M_), v(M_), v(SC + 7)))
    redquads64(M_, T[0], 'v_max_f32')
    a('v_mul_f32 %s, %s, %s' % (v(M_), s(sC), v(M_)))
    for n in range(8):
        a('v_fma_f32 %s, %s, %s, -%s' % (v(SC + n), v(SC + n), s(sC), v(M_)))
    for n in range(8):
        a('v_exp_f32 %s, %s' % (v(SC + n), v(SC + n)))
    a('v_add_f32 %s, %s, %s' % (v(L_), v(SC), v(SC + 1)))
    for n in range(2, 8):
        a('v_add_f32 %s, %s, %s' % (v(L_), v(L_), v(SC + n)))
    for n in range(8):
        a('v_cvt_pk_bf16_f32 %s, %s, %s' % (v(SC + n), v(SC + n), v(SC + n)))
    redquads64(L_, T[0], 'v_add_f32')
    a('v_min_u32 %s, -2, %s' % (v(M_), v(M_)))
    a('v_min_u32 %s, -2, %s' % (v(L_), v(L_)))
    sGR = 100 if not P.diag else 101
    a('s_lshl_b32 %s, %s, 14' % (s(sGR), s(sB)))
    a('s_lshl_b32 %s, %s, 9' % (s(sT0), s(sH)))
    a('s_add_u32 %s, %s, %s' % (s(sGR), s(sGR), s(sT0)))
    a('s_add_u32 %s, %s, 0x%x' % (s(sGR), s(sGR), GR))
    a('s_lshl_b32 %s, %s, 2' % (s(sT0), s(sS)))
    a('s_and_b32 %s, %s, 3' % (s(sT1), s(sW)))
    a('s_add_u32 %s, %s, %s' % (s(sT0), s(sT0), s(sT1)))
    a('s_lshl_b32 %s, %s, 4' % (s(sT0), s(sT0)))
    a('s_add_u32 %s, %s, %s' % (s(sT0), s(sT0), s(sGR)))
    a('v_mov_b32 %s, 0x%x' % (v(T[0]), OOB))
    a('v_cmp_eq_u32 vcc, 0, %s' % v(vL))
    a('v_cndmask_b32 %s, %s, 0, vcc' % (v(T[0]), v(T[0])))
    a('buffer_store_dwordx2 %s, %s, %s, %s offen sc1' % (v(M_, 2), v(T[0]), s(rWS, 4), s(sT0)), tag='pub')
    GRN = BQ
    vGO = BQ + 2
    WGT = BQ + 3
    def check_counter():
        a.wait_vm('cntld')
        a('v_readfirstlane_b32 %s, %s' % (s(sT0), v(vCNT)))
        a('s_cmp_ge_u32 %s, 256' % s(sT0))
        a('s_cbranch_scc1 L_cnt_ok')
        a('s_mov_b32 %s, 0x%x' % (s(sSPIN), P.spin))
        a.label('L_cnt_spin')
        a('s_sleep 2')
        a('v_mov_b32 %s, 0' % v(T[0]))
        a.lines.append('    buffer_load_dword %s, %s, %s, 0 offen sc1' % (v(vCNT), v(T[0]), s(rDBG, 4)))
        a.lines.append('    s_waitcnt vmcnt(0)')
        a('v_readfirstlane_b32 %s, %s' % (s(sT0), v(vCNT)))
        a('s_sub_u32 %s, %s, 1' % (s(sSPIN), s(sSPIN)))
        a('s_cbranch_scc1 L_cnt_ok')
        a('s_cmp_lt_u32 %s, 256' % s(sT0))
        a('s_cbranch_scc1 L_cnt_spin')
        a.label('L_cnt_ok')
    def issue_gran():
        a('v_and_b32 %s, 31, %s' % (v(vGO), v(vL)))
        a('v_lshlrev_b32 %s, 4, %s' % (v(vGO), v(vGO)))
        a('buffer_load_dwordx2 %s, %s, %s, %s offen sc1' % (v(GRN, 2), v(vGO), s(rWS, 4), s(sGR)), tag='gran')
    def weights():
        a.wait_vm('gran')
        a('v_max_u32 %s, %s, %s' % (v(T[0]), v(GRN), v(GRN + 1)))
        a('v_cmp_eq_u32 vcc, -1, %s' % v(T[0]))
        a('s_nop 1')
        a('s_cbranch_vccz L_gr_ok')
        a('s_mov_b32 %s, 0x%x' % (s(sSPIN), P.spin))
        a.label('L_gr_spin')
        a('s_sleep 2')
        a.lines.append('    buffer_load_dwordx2 %s, %s, %s, %s offen sc1' % (v(GRN, 2), v(vGO), s(rWS, 4), s(sGR)))
        a.lines.append('    s_waitcnt vmcnt(0)')
        a('s_sub_u32 %s, %s, 1' % (s(sSPIN), s(sSPIN)))
        a('s_cbranch_scc1 L_gr_ok')
        a('v_max_u32 %s, %s, %s' % (v(T[0]), v(GRN), v(GRN + 1)))
        a('v_cmp_eq_u32 vcc, -1, %s' % v(T[0]))
        a('s_nop 1')
        a('s_cbranch_vccnz L_gr_spin')
        a.label('L_gr_ok')
        MM = BQ + 4
        a('v_mov_b32 %s, %s' % (v(MM), v(GRN)))
        red32(MM, T[0], 'v_max_f32')
        a('v_sub_f32 %s, %s, %s' % (v(GRN), v(GRN), v(MM)))
        a('v_exp_f32 %s, %s' % (v(GRN), v(GRN)))
        a('v_sub_f32 %s, %s, %s' % (v(WGT), v(M_), v(MM)))
        a('v_mul_f32 %s, %s, %s' % (v(GRN), v(GRN), v(GRN + 1)))
        a('v_exp_f32 %s, %s' % (v(WGT), v(WGT)))
        red32(GRN, T[0], 'v_add_f32')
        a('v_rcp_f32 %s, %s' % (v(GRN), v(GRN)))
        a('s_cmp_eq_u32 %s, 0' % s(sB))
        a('s_cselect_b32 %s, %s, %s' % (s(sT0), s(sG0), s(sG1)))
        a('v_mul_f32 %s, %s, %s' % (v(WGT), s(sT0), v(WGT)))
        a('v_mul_f32 %s, %s, %s' % (v(WGT), v(WGT), v(GRN)))
    vOW, vOR, vYW, vYR, vPS = BQ + 5, BQ + 6, BQ + 7, BQ + 8, BQ + 9
    BT = BQ + 12
    def tail_prep():
        a('v_lshlrev_b32 %s, 5, %s' % (v(vOW), v(vN)))
        a('v_and_b32 %s, 16, %s' % (v(T[0]), v(vL)))
        a('v_add_u32 %s, %s, %s' % (v(vOW), v(vOW), v(T[0])))
        a('v_lshrrev_b32 %s, 5, %s' % (v(T[0]), v(vL)))
        a('v_mul_u32_u24 %s, 0x900, %s' % (v(T[0]), v(T[0])))
        a('v_add_u32 %s, %s, %s' % (v(vYW), v(vOW), v(T[0])))
        a('s_mul_i32 %s, %s, 4608' % (s(sT0), s(sW)))
        a('v_add_u32 %s, %s, %s' % (v(vYW), s(sT0), v(vYW)))
        a('s_lshl_b32 %s, %s, 9' % (s(sT0), s(sW)))
        a('v_add_u32 %s, %s, %s' % (v(vOW), s(sT0), v(vOW)))
        a('v_lshlrev_b32 %s, 11, %s' % (v(vOR), v(vBB)))
        a('v_lshl_add_u32 %s, %s, 4, %s' % (v(vOR), v(vG), v(vOR)))
        a('s_lshl_b32 %s, %s, 6' % (s(sT0), s(sW)))
        a('v_add_u32 %s, %s, %s' % (v(vOR), s(sT0), v(vOR)))
        a('v_lshlrev_b32 %s, 4, v0' % v(vYR))
        a('v_mov_b32 %s, 0x%x' % (v(T[0]), OOB))
        a('v_cmp_gt_u32 vcc, 288, v0')
        a('v_cndmask_b32 %s, %s, %s, vcc' % (v(vPS), v(T[0]), v(vYR)))
        a('v_mov_b32 %s, %s' % (v(T[0]), s(sG0))); a('v_mov_b32 %s, %s' % (v(BT), s(sG1)))
        a('v_cmp_gt_u32 vcc, 144, v0')
        a('v_cndmask_b32 %s, %s, %s, vcc' % (v(T[0]), v(BT), v(T[0])))
        a('v_sub_f32 %s, 1.0, %s' % (v(T[0]), v(T[0])))
        for r in range(4):
            if r & 1:
                a('v_and_b32 %s, %s, %s' % (v(BT + r), s(sHI), v(vB2 + r // 2)))
            else:
                a('v_lshlrev_b32 %s, 16, %s' % (v(BT + r), v(vB2 + r // 2)))
            a('v_mul_f32 %s, %s, %s' % (v(BT + r), v(BT + r), v(T[0])))
    tail_prep()
    for n in range(8, 16):
        slot = RB + 16 * (n % RING)
        for r in range(4):
            A = AF[r & 1]
            for d in range(4):
                a('v_and_b32_dpp %s, %s, %s row_newbcast:%d%s' % (v(A + d), v(SC + n - 8), v(MASK + d), 4 * r, DPP))
            a.wait_vm('g%d_%d' % (n, r))
            mfma(OACC, A, slot + 4 * r, None if (n == 8 and r == 0) else 1)
        if n - 8 == P.gran_at:
            check_counter()
            issue_gran()
        hold = (nxt[0] == 15 and n - 8 < P.gran_at and P.hold_last)
        if nxt[0] < 16 and not hold:
            issue_group(nxt[0]); nxt[0] += 1
        if n == 14 and P.hold_last:
            weights()
    if not P.hold_last:
        weights()
    stamp()
    for r in range(4):
        a('v_mul_f32 %s, %s, %s' % (v(OACC + r), v(OACC + r), v(WGT)))
    a('s_mov_b32 exec_hi, 0')
    a('ds_write_b128 %s, %s offset:%d' % (v(vOW), v(OACC, 4), OBUF))
    a('s_mov_b32 exec_hi, -1')
    a('s_waitcnt lgkmcnt(0)')
    a('s_barrier')
    U = RB
    for w in range(4):
        a('ds_read_b128 %s, %s offset:%d' % (v(U + 4 * w, 4), v(vOR), OBUF + 512 * w))
    a.wait_vm('wo')
    a('s_waitcnt lgkmcnt(2)')
    for r in range(4):
        a('v_add_f32 %s, %s, %s' % (v(U + r), v(U + r), v(U + 4 + r)))
    a('s_waitcnt lgkmcnt(0)')
    for r in range(4):
        a('v_add_f32 %s, %s, %s' % (v(U + 8 + r), v(U + 8 + r), v(U + 12 + r)))
    AQ = RB + 16
    for i in range(4):
        a('v_add_f32 %s, %s, %s' % (v(U + i), v(U + i), v(U + 8 + i)))
        a('v_cvt_pk_bf16_f32 %s, %s, %s' % (v(U + i), v(U + i), v(U + i)))
        delta(AQ + 4 * i, U + i)
        for t in range(4):
            mfma(PACC + 4 * t, AQ + 4 * i, WR + 16 * i + 4 * t, 1)
        mfma(PACC + 16 + 4 * (i & 1), AQ + 4 * i, WR + 64 + 4 * (i >> 1), 1)
    for t in range(4):
        a('ds_write_b128 %s, %s offset:%d' % (v(vYW), v(PACC + 4 * t, 4), YBUF + 512 * t))
    for r in range(4):
        a('v_add_f32_dpp %s, %s, %s row_ror:8%s' % (v(PACC + 16 + r), v(PACC + 20 + r), v(PACC + 16 + r), DPP))
    a('s_mov_b32 exec_lo, 0x00ff00ff'); a('s_mov_b32 exec_hi, 0x00ff00ff')
    a('ds_write_b128 %s, %s offset:%d' % (v(vYW), v(PACC + 16, 4), YBUF + 2048))
    a('s_mov_b64 exec, -1')
    a('s_waitcnt lgkmcnt(0)')
    a('s_barrier')
    a('s_cmp_gt_u32 %s, 4' % s(sW)); a('s_cbranch_scc1 L_stored')
    Y = RB
    for w in range(8):
        a('ds_read_b128 %s, %s offset:%d' % (v(Y + 4 * w, 4), v(vYR), YBUF + 4608 * w))
    for w in range(8):
        a('s_waitcnt lgkmcnt(%d)' % (7 - w))
        for r in range(4):
            a('v_add_f32 %s, %s, %s' % (v(BT + r), v(BT + r), v(Y + 4 * w + r)))
    for r in range(4):
        a('v_min_u32 %s, -2, %s' % (v(BT + r), v(BT + r)))
    a('s_mul_i32 %s, s2, 4608' % s(sT0))
    a('buffer_store_dwordx4 %s, %s, %s, %s offen sc1' % (v(BT, 4), v(vPS), s(rWS, 4), s(sT0)))
    a.label('L_stored'); a.hist = []
    stamp()

    def reducer(poll, wsr, outp):
        R, vo, t_ = 8, 12, 13
        a('v_lshrrev_b32 %s, 1, v0' % v(vo))
        a('v_mul_u32_u24 %s, 0x1200, %s' % (v(vo), v(vo)))
        a('v_and_b32 %s, 1, v0' % v(t_))
        a('v_lshl_add_u32 %s, %s, 4, %s' % (v(vo), v(t_), v(vo)))
        a('s_lshl_b32 %s, s2, 5' % s(sT0))
        if poll:
            a('s_mov_b32 %s, 0x%x' % (s(sSPIN), P.spin))
            a.label('L_poll')
        a('buffer_load_dwordx4 %s, %s, %s, %s offen sc1' % (v(R, 4), v(vo), s(wsr, 4), s(sT0)))
        a.wait_vm0()
        if poll:
            a('v_max3_u32 %s, %s, %s, %s' % (v(t_), v(R), v(R + 1), v(R + 2)))
            a('v_max_u32 %s, %s, %s' % (v(t_), v(t_), v(R + 3)))
            a('v_cmp_eq_u32 vcc, -1, %s' % v(t_))
            a('s_sub_u32 %s, %s, 1' % (s(sSPIN), s(sSPIN)))
            a('s_cbranch_scc1 L_poll_ok')
            a('s_cbranch_vccnz L_poll')
            a.label('L_poll_ok')
        for d in ('quad_perm:[2,3,0,1]', 'row_ror:4', 'row_ror:8'):
            for r in range(4):
                a('v_add_f32_dpp %s, %s, %s %s%s' % (v(R + r), v(R + r), v(R + r), d, DPP))
        a('v_and_b32 %s, 1, v0' % v(t_))
        a('v_lshlrev_b32 %s, 9, %s' % (v(t_), v(t_)))
        a('v_lshrrev_b32 %s, 4, v0' % v(vo))
        a('v_lshl_add_u32 %s, %s, 2, %s' % (v(t_), v(vo), v(t_)))
        a('s_mov_b32 exec_lo, 0x00030003'); a('s_mov_b32 exec_hi, 0x00030003')
        for r in range(4):
            a('ds_write_b32 %s, %s offset:%d' % (v(t_), v(R + r), RED + 128 * r))
        a('s_mov_b64 exec, -1')
        a('s_waitcnt lgkmcnt(0)')
        a('s_barrier')
        a('v_cmp_gt_u32 vcc, 64, v0')
        a('s_nop 1')
        a('s_cbranch_vccz %s' % ('L_end' if poll else 'L_end2'))
        a('v_lshlrev_b32 %s, 4, v0' % v(t_))
        a('ds_read_b128 %s, %s offset:%d' % (v(R, 4), v(t_), RED))
        a('v_lshrrev_b32 %s, 3, v0' % v(vo))
        a('v_lshlrev_b32 %s, 1, %s' % (v(vo), v(vo)))
        a('s_lshl_b32 %s, s2, 4' % s(sT0))
        a('v_add_u32 %s, %s, %s' % (v(vo), s(sT0), v(vo)))
        a('s_waitcnt lgkmcnt(0)')
        a('v_add_f32 %s, %s, %s' % (v(R), v(R), v(R + 1)))
        a('v_add_f32 %s, %s, %s' % (v(R + 2), v(R + 2), v(R + 3)))
        a('v_add_f32 %s, %s, %s' % (v(R), v(R), v(R + 2)))
        for d in ('quad_perm:[1,0,3,2]', 'quad_perm:[2,3,0,1]', 'row_half_mirror'):
            a('v_add_f32_dpp %s, %s, %s %s%s' % (v(R), v(R), v(R), d, DPP))
        a('v_cvt_pk_bf16_f32 %s, %s, %s' % (v(R), v(R), v(R)))
        a('s_mov_b32 exec_lo, 0x01010101'); a('s_mov_b32 exec_hi, 0x01010101')
        a('global_store_short %s, %s, %s' % (v(vo), v(R), s(outp, 2)))
    if P.single:
        a('s_cmp_ge_u32 s2, 144'); a('s_cbranch_scc1 L_end')
        reducer(True, rWS, pOUT)
        if P.diag:
            a('s_mov_b64 exec, -1')
            stamp()
    a.label('L_end')
    a('s_endpgm')
    K2 = 'reduce_kernel'
    if not P.single:
        a.raw('.globl ' + K2); a.raw('.p2align 8'); a.raw('.type %s,@function' % K2)
        a.label(K2); a.hist = []; a.vm = []
        a('s_cmp_ge_u32 s2, 144'); a('s_cbranch_scc1 L_end2')
        a('s_load_dwordx2 s[38:39], s[0:1], 88')
        a('s_load_dwordx2 s[42:43], s[0:1], 104')
        a('s_waitcnt lgkmcnt(0)')
        srd(rWS, pWS, WS_BYTES)
        reducer(False, rWS, pOUT)
        a.label('L_end2')
        a('s_endpgm')
    a.raw('.section .rodata,"a"')
    def kd(name, nv):
        a.raw('.p2align 6')
        a.raw('.amdhsa_kernel ' + name)
        a.raw('  .amdhsa_next_free_vgpr %d' % nv)
        a.raw('  .amdhsa_next_free_sgpr 102')
        a.raw('  .amdhsa_accum_offset %d' % nv)
        a.raw('  .amdhsa_group_segment_fixed_size 0')
        a.raw('  .amdhsa_kernarg_size 112')
        a.raw('  .amdhsa_user_sgpr_count 2')
        a.raw('  .amdhsa_user_sgpr_kernarg_segment_ptr 1')
        a.raw('  .amdhsa_system_sgpr_workgroup_id_x 1')
        a.raw('  .amdhsa_float_denorm_mode_32 3')
        a.raw('.end_amdhsa_kernel')
    kd(K1, 256)
    if not P.single:
        kd(K2, 16)
    if P.single:
        launch = '; @launch grid=(256,1,1) block=(512,1,1) lds=%d\n' % LDS_BYTES
    else:
        launch = ('; @launch kernel=%s grid=(256,1,1) block=(512,1,1) lds=%d\n' % (K1, LDS_BYTES) +
                  '; @launch kernel=%s grid=(144,1,1) block=(512,1,1) lds=%d\n' % (K2, LDS_BYTES))
    return HEADER + launch + a.text()

def parse(argv=None):
    ap = argparse.ArgumentParser()
    ap.add_argument('-o', default=None)
    ap.add_argument('--ring', type=int, default=6)
    ap.add_argument('--nt', type=int, default=1)
    ap.add_argument('--wnt', type=int, default=0)
    ap.add_argument('--rot', type=int, default=0)
    ap.add_argument('--kfirst', type=int, default=0)
    ap.add_argument('--kmid', type=int, default=2)
    ap.add_argument('--single', type=int, default=1)
    ap.add_argument('--diag', type=int, default=0)
    ap.add_argument('--dv', type=int, default=46)
    ap.add_argument('--cnt_at', type=int, default=4)
    ap.add_argument('--mlp2_at', type=int, default=6)
    ap.add_argument('--gran_at', type=int, default=3)
    ap.add_argument('--hold_last', type=int, default=1)
    ap.add_argument('--spin', type=lambda x: int(x, 0), default=0x40000)
    return ap.parse_args(argv)

if __name__ == '__main__':
    P = parse()
    txt = gen(P)
    out = P.o or os.path.join(os.path.dirname(os.path.abspath(__file__)), '..', 'cdna_kernels', NAME + '.s')
    open(out, 'w').write(txt)
    print('wrote', out, len(txt), 'bytes')
```

```python
import sys, os, math, struct, argparse
sys.path.insert(0, os.path.dirname(os.path.abspath(__file__)))
from asmlib import Asm

NAME = 'gated_mix__mha_block_cached__mixer_channel_mlp__decode'
def f2u(x):
    return struct.unpack('<I', struct.pack('<f', x))[0]
HEADER = open(os.path.join(os.path.dirname(os.path.abspath(__file__)), '..', 'cdna_kernels', NAME + '.s.ref')).read().split('; Override launch')[0]

QPART, QG, HPART, QB, HB, MX, OBUF = 0, 8192, 16384, 24576, 25088, 25216, 25344
OP = 1040
RED = OBUF + 8 * OP + 64
RED = (RED + 15) // 16 * 16
LDS_BYTES = RED + 1024
PART_BYTES = 256 * 4608
QX = PART_BYTES
OX = QX + 256 * 2048
OXP = 2304
EP = OX + 256 * OXP
WS_BYTES = EP + 128
DIAG = 0x200000 + 0x200000
OOB = 0x80000000

def gen(P):
    a = Asm()
    nt = ' nt'
    w1nt = ' nt' if P.w1nt else ''
    D = P.depth
    vL, vKo, vVo = 1, 2, 3
    MASK = 4; AF = [8, 12]; BQ = 16; SC = 48; SACC = [56, 60]; OA = [64, 68]; PACC = 72
    HF = 76
    T = list(range(96, 108))
    vG, vN, vBB = 108, 109, 110
    TAG = 112
    vB2 = 116
    ML = 120
    vMC = 118
    RB = 128; RN = 32
    XQ = 16; WQ = 20; EV = 32
    W1R = 16 + 0
    XS, GW, XD = 76, 86, 34
    W1R = 48
    B1 = 44
    HACC = 76
    GQ = 64
    WD = 16
    sW, sH, sS, sC0, sKV, sT0, sT1, sT2 = 3, 4, 5, 7, 8, 9, 10, 11
    pX, pK, pV, pWQ, pWO, pW1, pB1, pW2, pB2, pGW, pOUT, pDBG, pWS = 16, 18, 20, 22, 24, 28, 30, 32, 34, 36, 38, 40, 42
    rK, rV, rWQ, rWO, rW1, rW2, rWS, rDBG, rB1, rB2 = 44, 48, 52, 56, 60, 64, 68, 72, 76, 96
    sMU0, sMU1, sRS0, sRS1, sG0, sG1 = 80, 81, 82, 83, 84, 85
    sHI, sC, sBB, sM = 90, 91, 92, 94
    sSPIN = 13; sST = 26; sHG = 6
    sTG0, sTG1 = 86, 87
    def v(n, k=1):
        return 'v%d' % n if k == 1 else 'v[%d:%d]' % (n, n + k - 1)
    def s(n, k=1):
        return 's%d' % n if k == 1 else 's[%d:%d]' % (n, n + k - 1)
    def srd(r, p, nbytes):
        a('s_mov_b32 %s, %s' % (s(r), s(p)))
        a('s_mov_b32 %s, %s' % (s(r + 1), s(p + 1)))
        a('s_mov_b32 %s, 0x%x' % (s(r + 2), nbytes))
        a('s_mov_b32 %s, 0x20000' % s(r + 3))
    def smask(val16):
        w = val16 | (val16 << 16)
        a('s_mov_b32 %s, 0x%x' % (s(sM), w)); a('s_mov_b32 %s, 0x%x' % (s(sM + 1), w))
    DPP = ' row_mask:0xf bank_mask:0xf'
    stampn = [0]
    def stamp():
        if not P.diag:
            return
        n = stampn[0]; stampn[0] += 1
        a('s_memrealtime %s' % s(sST, 2))
        a('s_waitcnt lgkmcnt(0)')
        a('v_writelane_b32 v127, %s, %d' % (s(sST), n))
    def stamp_flush():
        if not P.diag:
            return
        a('s_mov_b64 exec, -1')
        a('s_lshl_b32 s100, s2, 3'); a('s_add_u32 s100, s100, %s' % s(sW)); a('s_lshl_b32 s100, s100, 7')
        a('s_add_u32 s100, s100, 0x%x' % DIAG)
        a('v_lshlrev_b32 v126, 2, %s' % v(vL))
        a('s_mov_b32 exec_hi, 0')
        a('buffer_store_dword v127, v126, %s, s100 offen' % s(rWS, 4))
    def red32(x, t, op):
        for d in ('quad_perm:[1,0,3,2]', 'quad_perm:[2,3,0,1]', 'row_ror:4', 'row_ror:8'):
            a('%s_dpp %s, %s, %s %s%s' % (op, v(x), v(x), v(x), d, DPP))
        a('v_mov_b32 %s, %s' % (v(t), v(x)))
        a('v_permlane16_swap_b32 %s, %s' % (v(x), v(t)))
        a('%s %s, %s, %s' % (op, v(x), v(x), v(t)))
    def redquads64(xs, ts, op):
        for d in ('row_ror:4', 'row_ror:8'):
            for x in xs:
                a('%s_dpp %s, %s, %s %s%s' % (op, v(x), v(x), v(x), d, DPP))
        for sw in ('v_permlane16_swap_b32', 'v_permlane32_swap_b32'):
            for x, t in zip(xs, ts):
                a('v_mov_b32 %s, %s' % (v(t), v(x)))
            for x, t in zip(xs, ts):
                a('%s %s, %s' % (sw, v(x), v(t)))
            for x, t in zip(xs, ts):
                a('%s %s, %s, %s' % (op, v(x), v(x), v(t)))
    def red8(xs, op):
        for d in ('quad_perm:[1,0,3,2]', 'quad_perm:[2,3,0,1]', 'row_half_mirror'):
            for x in xs:
                a('%s_dpp %s, %s, %s %s%s' % (op, v(x), v(x), v(x), d, DPP))
    def delta(dst, src):
        for d in range(4):
            a('v_and_b32 %s, %s, %s' % (v(dst + d), v(src), v(MASK + d)))
    def mfma(d, A, B, c=None):
        a('v_mfma_f32_16x16x32_bf16 %s, %s, %s, %s' % (v(d, 4), v(A, 4), v(B, 4), '0' if c is None else v(d, 4)))
    def oob_unless(dst, src, cmp):
        a(cmp)
        a('v_mov_b32 %s, 0x%x' % (v(T[11]), OOB))
        a('v_cndmask_b32 %s, %s, %s, vcc' % (v(dst), v(T[11]), v(src)))

    ip = [0]
    cp = [0]
    sG = 12
    def issue_one():
        j = ip[0]; ip[0] += 1
        assert j - RN < cp[0]
        n, i = j >> 2, j & 3
        if i == 0:
            g = n & 7
            a('s_add_u32 %s, %s, 0x%x' % (s(sG), s(sKV), ((g >> 2) << 25) + ((g & 3) << 15)))
        a('buffer_load_dwordx4 %s, %s, %s, %s offen offset:%d%s' % (
            v(RB + 4 * (j % RN), 4), v(vKo if j < 32 else vVo), s(rK if j < 32 else rV, 4), s(sG), 1024 * i, nt), tag='L%d' % j)
    def pump(k, depth=None):
        a.wait_vm('L%d' % k)
        while ip[0] < min(64, k + 1 + (depth or D), cp[0] + RN):
            issue_one()

    K1 = NAME + '_kernel'
    a.raw('.amdgcn_target "amdgcn-amd-amdhsa--gfx950"')
    a.raw('.text'); a.raw('.globl ' + K1); a.raw('.p2align 8'); a.raw('.type %s,@function' % K1)
    a.label(K1)
    a('s_cmp_ge_u32 s2, 256'); a('s_cbranch_scc1 L_end')
    a('s_load_dwordx16 s[16:31], s[0:1], 0')
    a('s_load_dwordx8 s[32:39], s[0:1], 64')
    a('s_load_dwordx4 s[40:43], s[0:1], 96')
    a('v_lshrrev_b32 %s, 6, v0' % v(T[0]))
    a('v_and_b32 %s, 63, v0' % v(vL))
    a('v_readfirstlane_b32 %s, %s' % (s(sW), v(T[0])))
    a('s_and_b32 %s, s2, 7' % s(sT0))
    a('s_lshr_b32 %s, s2, 3' % s(sT1))
    a('s_and_b32 %s, %s, 3' % (s(sH), s(sT1)))
    a('s_lshl_b32 %s, %s, 2' % (s(sT2), s(sT0)))
    a('s_add_u32 %s, %s, %s' % (s(sH), s(sH), s(sT2)))
    a('s_lshr_b32 %s, %s, 2' % (s(sS), s(sT1)))
    a('s_mul_i32 %s, %s, 576' % (s(sC0), s(sT0)))
    a('s_mul_i32 %s, %s, 18' % (s(sT2), s(sT1)))
    a('s_add_u32 %s, %s, %s' % (s(sC0), s(sC0), s(sT2)))
    a('s_lshl_b32 %s, %s, 3' % (s(sHG), s(sH)))
    a('s_lshl_b32 %s, %s, 20' % (s(sKV), s(sH)))
    a('s_lshl_b32 %s, %s, 17' % (s(sT2), s(sS))); a('s_add_u32 %s, %s, %s' % (s(sKV), s(sKV), s(sT2)))
    a('s_lshl_b32 %s, %s, 12' % (s(sT2), s(sW))); a('s_add_u32 %s, %s, %s' % (s(sKV), s(sKV), s(sT2)))
    a('v_lshrrev_b32 %s, 4, %s' % (v(vG), v(vL)))
    a('v_and_b32 %s, 15, %s' % (v(vN), v(vL)))
    a('v_bfe_u32 %s, %s, 3, 1' % (v(vBB), v(vL)))
    a('v_lshlrev_b32 %s, 4, %s' % (v(vVo), v(vL)))
    a('v_bfe_u32 %s, %s, 2, 2' % (v(T[0]), v(vL)))
    a('v_lshlrev_b32 %s, 8, %s' % (v(vKo), v(T[0])))
    a('v_lshl_add_u32 %s, %s, 6, %s' % (v(vKo), v(vG), v(vKo)))
    a('v_and_b32 %s, 3, %s' % (v(T[0]), v(vL)))
    a('v_lshl_add_u32 %s, %s, 4, %s' % (v(vKo), v(T[0]), v(vKo)))
    a('s_mul_i32 %s, %s, 72' % (s(sT0), s(sS)))
    a('s_mul_i32 %s, %s, 9' % (s(sT1), s(sW)))
    a('s_add_u32 %s, %s, %s' % (s(sT0), s(sT0), s(sT1)))
    a('v_min_u32 %s, 2, %s' % (v(T[0]), v(vG)))
    a('v_mul_u32_u24 %s, 3, %s' % (v(T[0]), v(T[0])))
    a('v_mul_u32_u24 %s, 0x240, %s' % (v(T[1]), v(vBB)))
    a('v_add3_u32 %s, %s, %s, %s' % (v(T[1]), v(T[1]), v(T[0]), s(sT0)))
    a('v_lshlrev_b32 %s, 1, %s' % (v(T[1]), v(T[1])))
    a('v_lshlrev_b32 %s, 13, %s' % (v(T[2]), v(T[0])))
    a('v_lshl_add_u32 %s, %s, 4, %s' % (v(T[2]), v(vN), v(T[2])))
    oob_unless(T[2], T[2], 'v_cmp_gt_u32 vcc, 48, %s' % v(vL))
    a('s_lshl_b32 %s, %s, 13' % (s(sT0), s(sT0)))
    a('s_lshl_b32 %s, %s, 8' % (s(sT1), s(sH)))
    a('s_add_u32 %s, %s, %s' % (s(sT0), s(sT0), s(sT1)))
    a('s_add_u32 %s, %s, 0x2000' % (s(sT1), s(sT0)))
    a('s_add_u32 %s, %s, 0x4000' % (s(sT2), s(sT0)))
    a('v_mov_b32 %s, 0x%x' % (v(T[3]), EP))
    a('s_waitcnt lgkmcnt(0)')
    srd(rWQ, pWQ, 576 * 8192)
    srd(rK, pK, 1 << 26)
    if P.diag:
        a('v_mov_b32 v127, 0')
    stamp()
    for i, so in enumerate((sT0, sT1, sT2)):
        a('buffer_load_dwordx4 %s, %s, %s, %s offen nt' % (v(WQ + 4 * i, 4), v(T[2]), s(rWQ, 4), s(so)), tag='wq')
    for i in range(3):
        a('global_load_ushort %s, %s, %s offset:%d' % (v(XQ + i), v(T[1]), s(pX, 2), 2 * i), tag='xq')
    a('global_load_dwordx2 %s, %s, %s sc1' % (v(EV, 2), v(T[3]), s(pWS, 2)), tag='ep')
    for _ in range(P.k0):
        issue_one()
    srd(rWS, pWS, (DIAG + 0x40000) if P.diag else WS_BYTES)
    vXd, vXs, vGw = T[4], T[5], T[6]
    a('v_mul_u32_u24 %s, 0x480, %s' % (v(vXd), v(vBB)))
    a('v_mad_u32_u24 %s, %s, 36, %s' % (v(vXd), v(vG), v(vXd)))
    a('s_mul_i32 %s, %s, 144' % (s(sT2), s(sW)))
    a('v_add_u32 %s, %s, %s' % (v(vXd), s(sT2), v(vXd)))
    a('v_and_b32 %s, 31, %s' % (v(vGw), v(vL)))
    a('v_mul_u32_u24 %s, 36, %s' % (v(vGw), v(vGw)))
    a('v_lshrrev_b32 %s, 5, %s' % (v(vXs), v(vL)))
    a('v_mul_u32_u24 %s, 0x480, %s' % (v(vXs), v(vXs)))
    a('v_add_u32 %s, %s, %s' % (v(vXs), v(vXs), v(vGw)))
    for (dst, off, base, tag) in ((XS, vXs, pX, 'xs'), (GW, vGw, pGW, 'gw'), (XD, vXd, pX, 'xd')):
        a('global_load_dwordx4 %s, %s, %s' % (v(dst, 4), v(off), s(base, 2)), tag=tag)
        a('global_load_dwordx4 %s, %s, %s offset:16' % (v(dst + 4, 4), v(off), s(base, 2)), tag=tag)
        a('global_load_dword %s, %s, %s offset:32' % (v(dst + 8), v(off), s(base, 2)), tag=tag)
    a('s_mov_b32 %s, 0xffff0000' % s(sHI))
    a('s_mov_b32 %s, 0x%x' % (s(sC), f2u(math.log2(math.e) / math.sqrt(128.0))))
    a('s_mov_b32 %s, 0xff00ff00' % s(sBB)); a('s_mov_b32 %s, 0xff00ff00' % s(sBB + 1))
    a('v_and_b32 %s, 1, %s' % (v(T[0]), v(vL)))
    a('v_lshlrev_b32 %s, 4, %s' % (v(T[0]), v(T[0])))
    a('v_mov_b32 %s, 0xffff' % v(T[7]))
    a('v_lshlrev_b32 %s, %s, %s' % (v(T[0]), v(T[0]), v(T[7])))
    for d in range(4):
        smask(0x0303 << (2 * d))
        a('v_cndmask_b32 %s, 0, %s, %s' % (v(MASK + d), v(T[0]), s(sM, 2)))
    vDW = T[8]
    a('v_lshrrev_b32 %s, 5, v0' % v(vDW))
    a('v_lshlrev_b32 %s, 9, %s' % (v(vDW), v(vDW)))
    a('v_lshl_add_u32 %s, %s, 5, %s' % (v(vDW), v(vN), v(vDW)))
    a('v_and_b32 %s, 16, %s' % (v(T[0]), v(vL)))
    a('v_add_u32 %s, %s, %s' % (v(vDW), v(vDW), v(T[0])))
    vPO = T[9]
    a('v_lshlrev_b32 %s, 4, v0' % v(vPO))
    oob_unless(vPO, vPO, 'v_cmp_gt_u32 vcc, 128, v0')
    a('v_and_b32 %s, 127, v0' % v(T[10]))
    a('v_lshlrev_b32 %s, 3, %s' % (v(T[10]), v(T[10])))
    a.wait_vm('ep')
    for i in range(3):
        a('v_lshl_or_b32 %s, %s, 16, %s' % (v(XQ + i), v(XQ + i), v(XQ + i)))
        delta(AF[i & 1], XQ + i)
        mfma(PACC, AF[i & 1], WQ + 4 * i, None if i == 0 else 1)
    a('v_add_u32 %s, 1, %s' % (v(TAG + 1), v(EV)))
    a('v_add_u32 %s, 0x9e3779b9, %s' % (v(TAG + 3), v(EV + 1)))
    a('ds_write_b128 %s, %s offset:%d' % (v(vDW), v(PACC, 4), QPART))
    a('v_readfirstlane_b32 %s, %s' % (s(sTG0), v(TAG + 1)))
    a('v_readfirstlane_b32 %s, %s' % (s(sTG1), v(TAG + 3)))
    a('s_add_u32 %s, %s, %s' % (s(sT0), s(sHG), s(sS)))
    a('s_lshl_b32 %s, %s, 11' % (s(sT0), s(sT0)))
    a('s_add_u32 %s, %s, 0x%x' % (s(sT0), s(sT0), QX))
    a('s_waitcnt lgkmcnt(0)')
    a('s_barrier')
    QR = 16
    for w in range(8):
        a('ds_read_b64 %s, %s offset:%d' % (v(QR + 2 * w, 2), v(T[10]), QPART + 1024 * w))
    a('s_waitcnt lgkmcnt(0)')
    for st in (1, 2):
        for w in range(0, 8, 2 * st):
            for r in range(2):
                a('v_add_f32 %s, %s, %s' % (v(QR + 2 * w + r), v(QR + 2 * w + r), v(QR + 2 * (w + st) + r)))
    a('v_add_f32 %s, %s, %s' % (v(TAG), v(QR), v(QR + 8)))
    a('v_add_f32 %s, %s, %s' % (v(TAG + 2), v(QR + 1), v(QR + 9)))
    a('buffer_store_dwordx4 %s, %s, %s, %s offen sc1' % (v(TAG, 4), v(vPO), s(rWS, 4), s(sT0)), tag='qpub')
    stamp()
    srd(rW1, pW1, 576 * 9216)
    vO, vO2 = T[4], T[5]
    a('v_mul_u32_u24 %s, 11, %s' % (v(T[0]), v(vN)))
    a('v_lshrrev_b32 %s, 5, %s' % (v(T[0]), v(T[0])))
    a('v_mul_u32_u24 %s, 3, %s' % (v(T[7]), v(T[0])))
    a('v_sub_u32 %s, %s, %s' % (v(T[7]), v(vN), v(T[7])))
    a('v_mad_u32_u24 %s, %s, 18, %s' % (v(T[0]), v(vG), v(T[0])))
    a('v_mul_u32_u24 %s, 0x2400, %s' % (v(vO), v(T[0])))
    a('v_lshl_add_u32 %s, %s, 4, %s' % (v(vO), v(T[7]), v(vO)))
    oob_unless(vO, vO, 'v_cmp_gt_u32 vcc, 15, %s' % v(vN))
    oob_unless(vO2, vO, 'v_cmp_gt_u32 vcc, 9, %s' % v(vN))
    a('s_mul_i32 %s, %s, %d' % (s(sT0), s(sW), 72 * 9216))
    a('s_lshl_b32 %s, %s, 1' % (s(sT1), s(sC0)))
    a('s_add_u32 %s, %s, %s' % (s(sT0), s(sT0), s(sT1)))
    for u in range(4):
        a('buffer_load_dwordx4 %s, %s, %s, %s offen%s' % (v(W1R + 4 * u, 4), v(vO if u < 3 else vO2), s(rW1, 4), s(sT0), w1nt), tag='w1')
        if u < 3:
            a('s_add_u32 %s, %s, %d' % (s(sT0), s(sT0), 5 * 9216))
    srd(rV, pV, 1 << 26)
    pump(P.p1)
    a('v_lshlrev_b32 %s, 4, v0' % v(vO))
    oob_unless(vO, vO, 'v_cmp_gt_u32 vcc, 288, v0')
    a('s_mul_i32 %s, s2, 4608' % s(sT0))
    for d in range(4):
        a('v_mov_b32 %s, -1' % v(AF[0] + d))
    a('buffer_store_dwordx4 %s, %s, %s, %s offen sc1' % (v(AF[0], 4), v(vO), s(rWS, 4), s(sT0)), tag='clear')
    srd(rB1, pB1, 9216)
    a('v_and_b32 %s, 1, %s' % (v(T[0]), v(vG)))
    a('v_lshlrev_b32 %s, 3, %s' % (v(T[0]), v(T[0])))
    a('v_lshl_add_u32 %s, %s, 4, %s' % (v(vO), v(vN), v(T[0])))
    a('s_lshl_b32 %s, %s, 1' % (s(sT1), s(sC0)))
    a('buffer_load_dwordx2 %s, %s, %s, %s offen' % (v(B1, 2), v(vO), s(rB1, 4), s(sT1)), tag='b1')
    srd(rB2, pB2, 1152)
    a('s_lshl_b32 %s, %s, 8' % (s(sT1), s(sW)))
    a('s_cmp_eq_u32 s2, 0')
    a('s_cselect_b32 %s, %s, 0x%x' % (s(sT1), s(sT1), OOB))
    a('v_add_u32 %s, %s, %s' % (v(vO), s(sT1), v(vO)))
    a('buffer_load_dwordx2 %s, %s, %s, 0 offen' % (v(vB2, 2), v(vO), s(rB2, 4)), tag='b2')
    srd(rWO, pWO, 4096 * 1152)
    srd(rW2, pW2, 4608 * 1152)
    srd(rDBG, pDBG, 256)
    a.wait_vm('gw')
    S1, GD, t0, t1, t2, t3 = T[4], T[5], T[6], T[7], T[0], T[1]
    a('v_mov_b32 %s, 0' % v(S1)); a('v_mov_b32 %s, 0' % v(GD))
    for k in range(9):
        a('v_lshlrev_b32 %s, 16, %s' % (v(t0), v(XS + k)))
        a('v_and_b32 %s, %s, %s' % (v(t1), s(sHI), v(XS + k)))
        a('v_lshlrev_b32 %s, 16, %s' % (v(t2), v(GW + k)))
        a('v_and_b32 %s, %s, %s' % (v(t3), s(sHI), v(GW + k)))
        a('v_add_f32 %s, %s, %s' % (v(S1), v(S1), v(t0)))
        a('v_fmac_f32 %s, %s, %s' % (v(GD), v(t0), v(t2)))
        a('v_add_f32 %s, %s, %s' % (v(S1), v(S1), v(t1)))
        a('v_fmac_f32 %s, %s, %s' % (v(GD), v(t1), v(t3)))
    red32(S1, t0, 'v_add_f32')
    red32(GD, t0, 'v_add_f32')
    pump(P.p2)
    a('v_mul_f32 %s, 0x%x, %s' % (v(S1), f2u(1.0 / 576), v(S1)))
    S2 = t3
    a('v_mov_b32 %s, 0' % v(S2))
    for k in range(9):
        a('v_lshlrev_b32 %s, 16, %s' % (v(t0), v(XS + k)))
        a('v_and_b32 %s, %s, %s' % (v(t1), s(sHI), v(XS + k)))
        a('v_sub_f32 %s, %s, %s' % (v(t0), v(t0), v(S1)))
        a('v_sub_f32 %s, %s, %s' % (v(t1), v(t1), v(S1)))
        a('v_fmac_f32 %s, %s, %s' % (v(S2), v(t0), v(t0)))
        a('v_fmac_f32 %s, %s, %s' % (v(S2), v(t1), v(t1)))
    red32(S2, t0, 'v_add_f32')
    a('v_mov_b32 %s, 0x%x' % (v(t0), f2u(1e-5)))
    a('v_fmac_f32 %s, 0x%x, %s' % (v(t0), f2u(1.0 / 576), v(S2)))
    a('v_rsq_f32 %s, %s' % (v(S2), v(t0)))
    a('v_mul_f32 %s, 0x%x, %s' % (v(GD), f2u(-math.log2(math.e)), v(GD)))
    a('v_exp_f32 %s, %s' % (v(GD), v(GD)))
    a('v_add_f32 %s, 1.0, %s' % (v(GD), v(GD)))
    a('v_rcp_f32 %s, %s' % (v(GD), v(GD)))
    a('v_readlane_b32 %s, %s, 0' % (s(sMU0), v(S1))); a('v_readlane_b32 %s, %s, 32' % (s(sMU1), v(S1)))
    a('v_readlane_b32 %s, %s, 0' % (s(sRS0), v(S2))); a('v_readlane_b32 %s, %s, 32' % (s(sRS1), v(S2)))
    a('v_readlane_b32 %s, %s, 0' % (s(sG0), v(GD))); a('v_readlane_b32 %s, %s, 32' % (s(sG1), v(GD)))
    MU, RS = T[4], T[5]
    a('v_mov_b32 %s, %s' % (v(MU), s(sMU0))); a('v_mov_b32 %s, %s' % (v(t0), s(sMU1)))
    a('v_cndmask_b32 %s, %s, %s, %s' % (v(MU), v(MU), v(t0), s(sBB, 2)))
    a('v_mov_b32 %s, %s' % (v(RS), s(sRS0))); a('v_mov_b32 %s, %s' % (v(t0), s(sRS1)))
    a('v_cndmask_b32 %s, %s, %s, %s' % (v(RS), v(RS), v(t0), s(sBB, 2)))
    a.wait_vm('L%d' % P.p3)
    sQG = 88
    a('s_add_u32 %s, %s, %s' % (s(sQG), s(sHG), s(sW)))
    a('s_lshl_b32 %s, %s, 11' % (s(sQG), s(sQG)))
    a('s_add_u32 %s, %s, 0x%x' % (s(sQG), s(sQG), QX))
    def q_gather(track):
        for k in range(2):
            txt = 'buffer_load_dwordx4 %s, %s, %s, %s offen offset:%d sc1' % (v(GQ + 4 * k, 4), v(vVo), s(rWS, 4), s(sQG), 1024 * k)
            if track:
                a(txt, tag='qg')
            else:
                a.lines.append('    ' + txt)
    q_gather(True)
    stamp()
    pump(P.p3)
    a.wait_vm('w1')
    for i in range(18):
        u, t = divmod(i, 5)
        A = AF[i & 1]
        if i & 1:
            a('v_and_b32 %s, %s, %s' % (v(t0), s(sHI), v(XD + i // 2)))
        else:
            a('v_lshlrev_b32 %s, 16, %s' % (v(t0), v(XD + i // 2)))
        a('v_sub_f32 %s, %s, %s' % (v(t0), v(t0), v(MU)))
        a('v_mul_f32 %s, %s, %s' % (v(t0), v(t0), v(RS)))
        a('v_cvt_pk_bf16_f32 %s, %s, %s' % (v(t0), v(t0), v(t0)))
        delta(A, t0)
        mfma(HACC + 4 * t, A, W1R + 4 * u, None if u == 0 else 1)
    a('v_lshlrev_b32 %s, 4, v0' % v(t1))
    for t in range(5):
        w = (0x7 << (3 * t)); w |= w << 16
        a('s_mov_b32 exec_lo, 0x%x' % w); a('s_mov_b32 exec_hi, 0x%x' % w)
        a('ds_write_b128 %s, %s offset:%d' % (v(t1), v(HACC + 4 * t, 4), HPART))
    a('s_mov_b64 exec, -1')
    def tagcheck(regs):
        first = True
        for r in regs:
            a('v_xor_b32 %s, %s, %s' % (v(T[2]), s(sTG0), v(r + 1)))
            a('v_xor_b32 %s, %s, %s' % (v(T[3]), s(sTG1), v(r + 3)))
            if first:
                a('v_or_b32 %s, %s, %s' % (v(T[0]), v(T[2]), v(T[3])))
            else:
                a('v_or3_b32 %s, %s, %s, %s' % (v(T[0]), v(T[0]), v(T[2]), v(T[3])))
            first = False
        a('v_cmp_ne_u32 vcc, 0, %s' % v(T[0]))
    def spin(name, regs, reload):
        tagcheck(regs)
        a('s_mov_b32 %s, 0x%x' % (s(sSPIN), P.spin))
        a('s_cbranch_vccz L_%s_ok' % name)
        a.label('L_%s_spin' % name)
        reload(False)
        a.lines.append('    s_waitcnt vmcnt(0)')
        tagcheck(regs)
        a('s_sub_u32 %s, %s, 1' % (s(sSPIN), s(sSPIN)))
        a('s_cbranch_scc1 L_%s_ok' % name)
        a('s_cbranch_vccnz L_%s_spin' % name)
        a.label('L_%s_ok' % name)
    a.wait_vm('qg')
    done = max([int(t_[1:]) for t_ in ['L-1'] ] + [j for j in range(ip[0]) if 'L%d' % j not in a.vm])
    pump(done, P.dpro)
    spin('q', [GQ, GQ + 4], q_gather)
    stamp()
    a('v_lshlrev_b32 %s, 3, %s' % (v(T[0]), v(vL)))
    a('s_lshl_b32 %s, %s, 10' % (s(sT0), s(sW)))
    a('v_add_u32 %s, %s, %s' % (v(T[0]), s(sT0), v(T[0])))
    a('v_add_u32 %s, %d, %s' % (v(T[0]), QG, v(T[0])))
    a('ds_write2_b32 %s, %s, %s offset0:0 offset1:1' % (v(T[0]), v(GQ), v(GQ + 2)))
    a('ds_write2_b32 %s, %s, %s offset0:128 offset1:129' % (v(T[0]), v(GQ + 4), v(GQ + 6)))
    a('s_waitcnt lgkmcnt(0)')
    a('s_barrier')
    a('v_mov_b32 %s, 0' % v(T[0]))
    oob_unless(T[0], T[0], 'v_cmp_eq_u32 vcc, 0, v0')
    a('v_mov_b32 %s, 1' % v(T[4]))
    a('buffer_atomic_add %s, %s, %s, 0 offen sc1' % (v(T[4]), v(T[0]), s(rDBG, 4)), tag='cnt')
    a('s_cmp_gt_u32 %s, 4' % s(sW)); a('s_cbranch_scc1 L_bar2')
    a('s_cmp_eq_u32 %s, 4' % s(sW)); a('s_cbranch_scc1 L_hfin')
    a('v_lshlrev_b32 %s, 2, v0' % v(T[0]))
    for w in range(8):
        a('ds_read_b32 %s, %s offset:%d' % (v(BQ + w), v(T[0]), QG + 1024 * w))
    a('s_waitcnt lgkmcnt(0)')
    for st in (1, 2, 4):
        for w in range(0, 8, 2 * st):
            a('v_add_f32 %s, %s, %s' % (v(BQ + w), v(BQ + w), v(BQ + w + st)))
    a('v_cvt_pk_bf16_f32 %s, %s, %s' % (v(BQ), v(BQ), v(BQ)))
    a('v_lshlrev_b32 %s, 1, v0' % v(T[0]))
    a('ds_write_b16 %s, %s offset:%d' % (v(T[0]), v(BQ), QB))
    a('s_branch L_bar2')
    a.label('L_hfin'); a.hist = []
    hregs = [48 + 4 * k for k in range(8)]
    for w in range(8):
        a('ds_read_b128 %s, %s offset:%d' % (v(hregs[w], 4), v(vVo), HPART + 1024 * w))
    a('s_waitcnt lgkmcnt(0)')
    for st in (1, 2, 4):
        for w in range(0, 8, 2 * st):
            for r in range(4):
                a('v_add_f32 %s, %s, %s' % (v(hregs[w] + r), v(hregs[w] + r), v(hregs[w + st] + r)))
    H = hregs[0]; HA = hregs[1]
    for r in range(4):
        a('v_add_f32_dpp %s, %s, %s row_shl:3%s bound_ctrl:0' % (v(HA + r), v(H + r), v(H + r), DPP))
    for r in range(4):
        a('v_add_f32_dpp %s, %s, %s row_shl:6%s bound_ctrl:0' % (v(HA + r), v(HA + r), v(HA + r), DPP))
    for r in range(4):
        a('v_add_f32_dpp %s, %s, %s row_shl:12%s bound_ctrl:0' % (v(HA + r), v(H + r), v(HA + r), DPP))
    assert 'b1' not in a.vm
    for r in range(4):
        if r & 1:
            a('v_and_b32 %s, %s, %s' % (v(H + r), s(sHI), v(B1 + r // 2)))
        else:
            a('v_lshlrev_b32 %s, 16, %s' % (v(H + r), v(B1 + r // 2)))
        a('v_add_f32 %s, %s, %s' % (v(HA + r), v(HA + r), v(H + r)))
    a('v_mov_b32 %s, %s' % (v(T[0]), s(sG0))); a('v_mov_b32 %s, %s' % (v(T[4]), s(sG1)))
    a('v_cmp_lt_u32 vcc, 31, %s' % v(vL))
    a('v_cndmask_b32 %s, %s, %s, vcc' % (v(T[0]), v(T[0]), v(T[4])))
    a('v_sub_f32 %s, 1.0, %s' % (v(T[0]), v(T[0])))
    kz = -2.0 * math.sqrt(2.0 / math.pi) * math.log2(math.e)
    steps = [
        lambda x, z: a('v_mul_f32 %s, %s, %s' % (v(z), v(x), v(x))),
        lambda x, z: a('v_mul_f32 %s, 0x%x, %s' % (v(z), f2u(0.044715), v(z))),
        lambda x, z: a('v_add_f32 %s, 1.0, %s' % (v(z), v(z))),
        lambda x, z: a('v_mul_f32 %s, %s, %s' % (v(z), v(z), v(x))),
        lambda x, z: a('v_mul_f32 %s, 0x%x, %s' % (v(z), f2u(kz), v(z))),
        lambda x, z: a('v_exp_f32 %s, %s' % (v(z), v(z))),
        lambda x, z: a('v_add_f32 %s, 1.0, %s' % (v(z), v(z))),
        lambda x, z: a('v_rcp_f32 %s, %s' % (v(z), v(z))),
        lambda x, z: a('v_mul_f32 %s, %s, %s' % (v(x), v(x), v(T[0]))),
        lambda x, z: a('v_mul_f32 %s, %s, %s' % (v(x), v(x), v(z))),
    ]
    for st in steps:
        for r in range(4):
            st(HA + r, H + r)
    a('v_cvt_pk_bf16_f32 %s, %s, %s' % (v(H), v(HA), v(HA + 1)))
    a('v_cvt_pk_bf16_f32 %s, %s, %s' % (v(H + 1), v(HA + 2), v(HA + 3)))
    a('v_lshrrev_b32 %s, 5, %s' % (v(T[0]), v(vL)))
    a('v_mul_u32_u24 %s, 48, %s' % (v(T[0]), v(T[0])))
    a('v_lshl_add_u32 %s, %s, 4, %s' % (v(T[0]), v(vN), v(T[0])))
    a('v_and_b32 %s, 1, %s' % (v(T[4]), v(vG)))
    a('v_lshl_add_u32 %s, %s, 3, %s' % (v(T[0]), v(T[4]), v(T[0])))
    a('s_mov_b32 exec_lo, 0x00070007'); a('s_mov_b32 exec_hi, 0x00070007')
    a('ds_write_b64 %s, %s offset:%d' % (v(T[0]), v(H, 2), HB))
    a('s_mov_b64 exec, -1')
    a.label('L_bar2'); a.hist = []
    a('s_waitcnt lgkmcnt(0)')
    a('s_barrier')
    a('v_and_b32 %s, 3, %s' % (v(T[0]), v(vL)))
    a('v_lshl_add_u32 %s, %s, 2, %s' % (v(T[0]), v(vG), v(T[0])))
    a('v_lshlrev_b32 %s, 4, %s' % (v(T[0]), v(T[0])))
    a('ds_read_b128 %s, %s offset:%d' % (v(AF[0], 4), v(T[0]), QB))
    a('ds_read_b128 %s, %s offset:%d' % (v(AF[1], 4), v(T[0]), QB + 256))
    a('v_mul_u32_u24 %s, 48, %s' % (v(T[0]), v(vBB)))
    a('v_mad_u32_u24 %s, %s, 10, %s' % (v(T[0]), v(vG), v(T[0])))
    for i in range(5):
        a('ds_read_u16 %s, %s offset:%d' % (v(T[1 + i]), v(T[0]), HB + 2 * i))
    a('s_waitcnt lgkmcnt(5)')
    for i in range(4):
        smask(0xf << (4 * i))
        for b in range(2):
            for d in range(4):
                a('v_cndmask_b32 %s, 0, %s, %s' % (v(BQ + 16 * b + 4 * i + d), v(AF[b] + d), s(sM, 2)))
    stamp()
    def late_prep():
        a('s_waitcnt lgkmcnt(0)')
        a('v_cmp_gt_u32 vcc, 48, %s' % v(vL))
        for i in range(5):
            if i >= 3:
                a('v_cndmask_b32 %s, 0, %s, vcc' % (v(T[1 + i]), v(T[1 + i])))
            a('v_lshl_or_b32 %s, %s, 16, %s' % (v(T[1 + i]), v(T[1 + i]), v(T[1 + i])))
            delta(HF + 4 * i, T[1 + i])
        assert 'b2' not in a.vm
        a('v_mov_b32 %s, %s' % (v(T[0]), s(sG0))); a('v_mov_b32 %s, %s' % (v(T[1]), s(sG1)))
        a('v_cmp_lt_u32 vcc, 31, %s' % v(vL))
        a('v_cndmask_b32 %s, %s, %s, vcc' % (v(T[0]), v(T[0]), v(T[1])))
        a('v_sub_f32 %s, 1.0, %s' % (v(T[0]), v(T[0])))
        for r in range(4):
            if r & 1:
                a('v_and_b32 %s, %s, %s' % (v(PACC + r), s(sHI), v(vB2 + r // 2)))
            else:
                a('v_lshlrev_b32 %s, 16, %s' % (v(PACC + r), v(vB2 + r // 2)))
            a('v_mul_f32 %s, %s, %s' % (v(PACC + r), v(PACC + r), v(T[0])))
    def score(n):
        acc = SACC[n & 1]
        a('v_mov_b32_dpp %s, %s quad_perm:[0,0,0,0]%s' % (v(SC + n), v(acc), DPP))
        for c in range(1, 4):
            a('v_add_f32_dpp %s, %s, %s quad_perm:[%d,%d,%d,%d]%s' % (v(SC + n), v(acc + c), v(SC + n), c, c, c, c, DPP))
    B = P.batch
    def step(j, depth=None):
        a.wait_vm('L%d' % j)
    def refill(j, depth=None):
        cp[0] = j + 1
        if (j + 1) % B == 0:
            while ip[0] < min(64, j + 1 + (depth or D)):
                issue_one()
    vCNT = 124
    for n in range(8):
        for i in range(4):
            j = 4 * n + i
            step(j)
            mfma(SACC[n & 1], RB + 4 * (j % RN), BQ + 16 * (n >> 2) + 4 * i, None if i == 0 else 1)
            refill(j, P.dmid if j == 31 else None)
        if n > 0:
            score(n - 1)
        if n == P.prep_at:
            late_prep()
    score(7)
    stamp()
    for b in range(2):
        a('v_max3_f32 %s, %s, %s, %s' % (v(vMC + b), v(SC + 4 * b), v(SC + 4 * b + 1), v(SC + 4 * b + 2)))
        a('v_max_f32 %s, %s, %s' % (v(vMC + b), v(vMC + b), v(SC + 4 * b + 3)))
    redquads64([vMC, vMC + 1], [T[0], T[1]], 'v_max_f32')
    a('s_lshl_b32 %s, %s, 3' % (s(sT0), s(sW)))
    a('v_mov_b32 %s, %s' % (v(T[0]), s(sT0)))
    a('ds_write_b64 %s, %s offset:%d' % (v(T[0]), v(vMC, 2), MX))
    a('v_and_b32 %s, 7, %s' % (v(T[1]), v(vL)))
    a('v_lshlrev_b32 %s, 3, %s' % (v(T[1]), v(T[1])))
    a('v_mov_b32 %s, 0' % v(T[2]))
    a('buffer_load_dword %s, %s, %s, 0 offen sc1' % (v(vCNT), v(T[2]), s(rDBG, 4)), tag='cntld')
    a('s_waitcnt lgkmcnt(0)')
    a('s_barrier')
    a('ds_read_b64 %s, %s offset:%d' % (v(vMC, 2), v(T[1]), MX))
    a('s_waitcnt lgkmcnt(0)')
    red8([vMC, vMC + 1], 'v_max_f32')
    for b in range(2):
        a('v_mul_f32 %s, %s, %s' % (v(vMC + b), s(sC), v(vMC + b)))
    for n in range(8):
        a('v_fma_f32 %s, %s, %s, -%s' % (v(SC + n), v(SC + n), s(sC), v(vMC + (n >> 2))))
    for n in range(8):
        a('v_exp_f32 %s, %s' % (v(SC + n), v(SC + n)))
    for b in range(2):
        L_ = ML + 2 * b + 1
        a('v_add_f32 %s, %s, %s' % (v(L_), v(SC + 4 * b), v(SC + 4 * b + 1)))
        a('v_add_f32 %s, %s, %s' % (v(L_), v(L_), v(SC + 4 * b + 2)))
        a('v_add_f32 %s, %s, %s' % (v(L_), v(L_), v(SC + 4 * b + 3)))
    for n in range(8):
        a('v_cvt_pk_bf16_f32 %s, %s, %s' % (v(SC + n), v(SC + n), v(SC + n)))
    vOW, vOR, vOP, vXA, vXM, vYS, vW2o, vW2o2, vWoo = 40, 41, 42, 43, 44, 45, 46, 47, 125
    sOP, sOG, sW2, sWO, sYS = 88, 89, 100, 101, 15
    def tail_prep():
        redquads64([ML + 1, ML + 3], [T[0], T[1]], 'v_add_f32')
        a('s_cmp_eq_u32 %s, 0' % s(sW))
        a('s_cselect_b32 %s, -1, 0' % s(sT0))
        for b in range(2):
            a('v_and_b32 %s, %s, %s' % (v(ML + 2 * b), s(sT0), v(vMC + b)))
        a('s_mul_i32 %s, %s, %d' % (s(sT0), s(sW), OP))
        a('v_mov_b32 %s, %s' % (v(T[0]), s(sT0)))
        a('ds_write_b128 %s, %s offset:%d' % (v(T[0]), v(ML, 4), OBUF + 1024))
        a('v_lshrrev_b32 %s, 5, %s' % (v(T[1]), v(vL)))
        a('v_lshlrev_b32 %s, 5, %s' % (v(T[2]), v(vN)))
        a('v_and_b32 %s, 16, %s' % (v(T[3]), v(vL)))
        a('v_add_u32 %s, %s, %s' % (v(T[2]), v(T[2]), v(T[3])))
        a('v_lshl_add_u32 %s, %s, 9, %s' % (v(vOW), v(T[1]), v(T[2])))
        a('v_add_u32 %s, %s, %s' % (v(vOW), s(sT0), v(vOW)))
        a('v_mul_u32_u24 %s, 0x900, %s' % (v(T[1]), v(T[1])))
        a('v_add_u32 %s, %s, %s' % (v(vYS), v(T[1]), v(T[2])))
        a('s_cmp_eq_u32 %s, 4' % s(sW))
        a('s_cselect_b32 %s, 8, 16' % s(sT1))
        a('s_cmp_gt_u32 %s, 4' % s(sW))
        a('s_cselect_b32 %s, 0, %s' % (s(sT1), s(sT1)))
        oob_unless(vYS, vYS, 'v_cmp_gt_u32 vcc, %s, %s' % (s(sT1), v(vN)))
        a('v_mul_u32_u24 %s, 0x1200, %s' % (v(T[1]), v(vG)))
        a('v_lshl_add_u32 %s, %s, 4, %s' % (v(T[1]), v(vN), v(T[1])))
        a('v_cndmask_b32 %s, %s, %s, vcc' % (v(vWoo), v(T[11]), v(T[1])))
        a('v_mul_u32_u24 %s, 0x1680, %s' % (v(T[1]), v(vG)))
        a('v_lshl_add_u32 %s, %s, 4, %s' % (v(T[1]), v(vN), v(T[1])))
        a('v_cndmask_b32 %s, %s, %s, vcc' % (v(vW2o), v(T[11]), v(T[1])))
        oob_unless(vW2o2, vW2o, 'v_cmp_gt_u32 vcc, 48, %s' % v(vL))
        a('s_lshl_b32 %s, %s, 8' % (s(sT1), s(sW)))
        a('s_mul_i32 %s, %s, 0x480' % (s(sW2), s(sC0)))
        a('s_add_u32 %s, %s, %s' % (s(sW2), s(sW2), s(sT1)))
        a('s_add_u32 %s, %s, %s' % (s(sWO), s(sHG), s(sS)))
        a('s_mul_i32 %s, %s, %d' % (s(sWO), s(sWO), 16 * 1152))
        a('s_add_u32 %s, %s, %s' % (s(sWO), s(sWO), s(sT1)))
        a('s_mul_i32 %s, s2, 4608' % s(sYS))
        a('s_lshl_b32 %s, %s, 9' % (s(sT1), s(sW)))
        a('s_add_u32 %s, %s, %s' % (s(sYS), s(sYS), s(sT1)))
        a('v_min_u32 %s, 129, v0' % v(vOR))
        a('v_lshlrev_b32 %s, 3, %s' % (v(vOR), v(vOR)))
        a('v_lshlrev_b32 %s, 4, v0' % v(vOP))
        oob_unless(vOP, vOP, 'v_cmp_gt_u32 vcc, 130, v0')
        a('s_add_u32 %s, %s, %s' % (s(sOP), s(sHG), s(sS)))
        a('s_mul_i32 %s, %s, %d' % (s(sOP), s(sOP), OXP))
        a('s_add_u32 %s, %s, 0x%x' % (s(sOP), s(sOP), OX))
        a('s_mul_i32 %s, %s, %d' % (s(sOG), s(sHG), OXP))
        a('s_add_u32 %s, %s, 0x%x' % (s(sOG), s(sOG), OX))
        a('v_and_b32 %s, 7, %s' % (v(T[1]), v(vL)))
        a('v_mul_u32_u24 %s, 0x%x, %s' % (v(T[1]), OXP, v(T[1])))
        a('v_lshl_add_u32 %s, %s, 4, %s' % (v(vXM), v(vBB), v(T[1])))
        a('v_lshl_add_u32 %s, %s, 10, %s' % (v(vXA), v(vBB), v(T[1])))
        a('v_lshl_add_u32 %s, %s, 5, %s' % (v(vXA), v(vG), v(vXA)))
        a('s_lshl_b32 %s, %s, 7' % (s(sT1), s(sS)))
        a('v_add_u32 %s, %s, %s' % (v(vXA), s(sT1), v(vXA)))
    def check_counter():
        a.wait_vm('cntld')
        a('v_readfirstlane_b32 %s, %s' % (s(sT0), v(vCNT)))
        a('s_cmp_ge_u32 %s, 256' % s(sT0))
        a('s_cbranch_scc1 L_cnt_ok')
        a('s_mov_b32 %s, 0x%x' % (s(sSPIN), P.spin))
        a.label('L_cnt_spin')
        a('v_mov_b32 %s, 0' % v(T[0]))
        a.lines.append('    buffer_load_dword %s, %s, %s, 0 offen sc1' % (v(vCNT), v(T[0]), s(rDBG, 4)))
        a.lines.append('    s_waitcnt vmcnt(0)')
        a('v_readfirstlane_b32 %s, %s' % (s(sT0), v(vCNT)))
        a('s_sub_u32 %s, %s, 1' % (s(sSPIN), s(sSPIN)))
        a('s_cbranch_scc1 L_cnt_ok')
        a('s_cmp_lt_u32 %s, 256' % s(sT0))
        a('s_cbranch_scc1 L_cnt_spin')
        a.label('L_cnt_ok')
    WD = RB
    def deferred():
        for i in range(5):
            so = 1152 * i
            if i < 3:
                a('buffer_load_dwordx4 %s, %s, %s, %s offen offset:%d nt' % (v(WD + 4 * i, 4), v(vW2o), s(rW2, 4), s(sW2), so), tag='w2')
            else:
                if i == 3:
                    a('s_add_u32 %s, %s, %d' % (s(sW2), s(sW2), 3 * 1152))
                a('buffer_load_dwordx4 %s, %s, %s, %s offen offset:%d nt' % (v(WD + 4 * i, 4), v(vW2o2), s(rW2, 4), s(sW2), so - 3 * 1152), tag='w2')
        for i in range(4):
            a('buffer_load_dwordx4 %s, %s, %s, %s offen offset:%d nt' % (v(WD + 20 + 4 * i, 4), v(vWoo), s(rWO, 4), s(sWO), 1152 * i), tag='wo')
    did = False
    for n in range(8, 16):
        for r in range(4):
            j = 4 * n + r
            A = AF[r & 1]
            for d in range(4):
                a('v_and_b32_dpp %s, %s, %s row_newbcast:%d%s' % (v(A + d), v(SC + n - 8), v(MASK + d), 4 * r, DPP))
            step(j)
            mfma(OA[(n - 8) >> 2], A, RB + 4 * (j % RN), None if (n & 3) == 0 and r == 0 else 1)
            refill(j)
            if j == P.defer_at:
                assert j > 44
                deferred(); did = True
        if n == 8:
            tail_prep()
        if n == 11:
            check_counter()
    assert did
    stamp()
    a('s_mov_b32 %s, 0' % s(sM)); a('s_mov_b32 %s, -1' % s(sM + 1))
    for r in range(4):
        a('v_cndmask_b32 %s, %s, %s, %s' % (v(OA[0] + r), v(OA[0] + r), v(OA[1] + r), s(sM, 2)))
    a('ds_write_b128 %s, %s offset:%d' % (v(vOW), v(OA[0], 4), OBUF))
    a('s_waitcnt lgkmcnt(0)')
    a('s_barrier')
    a('s_cmp_gt_u32 %s, 2' % s(sW)); a('s_cbranch_scc1 L_pubbed')
    for w in range(8):
        a('ds_read_b64 %s, %s offset:%d' % (v(QR + 2 * w, 2), v(vOR), OBUF + OP * w))
    a('s_waitcnt lgkmcnt(0)')
    for st in (1, 2):
        for w in range(0, 8, 2 * st):
            for r in range(2):
                a('v_add_f32 %s, %s, %s' % (v(QR + 2 * w + r), v(QR + 2 * w + r), v(QR + 2 * (w + st) + r)))
    a('v_add_f32 %s, %s, %s' % (v(TAG), v(QR), v(QR + 8)))
    a('v_add_f32 %s, %s, %s' % (v(TAG + 2), v(QR + 1), v(QR + 9)))
    a.lines.append('    buffer_store_dwordx4 %s, %s, %s, %s offen sc1' % (v(TAG, 4), v(vOP), s(rWS, 4), s(sOP)))
    a.label('L_pubbed'); a.hist = []
    stamp()
    a('s_cmp_gt_u32 %s, 4' % s(sW)); a('s_cbranch_scc1 L_stored')
    XG = 48
    def o_gather(track):
        for txt in ('buffer_load_dwordx4 %s, %s, %s, %s offen sc1' % (v(XG, 4), v(vXA), s(rWS, 4), s(sOG)),
                    'buffer_load_dwordx4 %s, %s, %s, %s offen offset:16 sc1' % (v(XG + 4, 4), v(vXA), s(rWS, 4), s(sOG)),
                    'buffer_load_dwordx4 %s, %s, %s, %s offen offset:2048 sc1' % (v(XG + 8, 4), v(vXM), s(rWS, 4), s(sOG))):
            a.lines.append('    ' + txt)
    o_gather(False)
    a('s_waitcnt vmcnt(3)')
    for i in range(5):
        mfma(PACC, HF + 4 * i, WD + 4 * i, 1)
    a('v_mov_b32 %s, %s' % (v(T[6]), s(sG0))); a('v_mov_b32 %s, %s' % (v(T[5]), s(sG1)))
    a('v_cndmask_b32 %s, %s, %s, %s' % (v(T[6]), v(T[6]), v(T[5]), s(sBB, 2)))
    a.wait_vm0()
    spin('o', [XG, XG + 4, XG + 8], o_gather)
    stamp()
    MM = T[4]
    a('v_mov_b32 %s, %s' % (v(MM), v(XG + 8)))
    red8([MM], 'v_max_f32')
    a('v_sub_f32 %s, %s, %s' % (v(MM), v(XG + 8), v(MM)))
    a('v_exp_f32 %s, %s' % (v(MM), v(MM)))
    U = [XG, XG + 2, XG + 4, XG + 6]
    for x in U + [XG + 10]:
        a('v_mul_f32 %s, %s, %s' % (v(x), v(x), v(MM)))
    red8([XG + 10] + U, 'v_add_f32')
    a('v_rcp_f32 %s, %s' % (v(MM), v(XG + 10)))
    a('v_mul_f32 %s, %s, %s' % (v(MM), v(MM), v(T[6])))
    AQ = 16
    for i in range(4):
        a('v_mul_f32 %s, %s, %s' % (v(U[i]), v(U[i]), v(MM)))
    for i in range(4):
        a('v_cvt_pk_bf16_f32 %s, %s, %s' % (v(U[i]), v(U[i]), v(U[i])))
    for i in range(4):
        delta(AQ + 4 * i, U[i])
    for i in range(4):
        mfma(PACC, AQ + 4 * i, WD + 20 + 4 * i, 1)
    for r in range(4):
        a('v_min_u32 %s, -2, %s' % (v(PACC + r), v(PACC + r)))
    a('buffer_store_dwordx4 %s, %s, %s, %s offen sc1' % (v(PACC, 4), v(vYS), s(rWS, 4), s(sYS)))
    a.label('L_stored'); a.hist = []
    stamp()
    a('s_cmp_ge_u32 s2, 144'); a('s_cbranch_scc1 L_fin')
    if P.fbar:
        a('s_barrier')
    R, vo, t_ = 8, 12, 13
    a('v_lshrrev_b32 %s, 1, v0' % v(vo))
    a('v_mul_u32_u24 %s, 0x1200, %s' % (v(vo), v(vo)))
    a('v_and_b32 %s, 1, v0' % v(t_))
    a('v_lshl_add_u32 %s, %s, 4, %s' % (v(vo), v(t_), v(vo)))
    a('s_lshl_b32 %s, s2, 5' % s(sT0))
    a('s_mov_b32 %s, 0x%x' % (s(sSPIN), P.spin))
    a.label('L_poll')
    a('buffer_load_dwordx4 %s, %s, %s, %s offen sc1' % (v(R, 4), v(vo), s(rWS, 4), s(sT0)))
    a.wait_vm0()
    a('v_max3_u32 %s, %s, %s, %s' % (v(t_), v(R), v(R + 1), v(R + 2)))
    a('v_max_u32 %s, %s, %s' % (v(t_), v(t_), v(R + 3)))
    a('v_cmp_eq_u32 vcc, -1, %s' % v(t_))
    a('s_sub_u32 %s, %s, 1' % (s(sSPIN), s(sSPIN)))
    a('s_cbranch_scc1 L_poll_ok')
    a('s_cbranch_vccnz L_poll')
    a.label('L_poll_ok')
    for d in ('quad_perm:[2,3,0,1]', 'row_ror:4', 'row_ror:8'):
        for r in range(4):
            a('v_add_f32_dpp %s, %s, %s %s%s' % (v(R + r), v(R + r), v(R + r), d, DPP))
    a('v_and_b32 %s, 1, v0' % v(t_))
    a('v_lshlrev_b32 %s, 9, %s' % (v(t_), v(t_)))
    a('v_lshrrev_b32 %s, 4, v0' % v(vo))
    a('v_lshl_add_u32 %s, %s, 2, %s' % (v(t_), v(vo), v(t_)))
    a('s_mov_b32 exec_lo, 0x00030003'); a('s_mov_b32 exec_hi, 0x00030003')
    for r in range(4):
        a('ds_write_b32 %s, %s offset:%d' % (v(t_), v(R + r), RED + 128 * r))
    a('s_mov_b64 exec, -1')
    a('s_waitcnt lgkmcnt(0)')
    a('s_barrier')
    a('s_cmp_lg_u32 %s, 0' % s(sW)); a('s_cbranch_scc1 L_fin')
    a('v_lshlrev_b32 %s, 4, v0' % v(t_))
    a('ds_read_b128 %s, %s offset:%d' % (v(R, 4), v(t_), RED))
    a('v_lshrrev_b32 %s, 3, v0' % v(vo))
    a('v_lshlrev_b32 %s, 1, %s' % (v(vo), v(vo)))
    a('s_lshl_b32 %s, s2, 4' % s(sT0))
    a('v_add_u32 %s, %s, %s' % (v(vo), s(sT0), v(vo)))
    a('s_waitcnt lgkmcnt(0)')
    a('v_add_f32 %s, %s, %s' % (v(R), v(R), v(R + 1)))
    a('v_add_f32 %s, %s, %s' % (v(R + 2), v(R + 2), v(R + 3)))
    a('v_add_f32 %s, %s, %s' % (v(R), v(R), v(R + 2)))
    red8([R], 'v_add_f32')
    a('v_cvt_pk_bf16_f32 %s, %s, %s' % (v(R), v(R), v(R)))
    a('s_mov_b32 exec_lo, 0x01010101'); a('s_mov_b32 exec_hi, 0x01010101')
    a('global_store_short %s, %s, %s' % (v(vo), v(R), s(pOUT, 2)))
    a('s_cmp_lg_u32 s2, 0'); a('s_cbranch_scc1 L_fin')
    a('s_mov_b64 exec, 1')
    a('v_mov_b32 v14, %s' % s(sTG0)); a('v_mov_b32 v15, %s' % s(sTG1))
    a('v_mov_b32 v12, 0x%x' % EP)
    a('global_store_dwordx2 v12, v[14:15], %s sc1' % s(pWS, 2))
    a.label('L_fin'); a.hist = []
    stamp()
    stamp_flush()
    a.label('L_end')
    a('s_endpgm')
    a.raw('.section .rodata,"a"')
    a.raw('.p2align 6')
    a.raw('.amdhsa_kernel ' + K1)
    a.raw('  .amdhsa_next_free_vgpr 256')
    a.raw('  .amdhsa_next_free_sgpr 102')
    a.raw('  .amdhsa_accum_offset 256')
    a.raw('  .amdhsa_group_segment_fixed_size 0')
    a.raw('  .amdhsa_kernarg_size 112')
    a.raw('  .amdhsa_user_sgpr_count 2')
    a.raw('  .amdhsa_user_sgpr_kernarg_segment_ptr 1')
    a.raw('  .amdhsa_system_sgpr_workgroup_id_x 1')
    a.raw('  .amdhsa_float_denorm_mode_32 3')
    a.raw('.end_amdhsa_kernel')
    launch = '; @launch grid=(256,1,1) block=(512,1,1) lds=%d\n' % LDS_BYTES
    return HEADER + launch + a.text(), stampn[0]

def parse(argv=None):
    ap = argparse.ArgumentParser()
    ap.add_argument('-o', default=None)
    for k, d in (('depth', 4), ('batch', 2), ('k0', 4), ('p1', 1), ('p2', 3), ('p3', 5), ('dpro', 6), ('dmid', 6), ('w1nt', 0),
                 ('diag', 0), ('prep_at', 5), ('defer_at', 61), ('fbar', 1)):
        ap.add_argument('--' + k, type=int, default=d)
    ap.add_argument('--spin', type=lambda x: int(x, 0), default=0x40000)
    return ap.parse_args(argv)

if __name__ == '__main__':
    P = parse()
    txt, ns = gen(P)
    out = P.o or os.path.join(os.path.dirname(os.path.abspath(__file__)), '..', 'cdna_kernels', NAME + '.s')
    open(out, 'w').write(txt)
    print('wrote', out, len(txt), 'bytes; stamps', ns, 'lds', LDS_BYTES)
```

```python
import sys, os, math, struct, argparse
sys.path.insert(0, os.path.dirname(os.path.abspath(__file__)))
from asmlib import Asm

NAME = 'gated_mix__mha_block_cached__mixer_channel_mlp__decode'
def f2u(x):
    return struct.unpack('<I', struct.pack('<f', x))[0]
HEADER = open(os.path.join(os.path.dirname(os.path.abspath(__file__)), '..', 'cdna_kernels', NAME + '.s.ref')).read().split('; Override launch')[0]

QPART, QG, HPART, QB, HB, MX, OBUF = 0, 8192, 16384, 24576, 25088, 25216, 25344
OP = 1040
RED = OBUF + 8 * OP + 64
RED = (RED + 15) // 16 * 16
LDS_BYTES = RED + 1024
PART_BYTES = 256 * 4608
QX = PART_BYTES
OX = QX + 256 * 2048
OXP = 2304
EP = OX + 256 * OXP
WS_BYTES = EP + 128
DIAG = 0x200000 + 0x200000
OOB = 0x80000000

def gen(P):
    a = Asm()
    FL = {0: '', 1: ' nt', 2: ' sc1', 3: ' sc0 sc1', 4: ' sc1 nt', 5: ' sc0 sc1 nt'}
    wnt = FL[P.wfl]
    w1nt = ' nt' if P.w1nt else ''
    D = P.depth
    vL, vKo, vVo = 1, 2, 3
    MASK = 4; AF = [8, 12]; BQ = 16; SC = 48; SACC = [56, 60]; OA = [64, 68]; PACC = 72
    HF = 76
    T = list(range(96, 108))
    vG, vN, vBB = 108, 109, 110
    TAG = 112
    vB2 = 116
    ML = 120
    vMC = 118
    RB = 128; RN = 32
    XQ = 16; WQ = 20; EV = 32
    W1R = 16 + 0
    XS, GW, XD = 76, 86, 34
    W1R = 48
    B1 = 44
    HACC = 76
    GQ = 64
    WD = 16
    sW, sH, sS, sC0, sKV, sT0, sT1, sT2 = 3, 4, 5, 7, 8, 9, 10, 11
    pX, pK, pV, pWQ, pWO, pW1, pB1, pW2, pB2, pGW, pOUT, pDBG, pWS = 16, 18, 20, 22, 24, 28, 30, 32, 34, 36, 38, 40, 42
    rK, rV, rWQ, rWO, rW1, rW2, rWS, rDBG, rB1, rB2 = 44, 48, 52, 56, 60, 64, 68, 72, 76, 96
    sMU0, sMU1, sRS0, sRS1, sG0, sG1 = 80, 81, 82, 83, 84, 85
    sHI, sC, sBB, sM = 90, 91, 92, 94
    sSPIN = 13; sST = 26; sHG = 6
    sTG0, sTG1 = 86, 87
    def v(n, k=1):
        return 'v%d' % n if k == 1 else 'v[%d:%d]' % (n, n + k - 1)
    def s(n, k=1):
        return 's%d' % n if k == 1 else 's[%d:%d]' % (n, n + k - 1)
    def srd(r, p, nbytes):
        a('s_mov_b32 %s, %s' % (s(r), s(p)))
        a('s_mov_b32 %s, %s' % (s(r + 1), s(p + 1)))
        a('s_mov_b32 %s, 0x%x' % (s(r + 2), nbytes))
        a('s_mov_b32 %s, 0x20000' % s(r + 3))
    def smask(val16):
        w = val16 | (val16 << 16)
        a('s_mov_b32 %s, 0x%x' % (s(sM), w)); a('s_mov_b32 %s, 0x%x' % (s(sM + 1), w))
    DPP = ' row_mask:0xf bank_mask:0xf'
    stampn = [0]
    def stamp():
        if not P.diag:
            return
        n = stampn[0]; stampn[0] += 1
        a('s_memrealtime %s' % s(sST, 2))
        a('s_waitcnt lgkmcnt(0)')
        a('v_writelane_b32 v127, %s, %d' % (s(sST), n))
    def stamp_flush():
        if not P.diag:
            return
        a('s_mov_b64 exec, -1')
        a('s_lshl_b32 s100, s2, 3'); a('s_add_u32 s100, s100, %s' % s(sW)); a('s_lshl_b32 s100, s100, 7')
        a('s_add_u32 s100, s100, 0x%x' % DIAG)
        a('v_lshlrev_b32 v126, 2, %s' % v(vL))
        a('s_mov_b32 exec_hi, 0')
        a('buffer_store_dword v127, v126, %s, s100 offen' % s(rWS, 4))
    def red32(x, t, op):
        for d in ('quad_perm:[1,0,3,2]', 'quad_perm:[2,3,0,1]', 'row_ror:4', 'row_ror:8'):
            a('%s_dpp %s, %s, %s %s%s' % (op, v(x), v(x), v(x), d, DPP))
        a('v_mov_b32 %s, %s' % (v(t), v(x)))
        a('v_permlane16_swap_b32 %s, %s' % (v(x), v(t)))
        a('%s %s, %s, %s' % (op, v(x), v(x), v(t)))
    def redquads64(xs, ts, op):
        for d in ('row_ror:4', 'row_ror:8'):
            for x in xs:
                a('%s_dpp %s, %s, %s %s%s' % (op, v(x), v(x), v(x), d, DPP))
        for sw in ('v_permlane16_swap_b32', 'v_permlane32_swap_b32'):
            for x, t in zip(xs, ts):
                a('v_mov_b32 %s, %s' % (v(t), v(x)))
            for x, t in zip(xs, ts):
                a('%s %s, %s' % (sw, v(x), v(t)))
            for x, t in zip(xs, ts):
                a('%s %s, %s, %s' % (op, v(x), v(x), v(t)))
    def red8(xs, op):
        for d in ('quad_perm:[1,0,3,2]', 'quad_perm:[2,3,0,1]', 'row_half_mirror'):
            for x in xs:
                a('%s_dpp %s, %s, %s %s%s' % (op, v(x), v(x), v(x), d, DPP))
    def delta(dst, src):
        for d in range(4):
            a('v_and_b32 %s, %s, %s' % (v(dst + d), v(src), v(MASK + d)))
    def mfma(d, A, B, c=None):
        a('v_mfma_f32_16x16x32_bf16 %s, %s, %s, %s' % (v(d, 4), v(A, 4), v(B, 4), '0' if c is None else v(d, 4)))
    def oob_unless(dst, src, cmp):
        a(cmp)
        a('v_mov_b32 %s, 0x%x' % (v(T[11]), OOB))
        a('v_cndmask_b32 %s, %s, %s, vcc' % (v(dst), v(T[11]), v(src)))

    ip = [0]
    cp = [0]
    sG = 12
    def issue_one():
        j = ip[0]; ip[0] += 1
        assert j - RN < cp[0]
        n, i = j >> 2, j & 3
        if i == 0:
            g = n & 7
            a('s_add_u32 %s, %s, 0x%x' % (s(sG), s(sKV), ((g >> 2) << 25) + ((g & 3) << 15)))
        a('buffer_load_dwordx4 %s, %s, %s, %s offen offset:%d%s' % (
            v(RB + 4 * (j % RN), 4), v(vKo if j < 32 else vVo), s(rK if j < 32 else rV, 4), s(sG), 1024 * i, FL[P.kfl if j < 32 else P.vfl]), tag='L%d' % j)
    def pump(k, depth=None):
        a.wait_vm('L%d' % k)
        while ip[0] < min(64, k + 1 + (depth or D), cp[0] + RN):
            issue_one()

    K1 = NAME + '_kernel'
    a.raw('.amdgcn_target "amdgcn-amd-amdhsa--gfx950"')
    a.raw('.text'); a.raw('.globl ' + K1); a.raw('.p2align 8'); a.raw('.type %s,@function' % K1)
    a.label(K1)
    a('s_cmp_ge_u32 s2, 256'); a('s_cbranch_scc1 L_end')
    a('s_load_dwordx16 s[16:31], s[0:1], 0')
    a('s_load_dwordx8 s[32:39], s[0:1], 64')
    a('s_load_dwordx4 s[40:43], s[0:1], 96')
    a('v_lshrrev_b32 %s, 6, v0' % v(T[0]))
    a('v_and_b32 %s, 63, v0' % v(vL))
    a('v_readfirstlane_b32 %s, %s' % (s(sW), v(T[0])))
    a('s_and_b32 %s, s2, 7' % s(sT0))
    a('s_lshr_b32 %s, s2, 3' % s(sT1))
    a('s_and_b32 %s, %s, 3' % (s(sH), s(sT1)))
    a('s_lshl_b32 %s, %s, 2' % (s(sT2), s(sT0)))
    a('s_add_u32 %s, %s, %s' % (s(sH), s(sH), s(sT2)))
    a('s_lshr_b32 %s, %s, 2' % (s(sS), s(sT1)))
    a('s_mul_i32 %s, %s, 576' % (s(sC0), s(sT0)))
    a('s_mul_i32 %s, %s, 18' % (s(sT2), s(sT1)))
    a('s_add_u32 %s, %s, %s' % (s(sC0), s(sC0), s(sT2)))
    a('s_lshl_b32 %s, %s, 3' % (s(sHG), s(sH)))
    a('s_lshl_b32 %s, %s, 20' % (s(sKV), s(sH)))
    a('s_lshl_b32 %s, %s, 17' % (s(sT2), s(sS))); a('s_add_u32 %s, %s, %s' % (s(sKV), s(sKV), s(sT2)))
    a('s_lshl_b32 %s, %s, 12' % (s(sT2), s(sW))); a('s_add_u32 %s, %s, %s' % (s(sKV), s(sKV), s(sT2)))
    a('v_lshrrev_b32 %s, 4, %s' % (v(vG), v(vL)))
    a('v_and_b32 %s, 15, %s' % (v(vN), v(vL)))
    a('v_bfe_u32 %s, %s, 3, 1' % (v(vBB), v(vL)))
    a('v_lshlrev_b32 %s, 4, %s' % (v(vVo), v(vL)))
    a('v_bfe_u32 %s, %s, 2, 2' % (v(T[0]), v(vL)))
    a('v_lshlrev_b32 %s, 8, %s' % (v(vKo), v(T[0])))
    a('v_lshl_add_u32 %s, %s, 6, %s' % (v(vKo), v(vG), v(vKo)))
    a('v_and_b32 %s, 3, %s' % (v(T[0]), v(vL)))
    a('v_lshl_add_u32 %s, %s, 4, %s' % (v(vKo), v(T[0]), v(vKo)))
    a('s_mul_i32 %s, %s, 72' % (s(sT0), s(sS)))
    a('s_mul_i32 %s, %s, 9' % (s(sT1), s(sW)))
    a('s_add_u32 %s, %s, %s' % (s(sT0), s(sT0), s(sT1)))
    a('v_min_u32 %s, 2, %s' % (v(T[0]), v(vG)))
    a('v_mul_u32_u24 %s, 3, %s' % (v(T[0]), v(T[0])))
    a('v_mul_u32_u24 %s, 0x240, %s' % (v(T[1]), v(vBB)))
    a('v_add3_u32 %s, %s, %s, %s' % (v(T[1]), v(T[1]), v(T[0]), s(sT0)))
    a('v_lshlrev_b32 %s, 1, %s' % (v(T[1]), v(T[1])))
    a('v_lshlrev_b32 %s, 13, %s' % (v(T[2]), v(T[0])))
    a('v_lshl_add_u32 %s, %s, 4, %s' % (v(T[2]), v(vN), v(T[2])))
    oob_unless(T[2], T[2], 'v_cmp_gt_u32 vcc, 48, %s' % v(vL))
    a('s_lshl_b32 %s, %s, 13' % (s(sT0), s(sT0)))
    a('s_lshl_b32 %s, %s, 8' % (s(sT1), s(sH)))
    a('s_add_u32 %s, %s, %s' % (s(sT0), s(sT0), s(sT1)))
    a('s_add_u32 %s, %s, 0x2000' % (s(sT1), s(sT0)))
    a('s_add_u32 %s, %s, 0x4000' % (s(sT2), s(sT0)))
    a('v_mov_b32 %s, 0x%x' % (v(T[3]), EP))
    a('s_waitcnt lgkmcnt(0)')
    srd(rWQ, pWQ, 576 * 8192)
    srd(rK, pK, 1 << 26)
    if P.diag:
        a('v_mov_b32 v127, 0')
    stamp()
    for i, so in enumerate((sT0, sT1, sT2)):
        a('buffer_load_dwordx4 %s, %s, %s, %s offen%s' % (v(WQ + 4 * i, 4), v(T[2]), s(rWQ, 4), s(so), wnt), tag='wq')
    for i in range(3):
        a('global_load_ushort %s, %s, %s offset:%d' % (v(XQ + i), v(T[1]), s(pX, 2), 2 * i), tag='xq')
    a('global_load_dwordx2 %s, %s, %s sc1' % (v(EV, 2), v(T[3]), s(pWS, 2)), tag='ep')
    for _ in range(P.k0):
        issue_one()
    srd(rWS, pWS, (DIAG + 0x40000) if P.diag else WS_BYTES)
    vXd, vXs, vGw = T[4], T[5], T[6]
    a('v_mul_u32_u24 %s, 0x480, %s' % (v(vXd), v(vBB)))
    a('v_mad_u32_u24 %s, %s, 36, %s' % (v(vXd), v(vG), v(vXd)))
    a('s_mul_i32 %s, %s, 144' % (s(sT2), s(sW)))
    a('v_add_u32 %s, %s, %s' % (v(vXd), s(sT2), v(vXd)))
    a('v_and_b32 %s, 31, %s' % (v(vGw), v(vL)))
    a('v_mul_u32_u24 %s, 36, %s' % (v(vGw), v(vGw)))
    a('v_lshrrev_b32 %s, 5, %s' % (v(vXs), v(vL)))
    a('v_mul_u32_u24 %s, 0x480, %s' % (v(vXs), v(vXs)))
    a('v_add_u32 %s, %s, %s' % (v(vXs), v(vXs), v(vGw)))
    for (dst, off, base, tag) in ((XS, vXs, pX, 'xs'), (GW, vGw, pGW, 'gw'), (XD, vXd, pX, 'xd')):
        a('global_load_dwordx4 %s, %s, %s' % (v(dst, 4), v(off), s(base, 2)), tag=tag)
        a('global_load_dwordx4 %s, %s, %s offset:16' % (v(dst + 4, 4), v(off), s(base, 2)), tag=tag)
        a('global_load_dword %s, %s, %s offset:32' % (v(dst + 8), v(off), s(base, 2)), tag=tag)
    a('s_mov_b32 %s, 0xffff0000' % s(sHI))
    a('s_mov_b32 %s, 0x%x' % (s(sC), f2u(math.log2(math.e) / math.sqrt(128.0))))
    a('s_mov_b32 %s, 0xff00ff00' % s(sBB)); a('s_mov_b32 %s, 0xff00ff00' % s(sBB + 1))
    a('v_and_b32 %s, 1, %s' % (v(T[0]), v(vL)))
    a('v_lshlrev_b32 %s, 4, %s' % (v(T[0]), v(T[0])))
    a('v_mov_b32 %s, 0xffff' % v(T[7]))
    a('v_lshlrev_b32 %s, %s, %s' % (v(T[0]), v(T[0]), v(T[7])))
    for d in range(4):
        smask(0x0303 << (2 * d))
        a('v_cndmask_b32 %s, 0, %s, %s' % (v(MASK + d), v(T[0]), s(sM, 2)))
    vDW = T[8]
    a('v_lshrrev_b32 %s, 5, v0' % v(vDW))
    a('v_lshlrev_b32 %s, 9, %s' % (v(vDW), v(vDW)))
    a('v_lshl_add_u32 %s, %s, 5, %s' % (v(vDW), v(vN), v(vDW)))
    a('v_and_b32 %s, 16, %s' % (v(T[0]), v(vL)))
    a('v_add_u32 %s, %s, %s' % (v(vDW), v(vDW), v(T[0])))
    vPO = T[9]
    a('v_lshlrev_b32 %s, 4, v0' % v(vPO))
    oob_unless(vPO, vPO, 'v_cmp_gt_u32 vcc, 128, v0')
    a('v_and_b32 %s, 127, v0' % v(T[10]))
    a('v_lshlrev_b32 %s, 3, %s' % (v(T[10]), v(T[10])))
    a.wait_vm('ep')
    for i in range(3):
        a('v_lshl_or_b32 %s, %s, 16, %s' % (v(XQ + i), v(XQ + i), v(XQ + i)))
        delta(AF[i & 1], XQ + i)
        mfma(PACC, AF[i & 1], WQ + 4 * i, None if i == 0 else 1)
    a('v_add_u32 %s, 1, %s' % (v(TAG + 1), v(EV)))
    a('v_add_u32 %s, 0x9e3779b9, %s' % (v(TAG + 3), v(EV + 1)))
    a('ds_write_b128 %s, %s offset:%d' % (v(vDW), v(PACC, 4), QPART))
    a('v_readfirstlane_b32 %s, %s' % (s(sTG0), v(TAG + 1)))
    a('v_readfirstlane_b32 %s, %s' % (s(sTG1), v(TAG + 3)))
    a('s_add_u32 %s, %s, %s' % (s(sT0), s(sHG), s(sS)))
    a('s_lshl_b32 %s, %s, 11' % (s(sT0), s(sT0)))
    a('s_add_u32 %s, %s, 0x%x' % (s(sT0), s(sT0), QX))
    a('s_waitcnt lgkmcnt(0)')
    a('s_barrier')
    QR = 16
    for w in range(8):
        a('ds_read_b64 %s, %s offset:%d' % (v(QR + 2 * w, 2), v(T[10]), QPART + 1024 * w))
    a('s_waitcnt lgkmcnt(0)')
    for st in (1, 2):
        for w in range(0, 8, 2 * st):
            for r in range(2):
                a('v_add_f32 %s, %s, %s' % (v(QR + 2 * w + r), v(QR + 2 * w + r), v(QR + 2 * (w + st) + r)))
    a('v_add_f32 %s, %s, %s' % (v(TAG), v(QR), v(QR + 8)))
    a('v_add_f32 %s, %s, %s' % (v(TAG + 2), v(QR + 1), v(QR + 9)))
    a('buffer_store_dwordx4 %s, %s, %s, %s offen sc1' % (v(TAG, 4), v(vPO), s(rWS, 4), s(sT0)), tag='qpub')
    stamp()
    srd(rW1, pW1, 576 * 9216)
    vO, vO2 = T[4], T[5]
    a('v_mul_u32_u24 %s, 11, %s' % (v(T[0]), v(vN)))
    a('v_lshrrev_b32 %s, 5, %s' % (v(T[0]), v(T[0])))
    a('v_mul_u32_u24 %s, 3, %s' % (v(T[7]), v(T[0])))
    a('v_sub_u32 %s, %s, %s' % (v(T[7]), v(vN), v(T[7])))
    a('v_mad_u32_u24 %s, %s, 18, %s' % (v(T[0]), v(vG), v(T[0])))
    a('v_mul_u32_u24 %s, 0x2400, %s' % (v(vO), v(T[0])))
    a('v_lshl_add_u32 %s, %s, 4, %s' % (v(vO), v(T[7]), v(vO)))
    oob_unless(vO, vO, 'v_cmp_gt_u32 vcc, 15, %s' % v(vN))
    oob_unless(vO2, vO, 'v_cmp_gt_u32 vcc, 9, %s' % v(vN))
    a('s_mul_i32 %s, %s, %d' % (s(sT0), s(sW), 72 * 9216))
    a('s_lshl_b32 %s, %s, 1' % (s(sT1), s(sC0)))
    a('s_add_u32 %s, %s, %s' % (s(sT0), s(sT0), s(sT1)))
    for u in range(4):
        a('buffer_load_dwordx4 %s, %s, %s, %s offen%s' % (v(W1R + 4 * u, 4), v(vO if u < 3 else vO2), s(rW1, 4), s(sT0), w1nt), tag='w1')
        if u < 3:
            a('s_add_u32 %s, %s, %d' % (s(sT0), s(sT0), 5 * 9216))
    srd(rV, pV, 1 << 26)
    pump(P.p1)
    a('v_lshlrev_b32 %s, 4, v0' % v(vO))
    oob_unless(vO, vO, 'v_cmp_gt_u32 vcc, 288, v0')
    a('s_mul_i32 %s, s2, 4608' % s(sT0))
    for d in range(4):
        a('v_mov_b32 %s, -1' % v(AF[0] + d))
    a('buffer_store_dwordx4 %s, %s, %s, %s offen sc1' % (v(AF[0], 4), v(vO), s(rWS, 4), s(sT0)), tag='clear')
    srd(rB1, pB1, 9216)
    a('v_and_b32 %s, 1, %s' % (v(T[0]), v(vG)))
    a('v_lshlrev_b32 %s, 3, %s' % (v(T[0]), v(T[0])))
    a('v_lshl_add_u32 %s, %s, 4, %s' % (v(vO), v(vN), v(T[0])))
    a('s_lshl_b32 %s, %s, 1' % (s(sT1), s(sC0)))
    a('buffer_load_dwordx2 %s, %s, %s, %s offen' % (v(B1, 2), v(vO), s(rB1, 4), s(sT1)), tag='b1')
    srd(rB2, pB2, 1152)
    a('s_lshl_b32 %s, %s, 8' % (s(sT1), s(sW)))
    a('s_cmp_eq_u32 s2, 0')
    a('s_cselect_b32 %s, %s, 0x%x' % (s(sT1), s(sT1), OOB))
    a('v_add_u32 %s, %s, %s' % (v(vO), s(sT1), v(vO)))
    a('buffer_load_dwordx2 %s, %s, %s, 0 offen' % (v(vB2, 2), v(vO), s(rB2, 4)), tag='b2')
    srd(rWO, pWO, 4096 * 1152)
    srd(rW2, pW2, 4608 * 1152)
    srd(rDBG, pDBG, 256)
    a.wait_vm('gw')
    S1, GD, t0, t1, t2, t3 = T[4], T[5], T[6], T[7], T[0], T[1]
    a('v_mov_b32 %s, 0' % v(S1)); a('v_mov_b32 %s, 0' % v(GD))
    for k in range(9):
        a('v_lshlrev_b32 %s, 16, %s' % (v(t0), v(XS + k)))
        a('v_and_b32 %s, %s, %s' % (v(t1), s(sHI), v(XS + k)))
        a('v_lshlrev_b32 %s, 16, %s' % (v(t2), v(GW + k)))
        a('v_and_b32 %s, %s, %s' % (v(t3), s(sHI), v(GW + k)))
        a('v_add_f32 %s, %s, %s' % (v(S1), v(S1), v(t0)))
        a('v_fmac_f32 %s, %s, %s' % (v(GD), v(t0), v(t2)))
        a('v_add_f32 %s, %s, %s' % (v(S1), v(S1), v(t1)))
        a('v_fmac_f32 %s, %s, %s' % (v(GD), v(t1), v(t3)))
    red32(S1, t0, 'v_add_f32')
    red32(GD, t0, 'v_add_f32')
    pump(P.p2)
    a('v_mul_f32 %s, 0x%x, %s' % (v(S1), f2u(1.0 / 576), v(S1)))
    S2 = t3
    a('v_mov_b32 %s, 0' % v(S2))
    for k in range(9):
        a('v_lshlrev_b32 %s, 16, %s' % (v(t0), v(XS + k)))
        a('v_and_b32 %s, %s, %s' % (v(t1), s(sHI), v(XS + k)))
        a('v_sub_f32 %s, %s, %s' % (v(t0), v(t0), v(S1)))
        a('v_sub_f32 %s, %s, %s' % (v(t1), v(t1), v(S1)))
        a('v_fmac_f32 %s, %s, %s' % (v(S2), v(t0), v(t0)))
        a('v_fmac_f32 %s, %s, %s' % (v(S2), v(t1), v(t1)))
    red32(S2, t0, 'v_add_f32')
    a('v_mov_b32 %s, 0x%x' % (v(t0), f2u(1e-5)))
    a('v_fmac_f32 %s, 0x%x, %s' % (v(t0), f2u(1.0 / 576), v(S2)))
    a('v_rsq_f32 %s, %s' % (v(S2), v(t0)))
    a('v_mul_f32 %s, 0x%x, %s' % (v(GD), f2u(-math.log2(math.e)), v(GD)))
    a('v_exp_f32 %s, %s' % (v(GD), v(GD)))
    a('v_add_f32 %s, 1.0, %s' % (v(GD), v(GD)))
    a('v_rcp_f32 %s, %s' % (v(GD), v(GD)))
    a('v_readlane_b32 %s, %s, 0' % (s(sMU0), v(S1))); a('v_readlane_b32 %s, %s, 32' % (s(sMU1), v(S1)))
    a('v_readlane_b32 %s, %s, 0' % (s(sRS0), v(S2))); a('v_readlane_b32 %s, %s, 32' % (s(sRS1), v(S2)))
    a('v_readlane_b32 %s, %s, 0' % (s(sG0), v(GD))); a('v_readlane_b32 %s, %s, 32' % (s(sG1), v(GD)))
    MU, RS = T[4], T[5]
    a('v_mov_b32 %s, %s' % (v(MU), s(sMU0))); a('v_mov_b32 %s, %s' % (v(t0), s(sMU1)))
    a('v_cndmask_b32 %s, %s, %s, %s' % (v(MU), v(MU), v(t0), s(sBB, 2)))
    a('v_mov_b32 %s, %s' % (v(RS), s(sRS0))); a('v_mov_b32 %s, %s' % (v(t0), s(sRS1)))
    a('v_cndmask_b32 %s, %s, %s, %s' % (v(RS), v(RS), v(t0), s(sBB, 2)))
    a.wait_vm('L%d' % P.p3)
    sQG = 88
    a('s_add_u32 %s, %s, %s' % (s(sQG), s(sHG), s(sW)))
    a('s_lshl_b32 %s, %s, 11' % (s(sQG), s(sQG)))
    a('s_add_u32 %s, %s, 0x%x' % (s(sQG), s(sQG), QX))
    def q_gather(track):
        for k in range(2):
            txt = 'buffer_load_dwordx4 %s, %s, %s, %s offen offset:%d sc1' % (v(GQ + 4 * k, 4), v(vVo), s(rWS, 4), s(sQG), 1024 * k)
            if track:
                a(txt, tag='qg')
            else:
                a.lines.append('    ' + txt)
    q_gather(True)
    stamp()
    pump(P.p3)
    a.wait_vm('w1')
    for i in range(18):
        u, t = divmod(i, 5)
        A = AF[i & 1]
        if i & 1:
            a('v_and_b32 %s, %s, %s' % (v(t0), s(sHI), v(XD + i // 2)))
        else:
            a('v_lshlrev_b32 %s, 16, %s' % (v(t0), v(XD + i // 2)))
        a('v_sub_f32 %s, %s, %s' % (v(t0), v(t0), v(MU)))
        a('v_mul_f32 %s, %s, %s' % (v(t0), v(t0), v(RS)))
        a('v_cvt_pk_bf16_f32 %s, %s, %s' % (v(t0), v(t0), v(t0)))
        delta(A, t0)
        mfma(HACC + 4 * t, A, W1R + 4 * u, None if u == 0 else 1)
    a('v_lshlrev_b32 %s, 4, v0' % v(t1))
    for t in range(5):
        w = (0x7 << (3 * t)); w |= w << 16
        a('s_mov_b32 exec_lo, 0x%x' % w); a('s_mov_b32 exec_hi, 0x%x' % w)
        a('ds_write_b128 %s, %s offset:%d' % (v(t1), v(HACC + 4 * t, 4), HPART))
    a('s_mov_b64 exec, -1')
    def tagcheck(regs):
        first = True
        for r in regs:
            a('v_xor_b32 %s, %s, %s' % (v(T[2]), s(sTG0), v(r + 1)))
            a('v_xor_b32 %s, %s, %s' % (v(T[3]), s(sTG1), v(r + 3)))
            if first:
                a('v_or_b32 %s, %s, %s' % (v(T[0]), v(T[2]), v(T[3])))
            else:
                a('v_or3_b32 %s, %s, %s, %s' % (v(T[0]), v(T[0]), v(T[2]), v(T[3])))
            first = False
        a('v_cmp_ne_u32 vcc, 0, %s' % v(T[0]))
    def spin(name, regs, reload):
        tagcheck(regs)
        a('s_mov_b32 %s, 0x%x' % (s(sSPIN), P.spin))
        a('s_cbranch_vccz L_%s_ok' % name)
        a.label('L_%s_spin' % name)
        reload(False)
        a.lines.append('    s_waitcnt vmcnt(0)')
        tagcheck(regs)
        a('s_sub_u32 %s, %s, 1' % (s(sSPIN), s(sSPIN)))
        a('s_cbranch_scc1 L_%s_ok' % name)
        a('s_cbranch_vccnz L_%s_spin' % name)
        a.label('L_%s_ok' % name)
    a.wait_vm('qg')
    done = max([int(t_[1:]) for t_ in ['L-1'] ] + [j for j in range(ip[0]) if 'L%d' % j not in a.vm])
    pump(done, P.dpro)
    spin('q', [GQ, GQ + 4], q_gather)
    stamp()
    a('v_lshlrev_b32 %s, 3, %s' % (v(T[0]), v(vL)))
    a('s_lshl_b32 %s, %s, 10' % (s(sT0), s(sW)))
    a('v_add_u32 %s, %s, %s' % (v(T[0]), s(sT0), v(T[0])))
    a('v_add_u32 %s, %d, %s' % (v(T[0]), QG, v(T[0])))
    a('ds_write2_b32 %s, %s, %s offset0:0 offset1:1' % (v(T[0]), v(GQ), v(GQ + 2)))
    a('ds_write2_b32 %s, %s, %s offset0:128 offset1:129' % (v(T[0]), v(GQ + 4), v(GQ + 6)))
    a('s_waitcnt lgkmcnt(0)')
    a('s_barrier')
    a('v_mov_b32 %s, 0' % v(T[0]))
    oob_unless(T[0], T[0], 'v_cmp_eq_u32 vcc, 0, v0')
    a('v_mov_b32 %s, 1' % v(T[4]))
    a('buffer_atomic_add %s, %s, %s, 0 offen sc1' % (v(T[4]), v(T[0]), s(rDBG, 4)), tag='cnt')
    a('s_cmp_gt_u32 %s, 4' % s(sW)); a('s_cbranch_scc1 L_bar2')
    a('s_cmp_eq_u32 %s, 4' % s(sW)); a('s_cbranch_scc1 L_hfin')
    a('v_lshlrev_b32 %s, 2, v0' % v(T[0]))
    for w in range(8):
        a('ds_read_b32 %s, %s offset:%d' % (v(BQ + w), v(T[0]), QG + 1024 * w))
    a('s_waitcnt lgkmcnt(0)')
    for st in (1, 2, 4):
        for w in range(0, 8, 2 * st):
            a('v_add_f32 %s, %s, %s' % (v(BQ + w), v(BQ + w), v(BQ + w + st)))
    a('v_cvt_pk_bf16_f32 %s, %s, %s' % (v(BQ), v(BQ), v(BQ)))
    a('v_lshlrev_b32 %s, 1, v0' % v(T[0]))
    a('ds_write_b16 %s, %s offset:%d' % (v(T[0]), v(BQ), QB))
    a('s_branch L_bar2')
    a.label('L_hfin'); a.hist = []
    hregs = [48 + 4 * k for k in range(8)]
    for w in range(8):
        a('ds_read_b128 %s, %s offset:%d' % (v(hregs[w], 4), v(vVo), HPART + 1024 * w))
    a('s_waitcnt lgkmcnt(0)')
    for st in (1, 2, 4):
        for w in range(0, 8, 2 * st):
            for r in range(4):
                a('v_add_f32 %s, %s, %s' % (v(hregs[w] + r), v(hregs[w] + r), v(hregs[w + st] + r)))
    H = hregs[0]; HA = hregs[1]
    for r in range(4):
        a('v_add_f32_dpp %s, %s, %s row_shl:3%s bound_ctrl:0' % (v(HA + r), v(H + r), v(H + r), DPP))
    for r in range(4):
        a('v_add_f32_dpp %s, %s, %s row_shl:6%s bound_ctrl:0' % (v(HA + r), v(HA + r), v(HA + r), DPP))
    for r in range(4):
        a('v_add_f32_dpp %s, %s, %s row_shl:12%s bound_ctrl:0' % (v(HA + r), v(H + r), v(HA + r), DPP))
    assert 'b1' not in a.vm
    for r in range(4):
        if r & 1:
            a('v_and_b32 %s, %s, %s' % (v(H + r), s(sHI), v(B1 + r // 2)))
        else:
            a('v_lshlrev_b32 %s, 16, %s' % (v(H + r), v(B1 + r // 2)))
        a('v_add_f32 %s, %s, %s' % (v(HA + r), v(HA + r), v(H + r)))
    a('v_mov_b32 %s, %s' % (v(T[0]), s(sG0))); a('v_mov_b32 %s, %s' % (v(T[4]), s(sG1)))
    a('v_cmp_lt_u32 vcc, 31, %s' % v(vL))
    a('v_cndmask_b32 %s, %s, %s, vcc' % (v(T[0]), v(T[0]), v(T[4])))
    a('v_sub_f32 %s, 1.0, %s' % (v(T[0]), v(T[0])))
    kz = -2.0 * math.sqrt(2.0 / math.pi) * math.log2(math.e)
    steps = [
        lambda x, z: a('v_mul_f32 %s, %s, %s' % (v(z), v(x), v(x))),
        lambda x, z: a('v_mul_f32 %s, 0x%x, %s' % (v(z), f2u(0.044715), v(z))),
        lambda x, z: a('v_add_f32 %s, 1.0, %s' % (v(z), v(z))),
        lambda x, z: a('v_mul_f32 %s, %s, %s' % (v(z), v(z), v(x))),
        lambda x, z: a('v_mul_f32 %s, 0x%x, %s' % (v(z), f2u(kz), v(z))),
        lambda x, z: a('v_exp_f32 %s, %s' % (v(z), v(z))),
        lambda x, z: a('v_add_f32 %s, 1.0, %s' % (v(z), v(z))),
        lambda x, z: a('v_rcp_f32 %s, %s' % (v(z), v(z))),
        lambda x, z: a('v_mul_f32 %s, %s, %s' % (v(x), v(x), v(T[0]))),
        lambda x, z: a('v_mul_f32 %s, %s, %s' % (v(x), v(x), v(z))),
    ]
    for st in steps:
        for r in range(4):
            st(HA + r, H + r)
    a('v_cvt_pk_bf16_f32 %s, %s, %s' % (v(H), v(HA), v(HA + 1)))
    a('v_cvt_pk_bf16_f32 %s, %s, %s' % (v(H + 1), v(HA + 2), v(HA + 3)))
    a('v_lshrrev_b32 %s, 5, %s' % (v(T[0]), v(vL)))
    a('v_mul_u32_u24 %s, 48, %s' % (v(T[0]), v(T[0])))
    a('v_lshl_add_u32 %s, %s, 4, %s' % (v(T[0]), v(vN), v(T[0])))
    a('v_and_b32 %s, 1, %s' % (v(T[4]), v(vG)))
    a('v_lshl_add_u32 %s, %s, 3, %s' % (v(T[0]), v(T[4]), v(T[0])))
    a('s_mov_b32 exec_lo, 0x00070007'); a('s_mov_b32 exec_hi, 0x00070007')
    a('ds_write_b64 %s, %s offset:%d' % (v(T[0]), v(H, 2), HB))
    a('s_mov_b64 exec, -1')
    a.label('L_bar2'); a.hist = []
    a('s_waitcnt lgkmcnt(0)')
    a('s_barrier')
    a('v_and_b32 %s, 3, %s' % (v(T[0]), v(vL)))
    a('v_lshl_add_u32 %s, %s, 2, %s' % (v(T[0]), v(vG), v(T[0])))
    a('v_lshlrev_b32 %s, 4, %s' % (v(T[0]), v(T[0])))
    a('ds_read_b128 %s, %s offset:%d' % (v(AF[0], 4), v(T[0]), QB))
    a('ds_read_b128 %s, %s offset:%d' % (v(AF[1], 4), v(T[0]), QB + 256))
    a('v_mul_u32_u24 %s, 48, %s' % (v(T[0]), v(vBB)))
    a('v_mad_u32_u24 %s, %s, 10, %s' % (v(T[0]), v(vG), v(T[0])))
    for i in range(5):
        a('ds_read_u16 %s, %s offset:%d' % (v(T[1 + i]), v(T[0]), HB + 2 * i))
    a('s_waitcnt lgkmcnt(5)')
    for i in range(4):
        smask(0xf << (4 * i))
        for b in range(2):
            for d in range(4):
                a('v_cndmask_b32 %s, 0, %s, %s' % (v(BQ + 16 * b + 4 * i + d), v(AF[b] + d), s(sM, 2)))
    stamp()
    def late_prep():
        a('s_waitcnt lgkmcnt(0)')
        a('v_cmp_gt_u32 vcc, 48, %s' % v(vL))
        for i in range(5):
            if i >= 3:
                a('v_cndmask_b32 %s, 0, %s, vcc' % (v(T[1 + i]), v(T[1 + i])))
            a('v_lshl_or_b32 %s, %s, 16, %s' % (v(T[1 + i]), v(T[1 + i]), v(T[1 + i])))
            delta(HF + 4 * i, T[1 + i])
        assert 'b2' not in a.vm
        a('v_mov_b32 %s, %s' % (v(T[0]), s(sG0))); a('v_mov_b32 %s, %s' % (v(T[1]), s(sG1)))
        a('v_cmp_lt_u32 vcc, 31, %s' % v(vL))
        a('v_cndmask_b32 %s, %s, %s, vcc' % (v(T[0]), v(T[0]), v(T[1])))
        a('v_sub_f32 %s, 1.0, %s' % (v(T[0]), v(T[0])))
        for r in range(4):
            if r & 1:
                a('v_and_b32 %s, %s, %s' % (v(PACC + r), s(sHI), v(vB2 + r // 2)))
            else:
                a('v_lshlrev_b32 %s, 16, %s' % (v(PACC + r), v(vB2 + r // 2)))
            a('v_mul_f32 %s, %s, %s' % (v(PACC + r), v(PACC + r), v(T[0])))
    def score(n):
        acc = SACC[n & 1]
        a('v_mov_b32_dpp %s, %s quad_perm:[0,0,0,0]%s' % (v(SC + n), v(acc), DPP))
        for c in range(1, 4):
            a('v_add_f32_dpp %s, %s, %s quad_perm:[%d,%d,%d,%d]%s' % (v(SC + n), v(acc + c), v(SC + n), c, c, c, c, DPP))
    B = P.batch
    def step(j, depth=None):
        a.wait_vm('L%d' % j)
    def refill(j, depth=None):
        cp[0] = j + 1
        if (j + 1) % B == 0:
            while ip[0] < min(64, j + 1 + (depth or D)):
                issue_one()
    vCNT = 124
    for n in range(8):
        for i in range(4):
            j = 4 * n + i
            step(j)
            mfma(SACC[n & 1], RB + 4 * (j % RN), BQ + 16 * (n >> 2) + 4 * i, None if i == 0 else 1)
            refill(j, P.dmid if j == 31 else None)
        if n > 0:
            score(n - 1)
        if n == P.prep_at:
            late_prep()
    score(7)
    stamp()
    for b in range(2):
        a('v_max3_f32 %s, %s, %s, %s' % (v(vMC + b), v(SC + 4 * b), v(SC + 4 * b + 1), v(SC + 4 * b + 2)))
        a('v_max_f32 %s, %s, %s' % (v(vMC + b), v(vMC + b), v(SC + 4 * b + 3)))
    redquads64([vMC, vMC + 1], [T[0], T[1]], 'v_max_f32')
    a('s_lshl_b32 %s, %s, 3' % (s(sT0), s(sW)))
    a('v_mov_b32 %s, %s' % (v(T[0]), s(sT0)))
    a('ds_write_b64 %s, %s offset:%d' % (v(T[0]), v(vMC, 2), MX))
    a('v_and_b32 %s, 7, %s' % (v(T[1]), v(vL)))
    a('v_lshlrev_b32 %s, 3, %s' % (v(T[1]), v(T[1])))
    a('v_mov_b32 %s, 0' % v(T[2]))
    a('buffer_load_dword %s, %s, %s, 0 offen sc1' % (v(vCNT), v(T[2]), s(rDBG, 4)), tag='cntld')
    a('s_waitcnt lgkmcnt(0)')
    a('s_barrier')
    a('ds_read_b64 %s, %s offset:%d' % (v(vMC, 2), v(T[1]), MX))
    a('s_waitcnt lgkmcnt(0)')
    red8([vMC, vMC + 1], 'v_max_f32')
    for b in range(2):
        a('v_mul_f32 %s, %s, %s' % (v(vMC + b), s(sC), v(vMC + b)))
    for n in range(8):
        a('v_fma_f32 %s, %s, %s, -%s' % (v(SC + n), v(SC + n), s(sC), v(vMC + (n >> 2))))
    for n in range(8):
        a('v_exp_f32 %s, %s' % (v(SC + n), v(SC + n)))
    for b in range(2):
        L_ = ML + 2 * b + 1
        a('v_add_f32 %s, %s, %s' % (v(L_), v(SC + 4 * b), v(SC + 4 * b + 1)))
        a('v_add_f32 %s, %s, %s' % (v(L_), v(L_), v(SC + 4 * b + 2)))
        a('v_add_f32 %s, %s, %s' % (v(L_), v(L_), v(SC + 4 * b + 3)))
    for n in range(8):
        a('v_cvt_pk_bf16_f32 %s, %s, %s' % (v(SC + n), v(SC + n), v(SC + n)))
    vOW, vOR, vOP, vXA, vXM, vYS, vW2o, vW2o2, vWoo = 40, 41, 42, 43, 44, 45, 46, 47, 125
    sOP, sOG, sW2, sWO, sYS = 88, 89, 100, 101, 15
    def tail_prep():
        redquads64([ML + 1, ML + 3], [T[0], T[1]], 'v_add_f32')
        a('s_cmp_eq_u32 %s, 0' % s(sW))
        a('s_cselect_b32 %s, -1, 0' % s(sT0))
        for b in range(2):
            a('v_and_b32 %s, %s, %s' % (v(ML + 2 * b), s(sT0), v(vMC + b)))
        a('s_mul_i32 %s, %s, %d' % (s(sT0), s(sW), OP))
        a('v_mov_b32 %s, %s' % (v(T[0]), s(sT0)))
        a('ds_write_b128 %s, %s offset:%d' % (v(T[0]), v(ML, 4), OBUF + 1024))
        a('v_lshrrev_b32 %s, 5, %s' % (v(T[1]), v(vL)))
        a('v_lshlrev_b32 %s, 5, %s' % (v(T[2]), v(vN)))
        a('v_and_b32 %s, 16, %s' % (v(T[3]), v(vL)))
        a('v_add_u32 %s, %s, %s' % (v(T[2]), v(T[2]), v(T[3])))
        a('v_lshl_add_u32 %s, %s, 9, %s' % (v(vOW), v(T[1]), v(T[2])))
        a('v_add_u32 %s, %s, %s' % (v(vOW), s(sT0), v(vOW)))
        a('v_mul_u32_u24 %s, 0x900, %s' % (v(T[1]), v(T[1])))
        a('v_add_u32 %s, %s, %s' % (v(vYS), v(T[1]), v(T[2])))
        a('s_cmp_eq_u32 %s, 4' % s(sW))
        a('s_cselect_b32 %s, 8, 16' % s(sT1))
        a('s_cmp_gt_u32 %s, 4' % s(sW))
        a('s_cselect_b32 %s, 0, %s' % (s(sT1), s(sT1)))
        oob_unless(vYS, vYS, 'v_cmp_gt_u32 vcc, %s, %s' % (s(sT1), v(vN)))
        a('v_mul_u32_u24 %s, 0x1200, %s' % (v(T[1]), v(vG)))
        a('v_lshl_add_u32 %s, %s, 4, %s' % (v(T[1]), v(vN), v(T[1])))
        a('v_cndmask_b32 %s, %s, %s, vcc' % (v(vWoo), v(T[11]), v(T[1])))
        a('v_mul_u32_u24 %s, 0x1680, %s' % (v(T[1]), v(vG)))
        a('v_lshl_add_u32 %s, %s, 4, %s' % (v(T[1]), v(vN), v(T[1])))
        a('v_cndmask_b32 %s, %s, %s, vcc' % (v(vW2o), v(T[11]), v(T[1])))
        oob_unless(vW2o2, vW2o, 'v_cmp_gt_u32 vcc, 48, %s' % v(vL))
        a('s_lshl_b32 %s, %s, 8' % (s(sT1), s(sW)))
        a('s_mul_i32 %s, %s, 0x480' % (s(sW2), s(sC0)))
        a('s_add_u32 %s, %s, %s' % (s(sW2), s(sW2), s(sT1)))
        a('s_add_u32 %s, %s, %s' % (s(sWO), s(sHG), s(sS)))
        a('s_mul_i32 %s, %s, %d' % (s(sWO), s(sWO), 16 * 1152))
        a('s_add_u32 %s, %s, %s' % (s(sWO), s(sWO), s(sT1)))
        a('s_mul_i32 %s, s2, 4608' % s(sYS))
        a('s_lshl_b32 %s, %s, 9' % (s(sT1), s(sW)))
        a('s_add_u32 %s, %s, %s' % (s(sYS), s(sYS), s(sT1)))
        a('v_min_u32 %s, 129, v0' % v(vOR))
        a('v_lshlrev_b32 %s, 3, %s' % (v(vOR), v(vOR)))
        a('v_lshlrev_b32 %s, 4, v0' % v(vOP))
        oob_unless(vOP, vOP, 'v_cmp_gt_u32 vcc, 130, v0')
        a('s_add_u32 %s, %s, %s' % (s(sOP), s(sHG), s(sS)))
        a('s_mul_i32 %s, %s, %d' % (s(sOP), s(sOP), OXP))
        a('s_add_u32 %s, %s, 0x%x' % (s(sOP), s(sOP), OX))
        a('s_mul_i32 %s, %s, %d' % (s(sOG), s(sHG), OXP))
        a('s_add_u32 %s, %s, 0x%x' % (s(sOG), s(sOG), OX))
        a('v_and_b32 %s, 7, %s' % (v(T[1]), v(vL)))
        a('v_mul_u32_u24 %s, 0x%x, %s' % (v(T[1]), OXP, v(T[1])))
        a('v_lshl_add_u32 %s, %s, 4, %s' % (v(vXM), v(vBB), v(T[1])))
        a('v_lshl_add_u32 %s, %s, 10, %s' % (v(vXA), v(vBB), v(T[1])))
        a('v_lshl_add_u32 %s, %s, 5, %s' % (v(vXA), v(vG), v(vXA)))
        a('s_lshl_b32 %s, %s, 7' % (s(sT1), s(sS)))
        a('v_add_u32 %s, %s, %s' % (v(vXA), s(sT1), v(vXA)))
    def check_counter():
        a.wait_vm('cntld')
        a('v_readfirstlane_b32 %s, %s' % (s(sT0), v(vCNT)))
        a('s_cmp_ge_u32 %s, 256' % s(sT0))
        a('s_cbranch_scc1 L_cnt_ok')
        a('s_mov_b32 %s, 0x%x' % (s(sSPIN), P.spin))
        a.label('L_cnt_spin')
        a('v_mov_b32 %s, 0' % v(T[0]))
        a.lines.append('    buffer_load_dword %s, %s, %s, 0 offen sc1' % (v(vCNT), v(T[0]), s(rDBG, 4)))
        a.lines.append('    s_waitcnt vmcnt(0)')
        a('v_readfirstlane_b32 %s, %s' % (s(sT0), v(vCNT)))
        a('s_sub_u32 %s, %s, 1' % (s(sSPIN), s(sSPIN)))
        a('s_cbranch_scc1 L_cnt_ok')
        a('s_cmp_lt_u32 %s, 256' % s(sT0))
        a('s_cbranch_scc1 L_cnt_spin')
        a.label('L_cnt_ok')
    WD = RB
    def deferred():
        for i in range(5):
            so = 1152 * i
            if i < 3:
                a('buffer_load_dwordx4 %s, %s, %s, %s offen offset:%d%s' % (v(WD + 4 * i, 4), v(vW2o), s(rW2, 4), s(sW2), so, wnt), tag='w2')
            else:
                if i == 3:
                    a('s_add_u32 %s, %s, %d' % (s(sW2), s(sW2), 3 * 1152))
                a('buffer_load_dwordx4 %s, %s, %s, %s offen offset:%d%s' % (v(WD + 4 * i, 4), v(vW2o2), s(rW2, 4), s(sW2), so - 3 * 1152, wnt), tag='w2')
        for i in range(4):
            a('buffer_load_dwordx4 %s, %s, %s, %s offen offset:%d%s' % (v(WD + 20 + 4 * i, 4), v(vWoo), s(rWO, 4), s(sWO), 1152 * i, wnt), tag='wo')
    did = False
    for n in range(8, 16):
        for r in range(4):
            j = 4 * n + r
            A = AF[r & 1]
            for d in range(4):
                a('v_and_b32_dpp %s, %s, %s row_newbcast:%d%s' % (v(A + d), v(SC + n - 8), v(MASK + d), 4 * r, DPP))
            step(j)
            mfma(OA[(n - 8) >> 2], A, RB + 4 * (j % RN), None if (n & 3) == 0 and r == 0 else 1)
            refill(j)
            if j == P.defer_at:
                assert j > 44
                deferred(); did = True
        if n == 8:
            tail_prep()
        if n == 11:
            check_counter()
    assert did
    stamp()
    a('s_mov_b32 %s, 0' % s(sM)); a('s_mov_b32 %s, -1' % s(sM + 1))
    for r in range(4):
        a('v_cndmask_b32 %s, %s, %s, %s' % (v(OA[0] + r), v(OA[0] + r), v(OA[1] + r), s(sM, 2)))
    a('ds_write_b128 %s, %s offset:%d' % (v(vOW), v(OA[0], 4), OBUF))
    a('s_waitcnt lgkmcnt(0)')
    a('s_barrier')
    a('s_cmp_gt_u32 %s, 2' % s(sW)); a('s_cbranch_scc1 L_pubbed')
    for w in range(8):
        a('ds_read_b64 %s, %s offset:%d' % (v(QR + 2 * w, 2), v(vOR), OBUF + OP * w))
    a('s_waitcnt lgkmcnt(0)')
    for st in (1, 2):
        for w in range(0, 8, 2 * st):
            for r in range(2):
                a('v_add_f32 %s, %s, %s' % (v(QR + 2 * w + r), v(QR + 2 * w + r), v(QR + 2 * (w + st) + r)))
    a('v_add_f32 %s, %s, %s' % (v(TAG), v(QR), v(QR + 8)))
    a('v_add_f32 %s, %s, %s' % (v(TAG + 2), v(QR + 1), v(QR + 9)))
    a.lines.append('    buffer_store_dwordx4 %s, %s, %s, %s offen sc1' % (v(TAG, 4), v(vOP), s(rWS, 4), s(sOP)))
    a.label('L_pubbed'); a.hist = []
    stamp()
    a('s_cmp_gt_u32 %s, 4' % s(sW)); a('s_cbranch_scc1 L_stored')
    XG = 48
    def o_gather(track):
        for txt in ('buffer_load_dwordx4 %s, %s, %s, %s offen sc1' % (v(XG, 4), v(vXA), s(rWS, 4), s(sOG)),
                    'buffer_load_dwordx4 %s, %s, %s, %s offen offset:16 sc1' % (v(XG + 4, 4), v(vXA), s(rWS, 4), s(sOG)),
                    'buffer_load_dwordx4 %s, %s, %s, %s offen offset:2048 sc1' % (v(XG + 8, 4), v(vXM), s(rWS, 4), s(sOG))):
            a.lines.append('    ' + txt)
    o_gather(False)
    a('s_waitcnt vmcnt(3)')
    for i in range(5):
        mfma(PACC, HF + 4 * i, WD + 4 * i, 1)
    a('v_mov_b32 %s, %s' % (v(T[6]), s(sG0))); a('v_mov_b32 %s, %s' % (v(T[5]), s(sG1)))
    a('v_cndmask_b32 %s, %s, %s, %s' % (v(T[6]), v(T[6]), v(T[5]), s(sBB, 2)))
    a.wait_vm0()
    spin('o', [XG, XG + 4, XG + 8], o_gather)
    stamp()
    MM = T[4]
    a('v_mov_b32 %s, %s' % (v(MM), v(XG + 8)))
    red8([MM], 'v_max_f32')
    a('v_sub_f32 %s, %s, %s' % (v(MM), v(XG + 8), v(MM)))
    a('v_exp_f32 %s, %s' % (v(MM), v(MM)))
    U = [XG, XG + 2, XG + 4, XG + 6]
    for x in U + [XG + 10]:
        a('v_mul_f32 %s, %s, %s' % (v(x), v(x), v(MM)))
    red8([XG + 10] + U, 'v_add_f32')
    a('v_rcp_f32 %s, %s' % (v(MM), v(XG + 10)))
    a('v_mul_f32 %s, %s, %s' % (v(MM), v(MM), v(T[6])))
    AQ = 16
    for i in range(4):
        a('v_mul_f32 %s, %s, %s' % (v(U[i]), v(U[i]), v(MM)))
    for i in range(4):
        a('v_cvt_pk_bf16_f32 %s, %s, %s' % (v(U[i]), v(U[i]), v(U[i])))
    for i in range(4):
        delta(AQ + 4 * i, U[i])
    for i in range(4):
        mfma(PACC, AQ + 4 * i, WD + 20 + 4 * i, 1)
    for r in range(4):
        a('v_min_u32 %s, -2, %s' % (v(PACC + r), v(PACC + r)))
    a('buffer_store_dwordx4 %s, %s, %s, %s offen sc1' % (v(PACC, 4), v(vYS), s(rWS, 4), s(sYS)))
    a.label('L_stored'); a.hist = []
    stamp()
    a('s_cmp_ge_u32 s2, 144'); a('s_cbranch_scc1 L_fin')
    if P.fbar:
        a('s_barrier')
    R, vo, t_ = 8, 12, 13
    a('v_lshrrev_b32 %s, 1, v0' % v(vo))
    a('v_mul_u32_u24 %s, 0x1200, %s' % (v(vo), v(vo)))
    a('v_and_b32 %s, 1, v0' % v(t_))
    a('v_lshl_add_u32 %s, %s, 4, %s' % (v(vo), v(t_), v(vo)))
    a('s_lshl_b32 %s, s2, 5' % s(sT0))
    a('s_mov_b32 %s, 0x%x' % (s(sSPIN), P.spin))
    a.label('L_poll')
    a('buffer_load_dwordx4 %s, %s, %s, %s offen sc1' % (v(R, 4), v(vo), s(rWS, 4), s(sT0)))
    a.wait_vm0()
    a('v_max3_u32 %s, %s, %s, %s' % (v(t_), v(R), v(R + 1), v(R + 2)))
    a('v_max_u32 %s, %s, %s' % (v(t_), v(t_), v(R + 3)))
    a('v_cmp_eq_u32 vcc, -1, %s' % v(t_))
    a('s_sub_u32 %s, %s, 1' % (s(sSPIN), s(sSPIN)))
    a('s_cbranch_scc1 L_poll_ok')
    a('s_cbranch_vccnz L_poll')
    a.label('L_poll_ok')
    for d in ('quad_perm:[2,3,0,1]', 'row_ror:4', 'row_ror:8'):
        for r in range(4):
            a('v_add_f32_dpp %s, %s, %s %s%s' % (v(R + r), v(R + r), v(R + r), d, DPP))
    a('v_and_b32 %s, 1, v0' % v(t_))
    a('v_lshlrev_b32 %s, 9, %s' % (v(t_), v(t_)))
    a('v_lshrrev_b32 %s, 4, v0' % v(vo))
    a('v_lshl_add_u32 %s, %s, 2, %s' % (v(t_), v(vo), v(t_)))
    a('s_mov_b32 exec_lo, 0x00030003'); a('s_mov_b32 exec_hi, 0x00030003')
    for r in range(4):
        a('ds_write_b32 %s, %s offset:%d' % (v(t_), v(R + r), RED + 128 * r))
    a('s_mov_b64 exec, -1')
    a('s_waitcnt lgkmcnt(0)')
    a('s_barrier')
    a('s_cmp_lg_u32 %s, 0' % s(sW)); a('s_cbranch_scc1 L_fin')
    a('v_lshlrev_b32 %s, 4, v0' % v(t_))
    a('ds_read_b128 %s, %s offset:%d' % (v(R, 4), v(t_), RED))
    a('v_lshrrev_b32 %s, 3, v0' % v(vo))
    a('v_lshlrev_b32 %s, 1, %s' % (v(vo), v(vo)))
    a('s_lshl_b32 %s, s2, 4' % s(sT0))
    a('v_add_u32 %s, %s, %s' % (v(vo), s(sT0), v(vo)))
    a('s_waitcnt lgkmcnt(0)')
    a('v_add_f32 %s, %s, %s' % (v(R), v(R), v(R + 1)))
    a('v_add_f32 %s, %s, %s' % (v(R + 2), v(R + 2), v(R + 3)))
    a('v_add_f32 %s, %s, %s' % (v(R), v(R), v(R + 2)))
    red8([R], 'v_add_f32')
    a('v_cvt_pk_bf16_f32 %s, %s, %s' % (v(R), v(R), v(R)))
    a('s_mov_b32 exec_lo, 0x01010101'); a('s_mov_b32 exec_hi, 0x01010101')
    a('global_store_short %s, %s, %s' % (v(vo), v(R), s(pOUT, 2)))
    a('s_cmp_lg_u32 s2, 0'); a('s_cbranch_scc1 L_fin')
    a('s_mov_b64 exec, 1')
    a('v_mov_b32 v14, %s' % s(sTG0)); a('v_mov_b32 v15, %s' % s(sTG1))
    a('v_mov_b32 v12, 0x%x' % EP)
    a('global_store_dwordx2 v12, v[14:15], %s sc1' % s(pWS, 2))
    a.label('L_fin'); a.hist = []
    stamp()
    stamp_flush()
    a.label('L_end')
    a('s_endpgm')
    a.raw('.section .rodata,"a"')
    a.raw('.p2align 6')
    a.raw('.amdhsa_kernel ' + K1)
    a.raw('  .amdhsa_next_free_vgpr 256')
    a.raw('  .amdhsa_next_free_sgpr 102')
    a.raw('  .amdhsa_accum_offset 256')
    a.raw('  .amdhsa_group_segment_fixed_size 0')
    a.raw('  .amdhsa_kernarg_size 112')
    a.raw('  .amdhsa_user_sgpr_count 2')
    a.raw('  .amdhsa_user_sgpr_kernarg_segment_ptr 1')
    a.raw('  .amdhsa_system_sgpr_workgroup_id_x 1')
    a.raw('  .amdhsa_float_denorm_mode_32 3')
    a.raw('.end_amdhsa_kernel')
    launch = '; @launch grid=(256,1,1) block=(512,1,1) lds=%d\n' % LDS_BYTES
    return HEADER + launch + a.text(), stampn[0]

def parse(argv=None):
    ap = argparse.ArgumentParser()
    ap.add_argument('-o', default=None)
    for k, d in (('depth', 4), ('batch', 2), ('k0', 4), ('p1', 1), ('p2', 3), ('p3', 5), ('dpro', 6), ('dmid', 6), ('w1nt', 0), ('kfl', 1), ('vfl', 1), ('wfl', 1),
                 ('diag', 0), ('prep_at', 5), ('defer_at', 61), ('fbar', 1)):
        ap.add_argument('--' + k, type=int, default=d)
    ap.add_argument('--spin', type=lambda x: int(x, 0), default=0x40000)
    return ap.parse_args(argv)

if __name__ == '__main__':
    P = parse()
    txt, ns = gen(P)
    out = P.o or os.path.join(os.path.dirname(os.path.abspath(__file__)), '..', 'cdna_kernels', NAME + '.s')
    open(out, 'w').write(txt)
    print('wrote', out, len(txt), 'bytes; stamps', ns, 'lds', LDS_BYTES)
```

```python
import sys, os, math, struct, argparse
sys.path.insert(0, os.path.dirname(os.path.abspath(__file__)))
from asmlib import Asm

NAME = 'gated_mix__mha_block_cached__mixer_channel_mlp__decode'
def f2u(x):
    return struct.unpack('<I', struct.pack('<f', x))[0]
HEADER = open(os.path.join(os.path.dirname(os.path.abspath(__file__)), '..', 'cdna_kernels', NAME + '.s.ref')).read().split('; Override launch')[0]

QPART, QG, HPART, QB, HB, MX, OBUF = 0, 8192, 16384, 24576, 25088, 25216, 25344
OP = 1040
RED = OBUF + 8 * OP + 64
RED = (RED + 15) // 16 * 16
LDS_BYTES = RED + 1024
PART_BYTES = 256 * 4608
QX = PART_BYTES
OX = QX + 256 * 2048
OXP = 2304
EP = OX + 256 * OXP
WS_BYTES = EP + 128
DIAG = 0x200000 + 0x200000
OOB = 0x80000000

def gen(P):
    a = Asm()
    FL = {0: '', 1: ' nt', 2: ' sc1', 3: ' sc0 sc1', 4: ' sc1 nt', 5: ' sc0 sc1 nt'}
    wnt = FL[P.wfl]
    w1nt = ' nt' if P.w1nt else ''
    D = P.depth
    vL, vKo, vVo = 1, 2, 3
    MASK = 4; AF = [8, 12]; BQ = 16; SC = 48; SACC = [56, 60]; OA = [64, 68]; PACC = 72
    HF = 76
    T = list(range(96, 108))
    vG, vN, vBB = 108, 109, 110
    TAG = 112
    vB2 = 116
    ML = 120
    vMC = 118
    RB = 128; RN = 32
    XQ = 16; WQ = 20; EV = 32
    W1R = 16 + 0
    XS, GW, XD = 76, 86, 34
    W1R = 48
    B1 = 44
    HACC = 76
    GQ = 64
    WD = 16
    sW, sH, sS, sC0, sKV, sT0, sT1, sT2 = 3, 4, 5, 7, 8, 9, 10, 11
    pX, pK, pV, pWQ, pWO, pW1, pB1, pW2, pB2, pGW, pOUT, pDBG, pWS = 16, 18, 20, 22, 24, 28, 30, 32, 34, 36, 38, 40, 42
    rK, rV, rWQ, rWO, rW1, rW2, rWS, rDBG, rB1, rB2 = 44, 48, 52, 56, 60, 64, 68, 72, 76, 96
    sMU0, sMU1, sRS0, sRS1, sG0, sG1 = 80, 81, 82, 83, 84, 85
    sHI, sC, sBB, sM = 90, 91, 92, 94
    sSPIN = 13; sST = 26; sHG = 6
    sTG0, sTG1 = 86, 87
    def v(n, k=1):
        return 'v%d' % n if k == 1 else 'v[%d:%d]' % (n, n + k - 1)
    def s(n, k=1):
        return 's%d' % n if k == 1 else 's[%d:%d]' % (n, n + k - 1)
    def srd(r, p, nbytes):
        a('s_mov_b32 %s, %s' % (s(r), s(p)))
        a('s_mov_b32 %s, %s' % (s(r + 1), s(p + 1)))
        a('s_mov_b32 %s, 0x%x' % (s(r + 2), nbytes))
        a('s_mov_b32 %s, 0x20000' % s(r + 3))
    def smask(val16):
        w = val16 | (val16 << 16)
        a('s_mov_b32 %s, 0x%x' % (s(sM), w)); a('s_mov_b32 %s, 0x%x' % (s(sM + 1), w))
    DPP = ' row_mask:0xf bank_mask:0xf'
    stampn = [0]
    def stamp():
        if P.probe >= 0:
            n = stampn[0]; stampn[0] += 1
            if n == 0 or n == P.probe:
                a('s_memrealtime %s' % s(sST, 2))
                a('s_waitcnt lgkmcnt(0)')
                a('v_writelane_b32 v127, %s, %d' % (s(sST), 0 if n == 0 else 1))
            return
        if not P.diag:
            return
        n = stampn[0]; stampn[0] += 1
        a('s_memrealtime %s' % s(sST, 2))
        a('s_waitcnt lgkmcnt(0)')
        a('v_writelane_b32 v127, %s, %d' % (s(sST), n))
    def stamp_flush():
        if P.probe > 0:
            a('s_cmp_lg_u32 s2, %d' % P.probe_wg); a('s_cbranch_scc1 L_end')
            a('s_cmp_lg_u32 %s, 0' % s(sW)); a('s_cbranch_scc1 L_end')
            a('v_readlane_b32 s100, v127, 0'); a('v_readlane_b32 s101, v127, 1')
            a('s_sub_u32 s100, s101, s100'); a('s_lshl_b32 s100, s100, 2'); a('s_min_u32 s100, s100, 40000')
            a('s_memrealtime %s' % s(sST, 2)); a('s_waitcnt lgkmcnt(0)'); a('s_mov_b32 s101, %s' % s(sST))
            a.label('L_probe')
            a('s_memrealtime %s' % s(sST, 2)); a('s_waitcnt lgkmcnt(0)')
            a('s_sub_u32 s99, %s, s101' % s(sST)); a('s_cmp_lt_u32 s99, s100'); a('s_cbranch_scc1 L_probe')
        if not P.diag:
            return
        a('s_mov_b64 exec, -1')
        a('s_lshl_b32 s100, s2, 3'); a('s_add_u32 s100, s100, %s' % s(sW)); a('s_lshl_b32 s100, s100, 7')
        a('s_add_u32 s100, s100, 0x%x' % DIAG)
        a('v_lshlrev_b32 v126, 2, %s' % v(vL))
        a('s_mov_b32 exec_hi, 0')
        a('buffer_store_dword v127, v126, %s, s100 offen' % s(rWS, 4))
    def red32(x, t, op):
        for d in ('quad_perm:[1,0,3,2]', 'quad_perm:[2,3,0,1]', 'row_ror:4', 'row_ror:8'):
            a('%s_dpp %s, %s, %s %s%s' % (op, v(x), v(x), v(x), d, DPP))
        a('v_mov_b32 %s, %s' % (v(t), v(x)))
        a('v_permlane16_swap_b32 %s, %s' % (v(x), v(t)))
        a('%s %s, %s, %s' % (op, v(x), v(x), v(t)))
    def redquads64(xs, ts, op):
        for d in ('row_ror:4', 'row_ror:8'):
            for x in xs:
                a('%s_dpp %s, %s, %s %s%s' % (op, v(x), v(x), v(x), d, DPP))
        for sw in ('v_permlane16_swap_b32', 'v_permlane32_swap_b32'):
            for x, t in zip(xs, ts):
                a('v_mov_b32 %s, %s' % (v(t), v(x)))
            for x, t in zip(xs, ts):
                a('%s %s, %s' % (sw, v(x), v(t)))
            for x, t in zip(xs, ts):
                a('%s %s, %s, %s' % (op, v(x), v(x), v(t)))
    def red8(xs, op):
        for d in ('quad_perm:[1,0,3,2]', 'quad_perm:[2,3,0,1]', 'row_half_mirror'):
            for x in xs:
                a('%s_dpp %s, %s, %s %s%s' % (op, v(x), v(x), v(x), d, DPP))
    def delta(dst, src):
        for d in range(4):
            a('v_and_b32 %s, %s, %s' % (v(dst + d), v(src), v(MASK + d)))
    def mfma(d, A, B, c=None):
        a('v_mfma_f32_16x16x32_bf16 %s, %s, %s, %s' % (v(d, 4), v(A, 4), v(B, 4), '0' if c is None else v(d, 4)))
    def oob_unless(dst, src, cmp):
        a(cmp)
        a('v_mov_b32 %s, 0x%x' % (v(T[11]), OOB))
        a('v_cndmask_b32 %s, %s, %s, vcc' % (v(dst), v(T[11]), v(src)))

    ip = [0]
    cp = [0]
    sG = 12
    def issue_one():
        j = ip[0]; ip[0] += 1
        assert j - RN < cp[0]
        n, i = j >> 2, j & 3
        if i == 0:
            g = n & 7
            a('s_add_u32 %s, %s, 0x%x' % (s(sG), s(sKV), ((g >> 2) << 25) + ((g & 3) << 15)))
        a('buffer_load_dwordx4 %s, %s, %s, %s offen offset:%d%s' % (
            v(RB + 4 * (j % RN), 4), v(vKo if j < 32 else vVo), s(rK if j < 32 else rV, 4), s(sG), 1024 * i, FL[P.kfl if j < 32 else P.vfl]), tag='L%d' % j)
    def pump(k, depth=None):
        a.wait_vm('L%d' % k)
        while ip[0] < min(64, k + 1 + (depth or D), cp[0] + RN):
            issue_one()

    K1 = NAME + '_kernel'
    a.raw('.amdgcn_target "amdgcn-amd-amdhsa--gfx950"')
    a.raw('.text'); a.raw('.globl ' + K1); a.raw('.p2align 8'); a.raw('.type %s,@function' % K1)
    a.label(K1)
    a('s_cmp_ge_u32 s2, 256'); a('s_cbranch_scc1 L_end')
    a('s_load_dwordx16 s[16:31], s[0:1], 0')
    a('s_load_dwordx8 s[32:39], s[0:1], 64')
    a('s_load_dwordx4 s[40:43], s[0:1], 96')
    a('v_lshrrev_b32 %s, 6, v0' % v(T[0]))
    a('v_and_b32 %s, 63, v0' % v(vL))
    a('v_readfirstlane_b32 %s, %s' % (s(sW), v(T[0])))
    a('s_and_b32 %s, s2, 7' % s(sT0))
    a('s_lshr_b32 %s, s2, 3' % s(sT1))
    a('s_and_b32 %s, %s, 3' % (s(sH), s(sT1)))
    a('s_lshl_b32 %s, %s, 2' % (s(sT2), s(sT0)))
    a('s_add_u32 %s, %s, %s' % (s(sH), s(sH), s(sT2)))
    a('s_lshr_b32 %s, %s, 2' % (s(sS), s(sT1)))
    a('s_mul_i32 %s, %s, 576' % (s(sC0), s(sT0)))
    a('s_mul_i32 %s, %s, 18' % (s(sT2), s(sT1)))
    a('s_add_u32 %s, %s, %s' % (s(sC0), s(sC0), s(sT2)))
    a('s_lshl_b32 %s, %s, 3' % (s(sHG), s(sH)))
    a('s_lshl_b32 %s, %s, 20' % (s(sKV), s(sH)))
    a('s_lshl_b32 %s, %s, 17' % (s(sT2), s(sS))); a('s_add_u32 %s, %s, %s' % (s(sKV), s(sKV), s(sT2)))
    a('s_lshl_b32 %s, %s, 12' % (s(sT2), s(sW))); a('s_add_u32 %s, %s, %s' % (s(sKV), s(sKV), s(sT2)))
    a('v_lshrrev_b32 %s, 4, %s' % (v(vG), v(vL)))
    a('v_and_b32 %s, 15, %s' % (v(vN), v(vL)))
    a('v_bfe_u32 %s, %s, 3, 1' % (v(vBB), v(vL)))
    a('v_lshlrev_b32 %s, 4, %s' % (v(vVo), v(vL)))
    a('v_bfe_u32 %s, %s, 2, 2' % (v(T[0]), v(vL)))
    a('v_lshlrev_b32 %s, 8, %s' % (v(vKo), v(T[0])))
    a('v_lshl_add_u32 %s, %s, 6, %s' % (v(vKo), v(vG), v(vKo)))
    a('v_and_b32 %s, 3, %s' % (v(T[0]), v(vL)))
    a('v_lshl_add_u32 %s, %s, 4, %s' % (v(vKo), v(T[0]), v(vKo)))
    a('s_mul_i32 %s, %s, 72' % (s(sT0), s(sS)))
    a('s_mul_i32 %s, %s, 9' % (s(sT1), s(sW)))
    a('s_add_u32 %s, %s, %s' % (s(sT0), s(sT0), s(sT1)))
    a('v_min_u32 %s, 2, %s' % (v(T[0]), v(vG)))
    a('v_mul_u32_u24 %s, 3, %s' % (v(T[0]), v(T[0])))
    a('v_mul_u32_u24 %s, 0x240, %s' % (v(T[1]), v(vBB)))
    a('v_add3_u32 %s, %s, %s, %s' % (v(T[1]), v(T[1]), v(T[0]), s(sT0)))
    a('v_lshlrev_b32 %s, 1, %s' % (v(T[1]), v(T[1])))
    a('v_lshlrev_b32 %s, 13, %s' % (v(T[2]), v(T[0])))
    a('v_lshl_add_u32 %s, %s, 4, %s' % (v(T[2]), v(vN), v(T[2])))
    oob_unless(T[2], T[2], 'v_cmp_gt_u32 vcc, 48, %s' % v(vL))
    a('s_lshl_b32 %s, %s, 13' % (s(sT0), s(sT0)))
    a('s_lshl_b32 %s, %s, 8' % (s(sT1), s(sH)))
    a('s_add_u32 %s, %s, %s' % (s(sT0), s(sT0), s(sT1)))
    a('s_add_u32 %s, %s, 0x2000' % (s(sT1), s(sT0)))
    a('s_add_u32 %s, %s, 0x4000' % (s(sT2), s(sT0)))
    a('v_mov_b32 %s, 0x%x' % (v(T[3]), EP))
    a('s_waitcnt lgkmcnt(0)')
    srd(rWQ, pWQ, 576 * 8192)
    srd(rK, pK, 1 << 26)
    if P.diag:
        a('v_mov_b32 v127, 0')
    stamp()
    for i, so in enumerate((sT0, sT1, sT2)):
        a('buffer_load_dwordx4 %s, %s, %s, %s offen%s' % (v(WQ + 4 * i, 4), v(T[2]), s(rWQ, 4), s(so), wnt), tag='wq')
    for i in range(3):
        a('global_load_ushort %s, %s, %s offset:%d' % (v(XQ + i), v(T[1]), s(pX, 2), 2 * i), tag='xq')
    a('global_load_dwordx2 %s, %s, %s sc1' % (v(EV, 2), v(T[3]), s(pWS, 2)), tag='ep')
    for _ in range(P.k0):
        issue_one()
    srd(rWS, pWS, (DIAG + 0x40000) if P.diag else WS_BYTES)
    vXd, vXs, vGw = T[4], T[5], T[6]
    a('v_mul_u32_u24 %s, 0x480, %s' % (v(vXd), v(vBB)))
    a('v_mad_u32_u24 %s, %s, 36, %s' % (v(vXd), v(vG), v(vXd)))
    a('s_mul_i32 %s, %s, 144' % (s(sT2), s(sW)))
    a('v_add_u32 %s, %s, %s' % (v(vXd), s(sT2), v(vXd)))
    a('v_and_b32 %s, 31, %s' % (v(vGw), v(vL)))
    a('v_mul_u32_u24 %s, 36, %s' % (v(vGw), v(vGw)))
    a('v_lshrrev_b32 %s, 5, %s' % (v(vXs), v(vL)))
    a('v_mul_u32_u24 %s, 0x480, %s' % (v(vXs), v(vXs)))
    a('v_add_u32 %s, %s, %s' % (v(vXs), v(vXs), v(vGw)))
    for (dst, off, base, tag) in ((XS, vXs, pX, 'xs'), (GW, vGw, pGW, 'gw'), (XD, vXd, pX, 'xd')):
        a('global_load_dwordx4 %s, %s, %s' % (v(dst, 4), v(off), s(base, 2)), tag=tag)
        a('global_load_dwordx4 %s, %s, %s offset:16' % (v(dst + 4, 4), v(off), s(base, 2)), tag=tag)
        a('global_load_dword %s, %s, %s offset:32' % (v(dst + 8), v(off), s(base, 2)), tag=tag)
    a('s_mov_b32 %s, 0xffff0000' % s(sHI))
    a('s_mov_b32 %s, 0x%x' % (s(sC), f2u(math.log2(math.e) / math.sqrt(128.0))))
    a('s_mov_b32 %s, 0xff00ff00' % s(sBB)); a('s_mov_b32 %s, 0xff00ff00' % s(sBB + 1))
    a('v_and_b32 %s, 1, %s' % (v(T[0]), v(vL)))
    a('v_lshlrev_b32 %s, 4, %s' % (v(T[0]), v(T[0])))
    a('v_mov_b32 %s, 0xffff' % v(T[7]))
    a('v_lshlrev_b32 %s, %s, %s' % (v(T[0]), v(T[0]), v(T[7])))
    for d in range(4):
        smask(0x0303 << (2 * d))
        a('v_cndmask_b32 %s, 0, %s, %s' % (v(MASK + d), v(T[0]), s(sM, 2)))
    vDW = T[8]
    a('v_lshrrev_b32 %s, 5, v0' % v(vDW))
    a('v_lshlrev_b32 %s, 9, %s' % (v(vDW), v(vDW)))
    a('v_lshl_add_u32 %s, %s, 5, %s' % (v(vDW), v(vN), v(vDW)))
    a('v_and_b32 %s, 16, %s' % (v(T[0]), v(vL)))
    a('v_add_u32 %s, %s, %s' % (v(vDW), v(vDW), v(T[0])))
    vPO = T[9]
    a('v_lshlrev_b32 %s, 4, v0' % v(vPO))
    oob_unless(vPO, vPO, 'v_cmp_gt_u32 vcc, 128, v0')
    a('v_and_b32 %s, 127, v0' % v(T[10]))
    a('v_lshlrev_b32 %s, 3, %s' % (v(T[10]), v(T[10])))
    a.wait_vm('ep')
    for i in range(3):
        a('v_lshl_or_b32 %s, %s, 16, %s' % (v(XQ + i), v(XQ + i), v(XQ + i)))
        delta(AF[i & 1], XQ + i)
        mfma(PACC, AF[i & 1], WQ + 4 * i, None if i == 0 else 1)
    a('v_add_u32 %s, 1, %s' % (v(TAG + 1), v(EV)))
    a('v_add_u32 %s, 0x9e3779b9, %s' % (v(TAG + 3), v(EV + 1)))
    a('ds_write_b128 %s, %s offset:%d' % (v(vDW), v(PACC, 4), QPART))
    a('v_readfirstlane_b32 %s, %s' % (s(sTG0), v(TAG + 1)))
    a('v_readfirstlane_b32 %s, %s' % (s(sTG1), v(TAG + 3)))
    a('s_add_u32 %s, %s, %s' % (s(sT0), s(sHG), s(sS)))
    a('s_lshl_b32 %s, %s, 11' % (s(sT0), s(sT0)))
    a('s_add_u32 %s, %s, 0x%x' % (s(sT0), s(sT0), QX))
    a('s_waitcnt lgkmcnt(0)')
    a('s_barrier')
    QR = 16
    for w in range(8):
        a('ds_read_b64 %s, %s offset:%d' % (v(QR + 2 * w, 2), v(T[10]), QPART + 1024 * w))
    a('s_waitcnt lgkmcnt(0)')
    for st in (1, 2):
        for w in range(0, 8, 2 * st):
            for r in range(2):
                a('v_add_f32 %s, %s, %s' % (v(QR + 2 * w + r), v(QR + 2 * w + r), v(QR + 2 * (w + st) + r)))
    a('v_add_f32 %s, %s, %s' % (v(TAG), v(QR), v(QR + 8)))
    a('v_add_f32 %s, %s, %s' % (v(TAG + 2), v(QR + 1), v(QR + 9)))
    a('buffer_store_dwordx4 %s, %s, %s, %s offen sc1' % (v(TAG, 4), v(vPO), s(rWS, 4), s(sT0)), tag='qpub')
    stamp()
    srd(rW1, pW1, 576 * 9216)
    vO, vO2 = T[4], T[5]
    a('v_mul_u32_u24 %s, 11, %s' % (v(T[0]), v(vN)))
    a('v_lshrrev_b32 %s, 5, %s' % (v(T[0]), v(T[0])))
    a('v_mul_u32_u24 %s, 3, %s' % (v(T[7]), v(T[0])))
    a('v_sub_u32 %s, %s, %s' % (v(T[7]), v(vN), v(T[7])))
    a('v_mad_u32_u24 %s, %s, 18, %s' % (v(T[0]), v(vG), v(T[0])))
    a('v_mul_u32_u24 %s, 0x2400, %s' % (v(vO), v(T[0])))
    a('v_lshl_add_u32 %s, %s, 4, %s' % (v(vO), v(T[7]), v(vO)))
    oob_unless(vO, vO, 'v_cmp_gt_u32 vcc, 15, %s' % v(vN))
    oob_unless(vO2, vO, 'v_cmp_gt_u32 vcc, 9, %s' % v(vN))
    a('s_mul_i32 %s, %s, %d' % (s(sT0), s(sW), 72 * 9216))
    a('s_lshl_b32 %s, %s, 1' % (s(sT1), s(sC0)))
    a('s_add_u32 %s, %s, %s' % (s(sT0), s(sT0), s(sT1)))
    for u in range(4):
        a('buffer_load_dwordx4 %s, %s, %s, %s offen%s' % (v(W1R + 4 * u, 4), v(vO if u < 3 else vO2), s(rW1, 4), s(sT0), w1nt), tag='w1')
        if u < 3:
            a('s_add_u32 %s, %s, %d' % (s(sT0), s(sT0), 5 * 9216))
    srd(rV, pV, 1 << 26)
    pump(P.p1)
    a('v_lshlrev_b32 %s, 4, v0' % v(vO))
    oob_unless(vO, vO, 'v_cmp_gt_u32 vcc, 288, v0')
    a('s_mul_i32 %s, s2, 4608' % s(sT0))
    for d in range(4):
        a('v_mov_b32 %s, -1' % v(AF[0] + d))
    a('buffer_store_dwordx4 %s, %s, %s, %s offen sc1' % (v(AF[0], 4), v(vO), s(rWS, 4), s(sT0)), tag='clear')
    srd(rB1, pB1, 9216)
    a('v_and_b32 %s, 1, %s' % (v(T[0]), v(vG)))
    a('v_lshlrev_b32 %s, 3, %s' % (v(T[0]), v(T[0])))
    a('v_lshl_add_u32 %s, %s, 4, %s' % (v(vO), v(vN), v(T[0])))
    a('s_lshl_b32 %s, %s, 1' % (s(sT1), s(sC0)))
    a('buffer_load_dwordx2 %s, %s, %s, %s offen' % (v(B1, 2), v(vO), s(rB1, 4), s(sT1)), tag='b1')
    srd(rB2, pB2, 1152)
    a('s_lshl_b32 %s, %s, 8' % (s(sT1), s(sW)))
    a('s_cmp_eq_u32 s2, 0')
    a('s_cselect_b32 %s, %s, 0x%x' % (s(sT1), s(sT1), OOB))
    a('v_add_u32 %s, %s, %s' % (v(vO), s(sT1), v(vO)))
    a('buffer_load_dwordx2 %s, %s, %s, 0 offen' % (v(vB2, 2), v(vO), s(rB2, 4)), tag='b2')
    srd(rWO, pWO, 4096 * 1152)
    srd(rW2, pW2, 4608 * 1152)
    srd(rDBG, pDBG, 256)
    a.wait_vm('gw')
    S1, GD, t0, t1, t2, t3 = T[4], T[5], T[6], T[7], T[0], T[1]
    a('v_mov_b32 %s, 0' % v(S1)); a('v_mov_b32 %s, 0' % v(GD))
    for k in range(9):
        a('v_lshlrev_b32 %s, 16, %s' % (v(t0), v(XS + k)))
        a('v_and_b32 %s, %s, %s' % (v(t1), s(sHI), v(XS + k)))
        a('v_lshlrev_b32 %s, 16, %s' % (v(t2), v(GW + k)))
        a('v_and_b32 %s, %s, %s' % (v(t3), s(sHI), v(GW + k)))
        a('v_add_f32 %s, %s, %s' % (v(S1), v(S1), v(t0)))
        a('v_fmac_f32 %s, %s, %s' % (v(GD), v(t0), v(t2)))
        a('v_add_f32 %s, %s, %s' % (v(S1), v(S1), v(t1)))
        a('v_fmac_f32 %s, %s, %s' % (v(GD), v(t1), v(t3)))
    red32(S1, t0, 'v_add_f32')
    red32(GD, t0, 'v_add_f32')
    pump(P.p2)
    a('v_mul_f32 %s, 0x%x, %s' % (v(S1), f2u(1.0 / 576), v(S1)))
    S2 = t3
    a('v_mov_b32 %s, 0' % v(S2))
    for k in range(9):
        a('v_lshlrev_b32 %s, 16, %s' % (v(t0), v(XS + k)))
        a('v_and_b32 %s, %s, %s' % (v(t1), s(sHI), v(XS + k)))
        a('v_sub_f32 %s, %s, %s' % (v(t0), v(t0), v(S1)))
        a('v_sub_f32 %s, %s, %s' % (v(t1), v(t1), v(S1)))
        a('v_fmac_f32 %s, %s, %s' % (v(S2), v(t0), v(t0)))
        a('v_fmac_f32 %s, %s, %s' % (v(S2), v(t1), v(t1)))
    red32(S2, t0, 'v_add_f32')
    a('v_mov_b32 %s, 0x%x' % (v(t0), f2u(1e-5)))
    a('v_fmac_f32 %s, 0x%x, %s' % (v(t0), f2u(1.0 / 576), v(S2)))
    a('v_rsq_f32 %s, %s' % (v(S2), v(t0)))
    a('v_mul_f32 %s, 0x%x, %s' % (v(GD), f2u(-math.log2(math.e)), v(GD)))
    a('v_exp_f32 %s, %s' % (v(GD), v(GD)))
    a('v_add_f32 %s, 1.0, %s' % (v(GD), v(GD)))
    a('v_rcp_f32 %s, %s' % (v(GD), v(GD)))
    a('v_readlane_b32 %s, %s, 0' % (s(sMU0), v(S1))); a('v_readlane_b32 %s, %s, 32' % (s(sMU1), v(S1)))
    a('v_readlane_b32 %s, %s, 0' % (s(sRS0), v(S2))); a('v_readlane_b32 %s, %s, 32' % (s(sRS1), v(S2)))
    a('v_readlane_b32 %s, %s, 0' % (s(sG0), v(GD))); a('v_readlane_b32 %s, %s, 32' % (s(sG1), v(GD)))
    MU, RS = T[4], T[5]
    a('v_mov_b32 %s, %s' % (v(MU), s(sMU0))); a('v_mov_b32 %s, %s' % (v(t0), s(sMU1)))
    a('v_cndmask_b32 %s, %s, %s, %s' % (v(MU), v(MU), v(t0), s(sBB, 2)))
    a('v_mov_b32 %s, %s' % (v(RS), s(sRS0))); a('v_mov_b32 %s, %s' % (v(t0), s(sRS1)))
    a('v_cndmask_b32 %s, %s, %s, %s' % (v(RS), v(RS), v(t0), s(sBB, 2)))
    a.wait_vm('L%d' % P.p3)
    sQG = 88
    a('s_add_u32 %s, %s, %s' % (s(sQG), s(sHG), s(sW)))
    a('s_lshl_b32 %s, %s, 11' % (s(sQG), s(sQG)))
    a('s_add_u32 %s, %s, 0x%x' % (s(sQG), s(sQG), QX))
    def q_gather(track):
        for k in range(2):
            txt = 'buffer_load_dwordx4 %s, %s, %s, %s offen offset:%d sc1' % (v(GQ + 4 * k, 4), v(vVo), s(rWS, 4), s(sQG), 1024 * k)
            if track:
                a(txt, tag='qg')
            else:
                a.lines.append('    ' + txt)
    q_gather(True)
    stamp()
    pump(P.p3)
    a.wait_vm('w1')
    for i in range(18):
        u, t = divmod(i, 5)
        A = AF[i & 1]
        if i & 1:
            a('v_and_b32 %s, %s, %s' % (v(t0), s(sHI), v(XD + i // 2)))
        else:
            a('v_lshlrev_b32 %s, 16, %s' % (v(t0), v(XD + i // 2)))
        a('v_sub_f32 %s, %s, %s' % (v(t0), v(t0), v(MU)))
        a('v_mul_f32 %s, %s, %s' % (v(t0), v(t0), v(RS)))
        a('v_cvt_pk_bf16_f32 %s, %s, %s' % (v(t0), v(t0), v(t0)))
        delta(A, t0)
        mfma(HACC + 4 * t, A, W1R + 4 * u, None if u == 0 else 1)
    a('v_lshlrev_b32 %s, 4, v0' % v(t1))
    for t in range(5):
        w = (0x7 << (3 * t)); w |= w << 16
        a('s_mov_b32 exec_lo, 0x%x' % w); a('s_mov_b32 exec_hi, 0x%x' % w)
        a('ds_write_b128 %s, %s offset:%d' % (v(t1), v(HACC + 4 * t, 4), HPART))
    a('s_mov_b64 exec, -1')
    def tagcheck(regs):
        first = True
        for r in regs:
            a('v_xor_b32 %s, %s, %s' % (v(T[2]), s(sTG0), v(r + 1)))
            a('v_xor_b32 %s, %s, %s' % (v(T[3]), s(sTG1), v(r + 3)))
            if first:
                a('v_or_b32 %s, %s, %s' % (v(T[0]), v(T[2]), v(T[3])))
            else:
                a('v_or3_b32 %s, %s, %s, %s' % (v(T[0]), v(T[0]), v(T[2]), v(T[3])))
            first = False
        a('v_cmp_ne_u32 vcc, 0, %s' % v(T[0]))
    def spin(name, regs, reload):
        tagcheck(regs)
        a('s_mov_b32 %s, 0x%x' % (s(sSPIN), P.spin))
        a('s_cbranch_vccz L_%s_ok' % name)
        a.label('L_%s_spin' % name)
        reload(False)
        a.lines.append('    s_waitcnt vmcnt(0)')
        tagcheck(regs)
        a('s_sub_u32 %s, %s, 1' % (s(sSPIN), s(sSPIN)))
        a('s_cbranch_scc1 L_%s_ok' % name)
        a('s_cbranch_vccnz L_%s_spin' % name)
        a.label('L_%s_ok' % name)
    a.wait_vm('qg')
    done = max([int(t_[1:]) for t_ in ['L-1'] ] + [j for j in range(ip[0]) if 'L%d' % j not in a.vm])
    pump(done, P.dpro)
    spin('q', [GQ, GQ + 4], q_gather)
    stamp()
    a('v_lshlrev_b32 %s, 3, %s' % (v(T[0]), v(vL)))
    a('s_lshl_b32 %s, %s, 10' % (s(sT0), s(sW)))
    a('v_add_u32 %s, %s, %s' % (v(T[0]), s(sT0), v(T[0])))
    a('v_add_u32 %s, %d, %s' % (v(T[0]), QG, v(T[0])))
    a('ds_write2_b32 %s, %s, %s offset0:0 offset1:1' % (v(T[0]), v(GQ), v(GQ + 2)))
    a('ds_write2_b32 %s, %s, %s offset0:128 offset1:129' % (v(T[0]), v(GQ + 4), v(GQ + 6)))
    a('s_waitcnt lgkmcnt(0)')
    a('s_barrier')
    a('v_mov_b32 %s, 0' % v(T[0]))
    oob_unless(T[0], T[0], 'v_cmp_eq_u32 vcc, 0, v0')
    a('v_mov_b32 %s, 1' % v(T[4]))
    a('buffer_atomic_add %s, %s, %s, 0 offen sc1' % (v(T[4]), v(T[0]), s(rDBG, 4)), tag='cnt')
    a('s_cmp_gt_u32 %s, 4' % s(sW)); a('s_cbranch_scc1 L_bar2')
    a('s_cmp_eq_u32 %s, 4' % s(sW)); a('s_cbranch_scc1 L_hfin')
    a('v_lshlrev_b32 %s, 2, v0' % v(T[0]))
    for w in range(8):
        a('ds_read_b32 %s, %s offset:%d' % (v(BQ + w), v(T[0]), QG + 1024 * w))
    a('s_waitcnt lgkmcnt(0)')
    for st in (1, 2, 4):
        for w in range(0, 8, 2 * st):
            a('v_add_f32 %s, %s, %s' % (v(BQ + w), v(BQ + w), v(BQ + w + st)))
    a('v_cvt_pk_bf16_f32 %s, %s, %s' % (v(BQ), v(BQ), v(BQ)))
    a('v_lshlrev_b32 %s, 1, v0' % v(T[0]))
    a('ds_write_b16 %s, %s offset:%d' % (v(T[0]), v(BQ), QB))
    a('s_branch L_bar2')
    a.label('L_hfin'); a.hist = []
    hregs = [48 + 4 * k for k in range(8)]
    for w in range(8):
        a('ds_read_b128 %s, %s offset:%d' % (v(hregs[w], 4), v(vVo), HPART + 1024 * w))
    a('s_waitcnt lgkmcnt(0)')
    for st in (1, 2, 4):
        for w in range(0, 8, 2 * st):
            for r in range(4):
                a('v_add_f32 %s, %s, %s' % (v(hregs[w] + r), v(hregs[w] + r), v(hregs[w + st] + r)))
    H = hregs[0]; HA = hregs[1]
    for r in range(4):
        a('v_add_f32_dpp %s, %s, %s row_shl:3%s bound_ctrl:0' % (v(HA + r), v(H + r), v(H + r), DPP))
    for r in range(4):
        a('v_add_f32_dpp %s, %s, %s row_shl:6%s bound_ctrl:0' % (v(HA + r), v(HA + r), v(HA + r), DPP))
    for r in range(4):
        a('v_add_f32_dpp %s, %s, %s row_shl:12%s bound_ctrl:0' % (v(HA + r), v(H + r), v(HA + r), DPP))
    assert 'b1' not in a.vm
    for r in range(4):
        if r & 1:
            a('v_and_b32 %s, %s, %s' % (v(H + r), s(sHI), v(B1 + r // 2)))
        else:
            a('v_lshlrev_b32 %s, 16, %s' % (v(H + r), v(B1 + r // 2)))
        a('v_add_f32 %s, %s, %s' % (v(HA + r), v(HA + r), v(H + r)))
    a('v_mov_b32 %s, %s' % (v(T[0]), s(sG0))); a('v_mov_b32 %s, %s' % (v(T[4]), s(sG1)))
    a('v_cmp_lt_u32 vcc, 31, %s' % v(vL))
    a('v_cndmask_b32 %s, %s, %s, vcc' % (v(T[0]), v(T[0]), v(T[4])))
    a('v_sub_f32 %s, 1.0, %s' % (v(T[0]), v(T[0])))
    kz = -2.0 * math.sqrt(2.0 / math.pi) * math.log2(math.e)
    steps = [
        lambda x, z: a('v_mul_f32 %s, %s, %s' % (v(z), v(x), v(x))),
        lambda x, z: a('v_mul_f32 %s, 0x%x, %s' % (v(z), f2u(0.044715), v(z))),
        lambda x, z: a('v_add_f32 %s, 1.0, %s' % (v(z), v(z))),
        lambda x, z: a('v_mul_f32 %s, %s, %s' % (v(z), v(z), v(x))),
        lambda x, z: a('v_mul_f32 %s, 0x%x, %s' % (v(z), f2u(kz), v(z))),
        lambda x, z: a('v_exp_f32 %s, %s' % (v(z), v(z))),
        lambda x, z: a('v_add_f32 %s, 1.0, %s' % (v(z), v(z))),
        lambda x, z: a('v_rcp_f32 %s, %s' % (v(z), v(z))),
        lambda x, z: a('v_mul_f32 %s, %s, %s' % (v(x), v(x), v(T[0]))),
        lambda x, z: a('v_mul_f32 %s, %s, %s' % (v(x), v(x), v(z))),
    ]
    for st in steps:
        for r in range(4):
            st(HA + r, H + r)
    a('v_cvt_pk_bf16_f32 %s, %s, %s' % (v(H), v(HA), v(HA + 1)))
    a('v_cvt_pk_bf16_f32 %s, %s, %s' % (v(H + 1), v(HA + 2), v(HA + 3)))
    a('v_lshrrev_b32 %s, 5, %s' % (v(T[0]), v(vL)))
    a('v_mul_u32_u24 %s, 48, %s' % (v(T[0]), v(T[0])))
    a('v_lshl_add_u32 %s, %s, 4, %s' % (v(T[0]), v(vN), v(T[0])))
    a('v_and_b32 %s, 1, %s' % (v(T[4]), v(vG)))
    a('v_lshl_add_u32 %s, %s, 3, %s' % (v(T[0]), v(T[4]), v(T[0])))
    a('s_mov_b32 exec_lo, 0x00070007'); a('s_mov_b32 exec_hi, 0x00070007')
    a('ds_write_b64 %s, %s offset:%d' % (v(T[0]), v(H, 2), HB))
    a('s_mov_b64 exec, -1')
    a.label('L_bar2'); a.hist = []
    a('s_waitcnt lgkmcnt(0)')
    a('s_barrier')
    a('v_and_b32 %s, 3, %s' % (v(T[0]), v(vL)))
    a('v_lshl_add_u32 %s, %s, 2, %s' % (v(T[0]), v(vG), v(T[0])))
    a('v_lshlrev_b32 %s, 4, %s' % (v(T[0]), v(T[0])))
    a('ds_read_b128 %s, %s offset:%d' % (v(AF[0], 4), v(T[0]), QB))
    a('ds_read_b128 %s, %s offset:%d' % (v(AF[1], 4), v(T[0]), QB + 256))
    a('v_mul_u32_u24 %s, 48, %s' % (v(T[0]), v(vBB)))
    a('v_mad_u32_u24 %s, %s, 10, %s' % (v(T[0]), v(vG), v(T[0])))
    for i in range(5):
        a('ds_read_u16 %s, %s offset:%d' % (v(T[1 + i]), v(T[0]), HB + 2 * i))
    a('s_waitcnt lgkmcnt(5)')
    for i in range(4):
        smask(0xf << (4 * i))
        for b in range(2):
            for d in range(4):
                a('v_cndmask_b32 %s, 0, %s, %s' % (v(BQ + 16 * b + 4 * i + d), v(AF[b] + d), s(sM, 2)))
    stamp()
    def late_prep():
        a('s_waitcnt lgkmcnt(0)')
        a('v_cmp_gt_u32 vcc, 48, %s' % v(vL))
        for i in range(5):
            if i >= 3:
                a('v_cndmask_b32 %s, 0, %s, vcc' % (v(T[1 + i]), v(T[1 + i])))
            a('v_lshl_or_b32 %s, %s, 16, %s' % (v(T[1 + i]), v(T[1 + i]), v(T[1 + i])))
            delta(HF + 4 * i, T[1 + i])
        assert 'b2' not in a.vm
        a('v_mov_b32 %s, %s' % (v(T[0]), s(sG0))); a('v_mov_b32 %s, %s' % (v(T[1]), s(sG1)))
        a('v_cmp_lt_u32 vcc, 31, %s' % v(vL))
        a('v_cndmask_b32 %s, %s, %s, vcc' % (v(T[0]), v(T[0]), v(T[1])))
        a('v_sub_f32 %s, 1.0, %s' % (v(T[0]), v(T[0])))
        for r in range(4):
            if r & 1:
                a('v_and_b32 %s, %s, %s' % (v(PACC + r), s(sHI), v(vB2 + r // 2)))
            else:
                a('v_lshlrev_b32 %s, 16, %s' % (v(PACC + r), v(vB2 + r // 2)))
            a('v_mul_f32 %s, %s, %s' % (v(PACC + r), v(PACC + r), v(T[0])))
    def score(n):
        acc = SACC[n & 1]
        a('v_mov_b32_dpp %s, %s quad_perm:[0,0,0,0]%s' % (v(SC + n), v(acc), DPP))
        for c in range(1, 4):
            a('v_add_f32_dpp %s, %s, %s quad_perm:[%d,%d,%d,%d]%s' % (v(SC + n), v(acc + c), v(SC + n), c, c, c, c, DPP))
    B = P.batch
    def step(j, depth=None):
        a.wait_vm('L%d' % j)
    def refill(j, depth=None):
        cp[0] = j + 1
        if (j + 1) % B == 0:
            while ip[0] < min(64, j + 1 + (depth or D)):
                issue_one()
    vCNT = 124
    for n in range(8):
        for i in range(4):
            j = 4 * n + i
            step(j)
            mfma(SACC[n & 1], RB + 4 * (j % RN), BQ + 16 * (n >> 2) + 4 * i, None if i == 0 else 1)
            refill(j, P.dmid if j == 31 else None)
        if n > 0:
            score(n - 1)
        if n == P.prep_at:
            late_prep()
    score(7)
    stamp()
    for b in range(2):
        a('v_max3_f32 %s, %s, %s, %s' % (v(vMC + b), v(SC + 4 * b), v(SC + 4 * b + 1), v(SC + 4 * b + 2)))
        a('v_max_f32 %s, %s, %s' % (v(vMC + b), v(vMC + b), v(SC + 4 * b + 3)))
    redquads64([vMC, vMC + 1], [T[0], T[1]], 'v_max_f32')
    a('s_lshl_b32 %s, %s, 3' % (s(sT0), s(sW)))
    a('v_mov_b32 %s, %s' % (v(T[0]), s(sT0)))
    a('ds_write_b64 %s, %s offset:%d' % (v(T[0]), v(vMC, 2), MX))
    a('v_and_b32 %s, 7, %s' % (v(T[1]), v(vL)))
    a('v_lshlrev_b32 %s, 3, %s' % (v(T[1]), v(T[1])))
    a('v_mov_b32 %s, 0' % v(T[2]))
    a('buffer_load_dword %s, %s, %s, 0 offen sc1' % (v(vCNT), v(T[2]), s(rDBG, 4)), tag='cntld')
    a('s_waitcnt lgkmcnt(0)')
    a('s_barrier')
    a('ds_read_b64 %s, %s offset:%d' % (v(vMC, 2), v(T[1]), MX))
    a('s_waitcnt lgkmcnt(0)')
    red8([vMC, vMC + 1], 'v_max_f32')
    for b in range(2):
        a('v_mul_f32 %s, %s, %s' % (v(vMC + b), s(sC), v(vMC + b)))
    for n in range(8):
        a('v_fma_f32 %s, %s, %s, -%s' % (v(SC + n), v(SC + n), s(sC), v(vMC + (n >> 2))))
    for n in range(8):
        a('v_exp_f32 %s, %s' % (v(SC + n), v(SC + n)))
    for b in range(2):
        L_ = ML + 2 * b + 1
        a('v_add_f32 %s, %s, %s' % (v(L_), v(SC + 4 * b), v(SC + 4 * b + 1)))
        a('v_add_f32 %s, %s, %s' % (v(L_), v(L_), v(SC + 4 * b + 2)))
        a('v_add_f32 %s, %s, %s' % (v(L_), v(L_), v(SC + 4 * b + 3)))
    for n in range(8):
        a('v_cvt_pk_bf16_f32 %s, %s, %s' % (v(SC + n), v(SC + n), v(SC + n)))
    vOW, vOR, vOP, vXA, vXM, vYS, vW2o, vW2o2, vWoo = 40, 41, 42, 43, 44, 45, 46, 47, 125
    sOP, sOG, sW2, sWO, sYS = 88, 89, 100, 101, 15
    def tail_prep():
        redquads64([ML + 1, ML + 3], [T[0], T[1]], 'v_add_f32')
        a('s_cmp_eq_u32 %s, 0' % s(sW))
        a('s_cselect_b32 %s, -1, 0' % s(sT0))
        for b in range(2):
            a('v_and_b32 %s, %s, %s' % (v(ML + 2 * b), s(sT0), v(vMC + b)))
        a('s_mul_i32 %s, %s, %d' % (s(sT0), s(sW), OP))
        a('v_mov_b32 %s, %s' % (v(T[0]), s(sT0)))
        a('ds_write_b128 %s, %s offset:%d' % (v(T[0]), v(ML, 4), OBUF + 1024))
        a('v_lshrrev_b32 %s, 5, %s' % (v(T[1]), v(vL)))
        a('v_lshlrev_b32 %s, 5, %s' % (v(T[2]), v(vN)))
        a('v_and_b32 %s, 16, %s' % (v(T[3]), v(vL)))
        a('v_add_u32 %s, %s, %s' % (v(T[2]), v(T[2]), v(T[3])))
        a('v_lshl_add_u32 %s, %s, 9, %s' % (v(vOW), v(T[1]), v(T[2])))
        a('v_add_u32 %s, %s, %s' % (v(vOW), s(sT0), v(vOW)))
        a('v_mul_u32_u24 %s, 0x900, %s' % (v(T[1]), v(T[1])))
        a('v_add_u32 %s, %s, %s' % (v(vYS), v(T[1]), v(T[2])))
        a('s_cmp_eq_u32 %s, 4' % s(sW))
        a('s_cselect_b32 %s, 8, 16' % s(sT1))
        a('s_cmp_gt_u32 %s, 4' % s(sW))
        a('s_cselect_b32 %s, 0, %s' % (s(sT1), s(sT1)))
        oob_unless(vYS, vYS, 'v_cmp_gt_u32 vcc, %s, %s' % (s(sT1), v(vN)))
        a('v_mul_u32_u24 %s, 0x1200, %s' % (v(T[1]), v(vG)))
        a('v_lshl_add_u32 %s, %s, 4, %s' % (v(T[1]), v(vN), v(T[1])))
        a('v_cndmask_b32 %s, %s, %s, vcc' % (v(vWoo), v(T[11]), v(T[1])))
        a('v_mul_u32_u24 %s, 0x1680, %s' % (v(T[1]), v(vG)))
        a('v_lshl_add_u32 %s, %s, 4, %s' % (v(T[1]), v(vN), v(T[1])))
        a('v_cndmask_b32 %s, %s, %s, vcc' % (v(vW2o), v(T[11]), v(T[1])))
        oob_unless(vW2o2, vW2o, 'v_cmp_gt_u32 vcc, 48, %s' % v(vL))
        a('s_lshl_b32 %s, %s, 8' % (s(sT1), s(sW)))
        a('s_mul_i32 %s, %s, 0x480' % (s(sW2), s(sC0)))
        a('s_add_u32 %s, %s, %s' % (s(sW2), s(sW2), s(sT1)))
        a('s_add_u32 %s, %s, %s' % (s(sWO), s(sHG), s(sS)))
        a('s_mul_i32 %s, %s, %d' % (s(sWO), s(sWO), 16 * 1152))
        a('s_add_u32 %s, %s, %s' % (s(sWO), s(sWO), s(sT1)))
        a('s_mul_i32 %s, s2, 4608' % s(sYS))
        a('s_lshl_b32 %s, %s, 9' % (s(sT1), s(sW)))
        a('s_add_u32 %s, %s, %s' % (s(sYS), s(sYS), s(sT1)))
        a('v_min_u32 %s, 129, v0' % v(vOR))
        a('v_lshlrev_b32 %s, 3, %s' % (v(vOR), v(vOR)))
        a('v_lshlrev_b32 %s, 4, v0' % v(vOP))
        oob_unless(vOP, vOP, 'v_cmp_gt_u32 vcc, 130, v0')
        a('s_add_u32 %s, %s, %s' % (s(sOP), s(sHG), s(sS)))
        a('s_mul_i32 %s, %s, %d' % (s(sOP), s(sOP), OXP))
        a('s_add_u32 %s, %s, 0x%x' % (s(sOP), s(sOP), OX))
        a('s_mul_i32 %s, %s, %d' % (s(sOG), s(sHG), OXP))
        a('s_add_u32 %s, %s, 0x%x' % (s(sOG), s(sOG), OX))
        a('v_and_b32 %s, 7, %s' % (v(T[1]), v(vL)))
        a('v_mul_u32_u24 %s, 0x%x, %s' % (v(T[1]), OXP, v(T[1])))
        a('v_lshl_add_u32 %s, %s, 4, %s' % (v(vXM), v(vBB), v(T[1])))
        a('v_lshl_add_u32 %s, %s, 10, %s' % (v(vXA), v(vBB), v(T[1])))
        a('v_lshl_add_u32 %s, %s, 5, %s' % (v(vXA), v(vG), v(vXA)))
        a('s_lshl_b32 %s, %s, 7' % (s(sT1), s(sS)))
        a('v_add_u32 %s, %s, %s' % (v(vXA), s(sT1), v(vXA)))
    def check_counter():
        a.wait_vm('cntld')
        a('v_readfirstlane_b32 %s, %s' % (s(sT0), v(vCNT)))
        a('s_cmp_ge_u32 %s, 256' % s(sT0))
        a('s_cbranch_scc1 L_cnt_ok')
        a('s_mov_b32 %s, 0x%x' % (s(sSPIN), P.spin))
        a.label('L_cnt_spin')
        a('v_mov_b32 %s, 0' % v(T[0]))
        a.lines.append('    buffer_load_dword %s, %s, %s, 0 offen sc1' % (v(vCNT), v(T[0]), s(rDBG, 4)))
        a.lines.append('    s_waitcnt vmcnt(0)')
        a('v_readfirstlane_b32 %s, %s' % (s(sT0), v(vCNT)))
        a('s_sub_u32 %s, %s, 1' % (s(sSPIN), s(sSPIN)))
        a('s_cbranch_scc1 L_cnt_ok')
        a('s_cmp_lt_u32 %s, 256' % s(sT0))
        a('s_cbranch_scc1 L_cnt_spin')
        a.label('L_cnt_ok')
    WD = RB
    def deferred():
        for i in range(5):
            so = 1152 * i
            if i < 3:
                a('buffer_load_dwordx4 %s, %s, %s, %s offen offset:%d%s' % (v(WD + 4 * i, 4), v(vW2o), s(rW2, 4), s(sW2), so, wnt), tag='w2')
            else:
                if i == 3:
                    a('s_add_u32 %s, %s, %d' % (s(sW2), s(sW2), 3 * 1152))
                a('buffer_load_dwordx4 %s, %s, %s, %s offen offset:%d%s' % (v(WD + 4 * i, 4), v(vW2o2), s(rW2, 4), s(sW2), so - 3 * 1152, wnt), tag='w2')
        for i in range(4):
            a('buffer_load_dwordx4 %s, %s, %s, %s offen offset:%d%s' % (v(WD + 20 + 4 * i, 4), v(vWoo), s(rWO, 4), s(sWO), 1152 * i, wnt), tag='wo')
    did = False
    for n in range(8, 16):
        for r in range(4):
            j = 4 * n + r
            A = AF[r & 1]
            for d in range(4):
                a('v_and_b32_dpp %s, %s, %s row_newbcast:%d%s' % (v(A + d), v(SC + n - 8), v(MASK + d), 4 * r, DPP))
            step(j)
            mfma(OA[(n - 8) >> 2], A, RB + 4 * (j % RN), None if (n & 3) == 0 and r == 0 else 1)
            refill(j)
            if j == P.defer_at:
                assert j > 44
                deferred(); did = True
        if n == 8:
            tail_prep()
        if n == 11:
            check_counter()
    assert did
    stamp()
    a('s_mov_b32 %s, 0' % s(sM)); a('s_mov_b32 %s, -1' % s(sM + 1))
    for r in range(4):
        a('v_cndmask_b32 %s, %s, %s, %s' % (v(OA[0] + r), v(OA[0] + r), v(OA[1] + r), s(sM, 2)))
    a('ds_write_b128 %s, %s offset:%d' % (v(vOW), v(OA[0], 4), OBUF))
    a('s_waitcnt lgkmcnt(0)')
    a('s_barrier')
    a('s_cmp_gt_u32 %s, 2' % s(sW)); a('s_cbranch_scc1 L_pubbed')
    for w in range(8):
        a('ds_read_b64 %s, %s offset:%d' % (v(QR + 2 * w, 2), v(vOR), OBUF + OP * w))
    a('s_waitcnt lgkmcnt(0)')
    for st in (1, 2):
        for w in range(0, 8, 2 * st):
            for r in range(2):
                a('v_add_f32 %s, %s, %s' % (v(QR + 2 * w + r), v(QR + 2 * w + r), v(QR + 2 * (w + st) + r)))
    a('v_add_f32 %s, %s, %s' % (v(TAG), v(QR), v(QR + 8)))
    a('v_add_f32 %s, %s, %s' % (v(TAG + 2), v(QR + 1), v(QR + 9)))
    a.lines.append('    buffer_store_dwordx4 %s, %s, %s, %s offen sc1' % (v(TAG, 4), v(vOP), s(rWS, 4), s(sOP)))
    a.label('L_pubbed'); a.hist = []
    stamp()
    a('s_cmp_gt_u32 %s, 4' % s(sW)); a('s_cbranch_scc1 L_stored')
    XG = 48
    def o_gather(track):
        for txt in ('buffer_load_dwordx4 %s, %s, %s, %s offen sc1' % (v(XG, 4), v(vXA), s(rWS, 4), s(sOG)),
                    'buffer_load_dwordx4 %s, %s, %s, %s offen offset:16 sc1' % (v(XG + 4, 4), v(vXA), s(rWS, 4), s(sOG)),
                    'buffer_load_dwordx4 %s, %s, %s, %s offen offset:2048 sc1' % (v(XG + 8, 4), v(vXM), s(rWS, 4), s(sOG))):
            a.lines.append('    ' + txt)
    o_gather(False)
    a('s_waitcnt vmcnt(3)')
    for i in range(5):
        mfma(PACC, HF + 4 * i, WD + 4 * i, 1)
    a('v_mov_b32 %s, %s' % (v(T[6]), s(sG0))); a('v_mov_b32 %s, %s' % (v(T[5]), s(sG1)))
    a('v_cndmask_b32 %s, %s, %s, %s' % (v(T[6]), v(T[6]), v(T[5]), s(sBB, 2)))
    a.wait_vm0()
    spin('o', [XG, XG + 4, XG + 8], o_gather)
    stamp()
    MM = T[4]
    a('v_mov_b32 %s, %s' % (v(MM), v(XG + 8)))
    red8([MM], 'v_max_f32')
    a('v_sub_f32 %s, %s, %s' % (v(MM), v(XG + 8), v(MM)))
    a('v_exp_f32 %s, %s' % (v(MM), v(MM)))
    U = [XG, XG + 2, XG + 4, XG + 6]
    for x in U + [XG + 10]:
        a('v_mul_f32 %s, %s, %s' % (v(x), v(x), v(MM)))
    red8([XG + 10] + U, 'v_add_f32')
    a('v_rcp_f32 %s, %s' % (v(MM), v(XG + 10)))
    a('v_mul_f32 %s, %s, %s' % (v(MM), v(MM), v(T[6])))
    AQ = 16
    for i in range(4):
        a('v_mul_f32 %s, %s, %s' % (v(U[i]), v(U[i]), v(MM)))
    for i in range(4):
        a('v_cvt_pk_bf16_f32 %s, %s, %s' % (v(U[i]), v(U[i]), v(U[i])))
    for i in range(4):
        delta(AQ + 4 * i, U[i])
    for i in range(4):
        mfma(PACC, AQ + 4 * i, WD + 20 + 4 * i, 1)
    for r in range(4):
        a('v_min_u32 %s, -2, %s' % (v(PACC + r), v(PACC + r)))
    a('buffer_store_dwordx4 %s, %s, %s, %s offen sc1' % (v(PACC, 4), v(vYS), s(rWS, 4), s(sYS)))
    a.label('L_stored'); a.hist = []
    stamp()
    a('s_cmp_ge_u32 s2, 144'); a('s_cbranch_scc1 L_fin')
    if P.fbar:
        a('s_barrier')
    R, vo, t_ = 8, 12, 13
    a('v_lshrrev_b32 %s, 1, v0' % v(vo))
    a('v_mul_u32_u24 %s, 0x1200, %s' % (v(vo), v(vo)))
    a('v_and_b32 %s, 1, v0' % v(t_))
    a('v_lshl_add_u32 %s, %s, 4, %s' % (v(vo), v(t_), v(vo)))
    a('s_lshl_b32 %s, s2, 5' % s(sT0))
    a('s_mov_b32 %s, 0x%x' % (s(sSPIN), P.spin))
    a.label('L_poll')
    a('buffer_load_dwordx4 %s, %s, %s, %s offen sc1' % (v(R, 4), v(vo), s(rWS, 4), s(sT0)))
    a.wait_vm0()
    a('v_max3_u32 %s, %s, %s, %s' % (v(t_), v(R), v(R + 1), v(R + 2)))
    a('v_max_u32 %s, %s, %s' % (v(t_), v(t_), v(R + 3)))
    a('v_cmp_eq_u32 vcc, -1, %s' % v(t_))
    a('s_sub_u32 %s, %s, 1' % (s(sSPIN), s(sSPIN)))
    a('s_cbranch_scc1 L_poll_ok')
    a('s_cbranch_vccnz L_poll')
    a.label('L_poll_ok')
    for d in ('quad_perm:[2,3,0,1]', 'row_ror:4', 'row_ror:8'):
        for r in range(4):
            a('v_add_f32_dpp %s, %s, %s %s%s' % (v(R + r), v(R + r), v(R + r), d, DPP))
    a('v_and_b32 %s, 1, v0' % v(t_))
    a('v_lshlrev_b32 %s, 9, %s' % (v(t_), v(t_)))
    a('v_lshrrev_b32 %s, 4, v0' % v(vo))
    a('v_lshl_add_u32 %s, %s, 2, %s' % (v(t_), v(vo), v(t_)))
    a('s_mov_b32 exec_lo, 0x00030003'); a('s_mov_b32 exec_hi, 0x00030003')
    for r in range(4):
        a('ds_write_b32 %s, %s offset:%d' % (v(t_), v(R + r), RED + 128 * r))
    a('s_mov_b64 exec, -1')
    a('s_waitcnt lgkmcnt(0)')
    a('s_barrier')
    a('s_cmp_lg_u32 %s, 0' % s(sW)); a('s_cbranch_scc1 L_fin')
    a('v_lshlrev_b32 %s, 4, v0' % v(t_))
    a('ds_read_b128 %s, %s offset:%d' % (v(R, 4), v(t_), RED))
    a('v_lshrrev_b32 %s, 3, v0' % v(vo))
    a('v_lshlrev_b32 %s, 1, %s' % (v(vo), v(vo)))
    a('s_lshl_b32 %s, s2, 4' % s(sT0))
    a('v_add_u32 %s, %s, %s' % (v(vo), s(sT0), v(vo)))
    a('s_waitcnt lgkmcnt(0)')
    a('v_add_f32 %s, %s, %s' % (v(R), v(R), v(R + 1)))
    a('v_add_f32 %s, %s, %s' % (v(R + 2), v(R + 2), v(R + 3)))
    a('v_add_f32 %s, %s, %s' % (v(R), v(R), v(R + 2)))
    red8([R], 'v_add_f32')
    a('v_cvt_pk_bf16_f32 %s, %s, %s' % (v(R), v(R), v(R)))
    a('s_mov_b32 exec_lo, 0x01010101'); a('s_mov_b32 exec_hi, 0x01010101')
    a('global_store_short %s, %s, %s' % (v(vo), v(R), s(pOUT, 2)))
    a('s_cmp_lg_u32 s2, 0'); a('s_cbranch_scc1 L_fin')
    a('s_mov_b64 exec, 1')
    a('v_mov_b32 v14, %s' % s(sTG0)); a('v_mov_b32 v15, %s' % s(sTG1))
    a('v_mov_b32 v12, 0x%x' % EP)
    a('global_store_dwordx2 v12, v[14:15], %s sc1' % s(pWS, 2))
    a.label('L_fin'); a.hist = []
    stamp()
    stamp_flush()
    a.label('L_end')
    a('s_endpgm')
    a.raw('.section .rodata,"a"')
    a.raw('.p2align 6')
    a.raw('.amdhsa_kernel ' + K1)
    a.raw('  .amdhsa_next_free_vgpr 256')
    a.raw('  .amdhsa_next_free_sgpr 102')
    a.raw('  .amdhsa_accum_offset 256')
    a.raw('  .amdhsa_group_segment_fixed_size 0')
    a.raw('  .amdhsa_kernarg_size 112')
    a.raw('  .amdhsa_user_sgpr_count 2')
    a.raw('  .amdhsa_user_sgpr_kernarg_segment_ptr 1')
    a.raw('  .amdhsa_system_sgpr_workgroup_id_x 1')
    a.raw('  .amdhsa_float_denorm_mode_32 3')
    a.raw('.end_amdhsa_kernel')
    launch = '; @launch grid=(256,1,1) block=(512,1,1) lds=%d\n' % LDS_BYTES
    return HEADER + launch + a.text(), stampn[0]

def parse(argv=None):
    ap = argparse.ArgumentParser()
    ap.add_argument('-o', default=None)
    for k, d in (('depth', 4), ('batch', 2), ('k0', 4), ('p1', 1), ('p2', 3), ('p3', 5), ('dpro', 6), ('dmid', 6), ('w1nt', 0), ('kfl', 1), ('vfl', 1), ('wfl', 1),
                 ('diag', 0), ('probe', -1), ('probe_wg', 0), ('prep_at', 5), ('defer_at', 61), ('fbar', 1)):
        ap.add_argument('--' + k, type=int, default=d)
    ap.add_argument('--spin', type=lambda x: int(x, 0), default=0x40000)
    return ap.parse_args(argv)

if __name__ == '__main__':
    P = parse()
    txt, ns = gen(P)
    out = P.o or os.path.join(os.path.dirname(os.path.abspath(__file__)), '..', 'cdna_kernels', NAME + '.s')
    open(out, 'w').write(txt)
    print('wrote', out, len(txt), 'bytes; stamps', ns, 'lds', LDS_BYTES)
```

```python
import sys, os, math, struct, argparse
sys.path.insert(0, os.path.dirname(os.path.abspath(__file__)))
from asmlib import Asm

NAME = 'gated_mix__mha_block_cached__mixer_channel_mlp__decode'
def f2u(x):
    return struct.unpack('<I', struct.pack('<f', x))[0]
HEADER = open(os.path.join(os.path.dirname(os.path.abspath(__file__)), '..', 'cdna_kernels', NAME + '.s.ref')).read().split('; Override launch')[0]

QPART, QG, HPART, QB, HB, MX, OBUF = 0, 8192, 16384, 24576, 25088, 25216, 25344
OP = 1040
RED = OBUF + 8 * OP + 64
RED = (RED + 15) // 16 * 16
LDS_BYTES = RED + 1024
PART_BYTES = 256 * 4608
QX = PART_BYTES
OX = QX + 256 * 2048
OXP = 2304
EP = OX + 256 * OXP
WS_BYTES = EP + 128
DIAG = 0x200000 + 0x200000
OOB = 0x80000000

def gen(P):
    a = Asm()
    FL = {0: '', 1: ' nt', 2: ' sc1', 3: ' sc0 sc1', 4: ' sc1 nt', 5: ' sc0 sc1 nt'}
    wnt = FL[P.wfl]
    w1nt = ' nt' if P.w1nt else ''
    D = P.depth
    vL, vKo, vVo = 1, 2, 3
    MASK = 4; AF = [8, 12]; BQ = 16; SC = 48; SACC = [56, 60]; OA = [64, 68]; PACC = 72
    HF = 76
    T = list(range(96, 108))
    vG, vN, vBB = 108, 109, 110
    TAG = 112
    vB2 = 116
    ML = 120
    vMC = 118
    RB = 128; RN = 32
    XQ = 16; WQ = 20; EV = 32
    W1R = 16 + 0
    XS, GW, XD = 76, 86, 34
    W1R = 48
    B1 = 44
    HACC = 76
    GQ = 64
    WD = 16
    sW, sH, sS, sC0, sKV, sT0, sT1, sT2 = 3, 4, 5, 7, 8, 9, 10, 11
    pX, pK, pV, pWQ, pWO, pW1, pB1, pW2, pB2, pGW, pOUT, pDBG, pWS = 16, 18, 20, 22, 24, 28, 30, 32, 34, 36, 38, 40, 42
    rK, rV, rWQ, rWO, rW1, rW2, rWS, rDBG, rB1, rB2 = 44, 48, 52, 56, 60, 64, 68, 72, 76, 96
    sMU0, sMU1, sRS0, sRS1, sG0, sG1 = 80, 81, 82, 83, 84, 85
    sHI, sC, sBB, sM = 90, 91, 92, 94
    sSPIN = 13; sST = 26; sHG = 6
    sTG0, sTG1 = 86, 87
    def v(n, k=1):
        return 'v%d' % n if k == 1 else 'v[%d:%d]' % (n, n + k - 1)
    def s(n, k=1):
        return 's%d' % n if k == 1 else 's[%d:%d]' % (n, n + k - 1)
    def srd(r, p, nbytes):
        a('s_mov_b32 %s, %s' % (s(r), s(p)))
        a('s_mov_b32 %s, %s' % (s(r + 1), s(p + 1)))
        a('s_mov_b32 %s, 0x%x' % (s(r + 2), nbytes))
        a('s_mov_b32 %s, 0x20000' % s(r + 3))
    def smask(val16):
        w = val16 | (val16 << 16)
        a('s_mov_b32 %s, 0x%x' % (s(sM), w)); a('s_mov_b32 %s, 0x%x' % (s(sM + 1), w))
    DPP = ' row_mask:0xf bank_mask:0xf'
    stampn = [0]
    def stamp():
        if P.probe >= 0:
            n = stampn[0]; stampn[0] += 1
            if n == 0 and P.early0:
                a('v_writelane_b32 v127, s96, 0')
                a('s_memrealtime %s' % s(sST, 2))
                a('s_waitcnt lgkmcnt(0)')
                a('v_writelane_b32 v127, %s, 1' % s(sST))
            elif n == 0 or n == P.probe:
                a('s_memrealtime %s' % s(sST, 2))
                a('s_waitcnt lgkmcnt(0)')
                a('v_writelane_b32 v127, %s, %d' % (s(sST), 0 if n == 0 else 1))
            return
        if not P.diag:
            return
        n = stampn[0]; stampn[0] += 1
        a('s_memrealtime %s' % s(sST, 2))
        a('s_waitcnt lgkmcnt(0)')
        a('v_writelane_b32 v127, %s, %d' % (s(sST), n))
    def stamp_flush():
        if P.probe > 0:
            a('s_cmp_lg_u32 s2, %d' % P.probe_wg); a('s_cbranch_scc1 L_end')
            a('s_cmp_lg_u32 %s, 0' % s(sW)); a('s_cbranch_scc1 L_end')
            a('v_readlane_b32 s100, v127, 0'); a('v_readlane_b32 s101, v127, 1')
            a('s_sub_u32 s100, s101, s100'); a('s_lshl_b32 s100, s100, 2'); a('s_min_u32 s100, s100, 40000')
            a('s_memrealtime %s' % s(sST, 2)); a('s_waitcnt lgkmcnt(0)'); a('s_mov_b32 s101, %s' % s(sST))
            a.label('L_probe')
            a('s_memrealtime %s' % s(sST, 2)); a('s_waitcnt lgkmcnt(0)')
            a('s_sub_u32 s99, %s, s101' % s(sST)); a('s_cmp_lt_u32 s99, s100'); a('s_cbranch_scc1 L_probe')
        if not P.diag:
            return
        a('s_mov_b64 exec, -1')
        a('s_lshl_b32 s100, s2, 3'); a('s_add_u32 s100, s100, %s' % s(sW)); a('s_lshl_b32 s100, s100, 7')
        a('s_add_u32 s100, s100, 0x%x' % DIAG)
        a('v_lshlrev_b32 v126, 2, %s' % v(vL))
        a('s_mov_b32 exec_hi, 0')
        a('buffer_store_dword v127, v126, %s, s100 offen' % s(rWS, 4))
    def red32(x, t, op):
        for d in ('quad_perm:[1,0,3,2]', 'quad_perm:[2,3,0,1]', 'row_ror:4', 'row_ror:8'):
            a('%s_dpp %s, %s, %s %s%s' % (op, v(x), v(x), v(x), d, DPP))
        a('v_mov_b32 %s, %s' % (v(t), v(x)))
        a('v_permlane16_swap_b32 %s, %s' % (v(x), v(t)))
        a('%s %s, %s, %s' % (op, v(x), v(x), v(t)))
    def redquads64(xs, ts, op):
        for d in ('row_ror:4', 'row_ror:8'):
            for x in xs:
                a('%s_dpp %s, %s, %s %s%s' % (op, v(x), v(x), v(x), d, DPP))
        for sw in ('v_permlane16_swap_b32', 'v_permlane32_swap_b32'):
            for x, t in zip(xs, ts):
                a('v_mov_b32 %s, %s' % (v(t), v(x)))
            for x, t in zip(xs, ts):
                a('%s %s, %s' % (sw, v(x), v(t)))
            for x, t in zip(xs, ts):
                a('%s %s, %s, %s' % (op, v(x), v(x), v(t)))
    def red8(xs, op):
        for d in ('quad_perm:[1,0,3,2]', 'quad_perm:[2,3,0,1]', 'row_half_mirror'):
            for x in xs:
                a('%s_dpp %s, %s, %s %s%s' % (op, v(x), v(x), v(x), d, DPP))
    def delta(dst, src):
        for d in range(4):
            a('v_and_b32 %s, %s, %s' % (v(dst + d), v(src), v(MASK + d)))
    def mfma(d, A, B, c=None):
        a('v_mfma_f32_16x16x32_bf16 %s, %s, %s, %s' % (v(d, 4), v(A, 4), v(B, 4), '0' if c is None else v(d, 4)))
    def oob_unless(dst, src, cmp):
        a(cmp)
        a('v_mov_b32 %s, 0x%x' % (v(T[11]), OOB))
        a('v_cndmask_b32 %s, %s, %s, vcc' % (v(dst), v(T[11]), v(src)))

    ip = [0]
    cp = [0]
    sG = 12
    def issue_one():
        j = ip[0]; ip[0] += 1
        assert j - RN < cp[0]
        n, i = j >> 2, j & 3
        if i == 0:
            g = n & 7
            a('s_add_u32 %s, %s, 0x%x' % (s(sG), s(sKV), ((g >> 2) << 25) + ((g & 3) << 15)))
        a('buffer_load_dwordx4 %s, %s, %s, %s offen offset:%d%s' % (
            v(RB + 4 * (j % RN), 4), v(vKo if j < 32 else vVo), s(rK if j < 32 else rV, 4), s(sG), 1024 * i, FL[P.kfl if j < 32 else P.vfl]), tag='L%d' % j)
    def pump(k, depth=None):
        a.wait_vm('L%d' % k)
        while ip[0] < min(64, k + 1 + (depth or D), cp[0] + RN):
            issue_one()

    K1 = NAME + '_kernel'
    a.raw('.amdgcn_target "amdgcn-amd-amdhsa--gfx950"')
    a.raw('.text'); a.raw('.globl ' + K1); a.raw('.p2align 8'); a.raw('.type %s,@function' % K1)
    a.label(K1)
    a('s_cmp_ge_u32 s2, 256'); a('s_cbranch_scc1 L_end')
    if P.early0:
        a('s_memrealtime s[96:97]')
    a('s_load_dwordx16 s[16:31], s[0:1], 0')
    a('s_load_dwordx8 s[32:39], s[0:1], 64')
    a('s_load_dwordx4 s[40:43], s[0:1], 96')
    a('v_lshrrev_b32 %s, 6, v0' % v(T[0]))
    a('v_and_b32 %s, 63, v0' % v(vL))
    a('v_readfirstlane_b32 %s, %s' % (s(sW), v(T[0])))
    a('s_and_b32 %s, s2, 7' % s(sT0))
    a('s_lshr_b32 %s, s2, 3' % s(sT1))
    a('s_and_b32 %s, %s, 3' % (s(sH), s(sT1)))
    a('s_lshl_b32 %s, %s, 2' % (s(sT2), s(sT0)))
    a('s_add_u32 %s, %s, %s' % (s(sH), s(sH), s(sT2)))
    a('s_lshr_b32 %s, %s, 2' % (s(sS), s(sT1)))
    a('s_mul_i32 %s, %s, 576' % (s(sC0), s(sT0)))
    a('s_mul_i32 %s, %s, 18' % (s(sT2), s(sT1)))
    a('s_add_u32 %s, %s, %s' % (s(sC0), s(sC0), s(sT2)))
    a('s_lshl_b32 %s, %s, 3' % (s(sHG), s(sH)))
    a('s_lshl_b32 %s, %s, 20' % (s(sKV), s(sH)))
    a('s_lshl_b32 %s, %s, 17' % (s(sT2), s(sS))); a('s_add_u32 %s, %s, %s' % (s(sKV), s(sKV), s(sT2)))
    a('s_lshl_b32 %s, %s, 12' % (s(sT2), s(sW))); a('s_add_u32 %s, %s, %s' % (s(sKV), s(sKV), s(sT2)))
    a('v_lshrrev_b32 %s, 4, %s' % (v(vG), v(vL)))
    a('v_and_b32 %s, 15, %s' % (v(vN), v(vL)))
    a('v_bfe_u32 %s, %s, 3, 1' % (v(vBB), v(vL)))
    a('v_lshlrev_b32 %s, 4, %s' % (v(vVo), v(vL)))
    a('v_bfe_u32 %s, %s, 2, 2' % (v(T[0]), v(vL)))
    a('v_lshlrev_b32 %s, 8, %s' % (v(vKo), v(T[0])))
    a('v_lshl_add_u32 %s, %s, 6, %s' % (v(vKo), v(vG), v(vKo)))
    a('v_and_b32 %s, 3, %s' % (v(T[0]), v(vL)))
    a('v_lshl_add_u32 %s, %s, 4, %s' % (v(vKo), v(T[0]), v(vKo)))
    a('s_mul_i32 %s, %s, 72' % (s(sT0), s(sS)))
    a('s_mul_i32 %s, %s, 9' % (s(sT1), s(sW)))
    a('s_add_u32 %s, %s, %s' % (s(sT0), s(sT0), s(sT1)))
    a('v_min_u32 %s, 2, %s' % (v(T[0]), v(vG)))
    a('v_mul_u32_u24 %s, 3, %s' % (v(T[0]), v(T[0])))
    a('v_mul_u32_u24 %s, 0x240, %s' % (v(T[1]), v(vBB)))
    a('v_add3_u32 %s, %s, %s, %s' % (v(T[1]), v(T[1]), v(T[0]), s(sT0)))
    a('v_lshlrev_b32 %s, 1, %s' % (v(T[1]), v(T[1])))
    a('v_lshlrev_b32 %s, 13, %s' % (v(T[2]), v(T[0])))
    a('v_lshl_add_u32 %s, %s, 4, %s' % (v(T[2]), v(vN), v(T[2])))
    oob_unless(T[2], T[2], 'v_cmp_gt_u32 vcc, 48, %s' % v(vL))
    a('s_lshl_b32 %s, %s, 13' % (s(sT0), s(sT0)))
    a('s_lshl_b32 %s, %s, 8' % (s(sT1), s(sH)))
    a('s_add_u32 %s, %s, %s' % (s(sT0), s(sT0), s(sT1)))
    a('s_add_u32 %s, %s, 0x2000' % (s(sT1), s(sT0)))
    a('s_add_u32 %s, %s, 0x4000' % (s(sT2), s(sT0)))
    a('v_mov_b32 %s, 0x%x' % (v(T[3]), EP))
    a('s_waitcnt lgkmcnt(0)')
    srd(rWQ, pWQ, 576 * 8192)
    srd(rK, pK, 1 << 26)
    if P.diag:
        a('v_mov_b32 v127, 0')
    stamp()
    for i, so in enumerate((sT0, sT1, sT2)):
        a('buffer_load_dwordx4 %s, %s, %s, %s offen%s' % (v(WQ + 4 * i, 4), v(T[2]), s(rWQ, 4), s(so), wnt), tag='wq')
    for i in range(3):
        a('global_load_ushort %s, %s, %s offset:%d' % (v(XQ + i), v(T[1]), s(pX, 2), 2 * i), tag='xq')
    a('global_load_dwordx2 %s, %s, %s sc1' % (v(EV, 2), v(T[3]), s(pWS, 2)), tag='ep')
    for _ in range(P.k0):
        issue_one()
    srd(rWS, pWS, (DIAG + 0x40000) if P.diag else WS_BYTES)
    vXd, vXs, vGw = T[4], T[5], T[6]
    a('v_mul_u32_u24 %s, 0x480, %s' % (v(vXd), v(vBB)))
    a('v_mad_u32_u24 %s, %s, 36, %s' % (v(vXd), v(vG), v(vXd)))
    a('s_mul_i32 %s, %s, 144' % (s(sT2), s(sW)))
    a('v_add_u32 %s, %s, %s' % (v(vXd), s(sT2), v(vXd)))
    a('v_and_b32 %s, 31, %s' % (v(vGw), v(vL)))
    a('v_mul_u32_u24 %s, 36, %s' % (v(vGw), v(vGw)))
    a('v_lshrrev_b32 %s, 5, %s' % (v(vXs), v(vL)))
    a('v_mul_u32_u24 %s, 0x480, %s' % (v(vXs), v(vXs)))
    a('v_add_u32 %s, %s, %s' % (v(vXs), v(vXs), v(vGw)))
    for (dst, off, base, tag) in ((XS, vXs, pX, 'xs'), (GW, vGw, pGW, 'gw'), (XD, vXd, pX, 'xd')):
        a('global_load_dwordx4 %s, %s, %s' % (v(dst, 4), v(off), s(base, 2)), tag=tag)
        a('global_load_dwordx4 %s, %s, %s offset:16' % (v(dst + 4, 4), v(off), s(base, 2)), tag=tag)
        a('global_load_dword %s, %s, %s offset:32' % (v(dst + 8), v(off), s(base, 2)), tag=tag)
    a('s_mov_b32 %s, 0xffff0000' % s(sHI))
    a('s_mov_b32 %s, 0x%x' % (s(sC), f2u(math.log2(math.e) / math.sqrt(128.0))))
    a('s_mov_b32 %s, 0xff00ff00' % s(sBB)); a('s_mov_b32 %s, 0xff00ff00' % s(sBB + 1))
    a('v_and_b32 %s, 1, %s' % (v(T[0]), v(vL)))
    a('v_lshlrev_b32 %s, 4, %s' % (v(T[0]), v(T[0])))
    a('v_mov_b32 %s, 0xffff' % v(T[7]))
    a('v_lshlrev_b32 %s, %s, %s' % (v(T[0]), v(T[0]), v(T[7])))
    for d in range(4):
        smask(0x0303 << (2 * d))
        a('v_cndmask_b32 %s, 0, %s, %s' % (v(MASK + d), v(T[0]), s(sM, 2)))
    vDW = T[8]
    a('v_lshrrev_b32 %s, 5, v0' % v(vDW))
    a('v_lshlrev_b32 %s, 9, %s' % (v(vDW), v(vDW)))
    a('v_lshl_add_u32 %s, %s, 5, %s' % (v(vDW), v(vN), v(vDW)))
    a('v_and_b32 %s, 16, %s' % (v(T[0]), v(vL)))
    a('v_add_u32 %s, %s, %s' % (v(vDW), v(vDW), v(T[0])))
    vPO = T[9]
    a('v_lshlrev_b32 %s, 4, v0' % v(vPO))
    oob_unless(vPO, vPO, 'v_cmp_gt_u32 vcc, 128, v0')
    a('v_and_b32 %s, 127, v0' % v(T[10]))
    a('v_lshlrev_b32 %s, 3, %s' % (v(T[10]), v(T[10])))
    a.wait_vm('ep')
    for i in range(3):
        a('v_lshl_or_b32 %s, %s, 16, %s' % (v(XQ + i), v(XQ + i), v(XQ + i)))
        delta(AF[i & 1], XQ + i)
        mfma(PACC, AF[i & 1], WQ + 4 * i, None if i == 0 else 1)
    a('v_add_u32 %s, 1, %s' % (v(TAG + 1), v(EV)))
    a('v_add_u32 %s, 0x9e3779b9, %s' % (v(TAG + 3), v(EV + 1)))
    a('ds_write_b128 %s, %s offset:%d' % (v(vDW), v(PACC, 4), QPART))
    a('v_readfirstlane_b32 %s, %s' % (s(sTG0), v(TAG + 1)))
    a('v_readfirstlane_b32 %s, %s' % (s(sTG1), v(TAG + 3)))
    a('s_add_u32 %s, %s, %s' % (s(sT0), s(sHG), s(sS)))
    a('s_lshl_b32 %s, %s, 11' % (s(sT0), s(sT0)))
    a('s_add_u32 %s, %s, 0x%x' % (s(sT0), s(sT0), QX))
    a('s_waitcnt lgkmcnt(0)')
    a('s_barrier')
    QR = 16
    for w in range(8):
        a('ds_read_b64 %s, %s offset:%d' % (v(QR + 2 * w, 2), v(T[10]), QPART + 1024 * w))
    a('s_waitcnt lgkmcnt(0)')
    for st in (1, 2):
        for w in range(0, 8, 2 * st):
            for r in range(2):
                a('v_add_f32 %s, %s, %s' % (v(QR + 2 * w + r), v(QR + 2 * w + r), v(QR + 2 * (w + st) + r)))
    a('v_add_f32 %s, %s, %s' % (v(TAG), v(QR), v(QR + 8)))
    a('v_add_f32 %s, %s, %s' % (v(TAG + 2), v(QR + 1), v(QR + 9)))
    a('buffer_store_dwordx4 %s, %s, %s, %s offen sc1' % (v(TAG, 4), v(vPO), s(rWS, 4), s(sT0)), tag='qpub')
    stamp()
    srd(rW1, pW1, 576 * 9216)
    vO, vO2 = T[4], T[5]
    a('v_mul_u32_u24 %s, 11, %s' % (v(T[0]), v(vN)))
    a('v_lshrrev_b32 %s, 5, %s' % (v(T[0]), v(T[0])))
    a('v_mul_u32_u24 %s, 3, %s' % (v(T[7]), v(T[0])))
    a('v_sub_u32 %s, %s, %s' % (v(T[7]), v(vN), v(T[7])))
    a('v_mad_u32_u24 %s, %s, 18, %s' % (v(T[0]), v(vG), v(T[0])))
    a('v_mul_u32_u24 %s, 0x2400, %s' % (v(vO), v(T[0])))
    a('v_lshl_add_u32 %s, %s, 4, %s' % (v(vO), v(T[7]), v(vO)))
    oob_unless(vO, vO, 'v_cmp_gt_u32 vcc, 15, %s' % v(vN))
    oob_unless(vO2, vO, 'v_cmp_gt_u32 vcc, 9, %s' % v(vN))
    a('s_mul_i32 %s, %s, %d' % (s(sT0), s(sW), 72 * 9216))
    a('s_lshl_b32 %s, %s, 1' % (s(sT1), s(sC0)))
    a('s_add_u32 %s, %s, %s' % (s(sT0), s(sT0), s(sT1)))
    for u in range(4):
        a('buffer_load_dwordx4 %s, %s, %s, %s offen%s' % (v(W1R + 4 * u, 4), v(vO if u < 3 else vO2), s(rW1, 4), s(sT0), w1nt), tag='w1')
        if u < 3:
            a('s_add_u32 %s, %s, %d' % (s(sT0), s(sT0), 5 * 9216))
    srd(rV, pV, 1 << 26)
    pump(P.p1)
    a('v_lshlrev_b32 %s, 4, v0' % v(vO))
    oob_unless(vO, vO, 'v_cmp_gt_u32 vcc, 288, v0')
    a('s_mul_i32 %s, s2, 4608' % s(sT0))
    for d in range(4):
        a('v_mov_b32 %s, -1' % v(AF[0] + d))
    a('buffer_store_dwordx4 %s, %s, %s, %s offen sc1' % (v(AF[0], 4), v(vO), s(rWS, 4), s(sT0)), tag='clear')
    srd(rB1, pB1, 9216)
    a('v_and_b32 %s, 1, %s' % (v(T[0]), v(vG)))
    a('v_lshlrev_b32 %s, 3, %s' % (v(T[0]), v(T[0])))
    a('v_lshl_add_u32 %s, %s, 4, %s' % (v(vO), v(vN), v(T[0])))
    a('s_lshl_b32 %s, %s, 1' % (s(sT1), s(sC0)))
    a('buffer_load_dwordx2 %s, %s, %s, %s offen' % (v(B1, 2), v(vO), s(rB1, 4), s(sT1)), tag='b1')
    srd(rB2, pB2, 1152)
    a('s_lshl_b32 %s, %s, 8' % (s(sT1), s(sW)))
    a('s_cmp_eq_u32 s2, 0')
    a('s_cselect_b32 %s, %s, 0x%x' % (s(sT1), s(sT1), OOB))
    a('v_add_u32 %s, %s, %s' % (v(vO), s(sT1), v(vO)))
    a('buffer_load_dwordx2 %s, %s, %s, 0 offen' % (v(vB2, 2), v(vO), s(rB2, 4)), tag='b2')
    srd(rWO, pWO, 4096 * 1152)
    srd(rW2, pW2, 4608 * 1152)
    srd(rDBG, pDBG, 256)
    a.wait_vm('gw')
    S1, GD, t0, t1, t2, t3 = T[4], T[5], T[6], T[7], T[0], T[1]
    a('v_mov_b32 %s, 0' % v(S1)); a('v_mov_b32 %s, 0' % v(GD))
    for k in range(9):
        a('v_lshlrev_b32 %s, 16, %s' % (v(t0), v(XS + k)))
        a('v_and_b32 %s, %s, %s' % (v(t1), s(sHI), v(XS + k)))
        a('v_lshlrev_b32 %s, 16, %s' % (v(t2), v(GW + k)))
        a('v_and_b32 %s, %s, %s' % (v(t3), s(sHI), v(GW + k)))
        a('v_add_f32 %s, %s, %s' % (v(S1), v(S1), v(t0)))
        a('v_fmac_f32 %s, %s, %s' % (v(GD), v(t0), v(t2)))
        a('v_add_f32 %s, %s, %s' % (v(S1), v(S1), v(t1)))
        a('v_fmac_f32 %s, %s, %s' % (v(GD), v(t1), v(t3)))
    red32(S1, t0, 'v_add_f32')
    red32(GD, t0, 'v_add_f32')
    pump(P.p2)
    a('v_mul_f32 %s, 0x%x, %s' % (v(S1), f2u(1.0 / 576), v(S1)))
    S2 = t3
    a('v_mov_b32 %s, 0' % v(S2))
    for k in range(9):
        a('v_lshlrev_b32 %s, 16, %s' % (v(t0), v(XS + k)))
        a('v_and_b32 %s, %s, %s' % (v(t1), s(sHI), v(XS + k)))
        a('v_sub_f32 %s, %s, %s' % (v(t0), v(t0), v(S1)))
        a('v_sub_f32 %s, %s, %s' % (v(t1), v(t1), v(S1)))
        a('v_fmac_f32 %s, %s, %s' % (v(S2), v(t0), v(t0)))
        a('v_fmac_f32 %s, %s, %s' % (v(S2), v(t1), v(t1)))
    red32(S2, t0, 'v_add_f32')
    a('v_mov_b32 %s, 0x%x' % (v(t0), f2u(1e-5)))
    a('v_fmac_f32 %s, 0x%x, %s' % (v(t0), f2u(1.0 / 576), v(S2)))
    a('v_rsq_f32 %s, %s' % (v(S2), v(t0)))
    a('v_mul_f32 %s, 0x%x, %s' % (v(GD), f2u(-math.log2(math.e)), v(GD)))
    a('v_exp_f32 %s, %s' % (v(GD), v(GD)))
    a('v_add_f32 %s, 1.0, %s' % (v(GD), v(GD)))
    a('v_rcp_f32 %s, %s' % (v(GD), v(GD)))
    a('v_readlane_b32 %s, %s, 0' % (s(sMU0), v(S1))); a('v_readlane_b32 %s, %s, 32' % (s(sMU1), v(S1)))
    a('v_readlane_b32 %s, %s, 0' % (s(sRS0), v(S2))); a('v_readlane_b32 %s, %s, 32' % (s(sRS1), v(S2)))
    a('v_readlane_b32 %s, %s, 0' % (s(sG0), v(GD))); a('v_readlane_b32 %s, %s, 32' % (s(sG1), v(GD)))
    MU, RS = T[4], T[5]
    a('v_mov_b32 %s, %s' % (v(MU), s(sMU0))); a('v_mov_b32 %s, %s' % (v(t0), s(sMU1)))
    a('v_cndmask_b32 %s, %s, %s, %s' % (v(MU), v(MU), v(t0), s(sBB, 2)))
    a('v_mov_b32 %s, %s' % (v(RS), s(sRS0))); a('v_mov_b32 %s, %s' % (v(t0), s(sRS1)))
    a('v_cndmask_b32 %s, %s, %s, %s' % (v(RS), v(RS), v(t0), s(sBB, 2)))
    a.wait_vm('L%d' % P.p3)
    sQG = 88
    a('s_add_u32 %s, %s, %s' % (s(sQG), s(sHG), s(sW)))
    a('s_lshl_b32 %s, %s, 11' % (s(sQG), s(sQG)))
    a('s_add_u32 %s, %s, 0x%x' % (s(sQG), s(sQG), QX))
    def q_gather(track):
        for k in range(2):
            txt = 'buffer_load_dwordx4 %s, %s, %s, %s offen offset:%d sc1' % (v(GQ + 4 * k, 4), v(vVo), s(rWS, 4), s(sQG), 1024 * k)
            if track:
                a(txt, tag='qg')
            else:
                a.lines.append('    ' + txt)
    q_gather(True)
    stamp()
    pump(P.p3)
    a.wait_vm('w1')
    for i in range(18):
        u, t = divmod(i, 5)
        A = AF[i & 1]
        if i & 1:
            a('v_and_b32 %s, %s, %s' % (v(t0), s(sHI), v(XD + i // 2)))
        else:
            a('v_lshlrev_b32 %s, 16, %s' % (v(t0), v(XD + i // 2)))
        a('v_sub_f32 %s, %s, %s' % (v(t0), v(t0), v(MU)))
        a('v_mul_f32 %s, %s, %s' % (v(t0), v(t0), v(RS)))
        a('v_cvt_pk_bf16_f32 %s, %s, %s' % (v(t0), v(t0), v(t0)))
        delta(A, t0)
        mfma(HACC + 4 * t, A, W1R + 4 * u, None if u == 0 else 1)
    a('v_lshlrev_b32 %s, 4, v0' % v(t1))
    for t in range(5):
        w = (0x7 << (3 * t)); w |= w << 16
        a('s_mov_b32 exec_lo, 0x%x' % w); a('s_mov_b32 exec_hi, 0x%x' % w)
        a('ds_write_b128 %s, %s offset:%d' % (v(t1), v(HACC + 4 * t, 4), HPART))
    a('s_mov_b64 exec, -1')
    def tagcheck(regs):
        first = True
        for r in regs:
            a('v_xor_b32 %s, %s, %s' % (v(T[2]), s(sTG0), v(r + 1)))
            a('v_xor_b32 %s, %s, %s' % (v(T[3]), s(sTG1), v(r + 3)))
            if first:
                a('v_or_b32 %s, %s, %s' % (v(T[0]), v(T[2]), v(T[3])))
            else:
                a('v_or3_b32 %s, %s, %s, %s' % (v(T[0]), v(T[0]), v(T[2]), v(T[3])))
            first = False
        a('v_cmp_ne_u32 vcc, 0, %s' % v(T[0]))
    def spin(name, regs, reload):
        tagcheck(regs)
        a('s_mov_b32 %s, 0x%x' % (s(sSPIN), P.spin))
        a('s_cbranch_vccz L_%s_ok' % name)
        a.label('L_%s_spin' % name)
        reload(False)
        a.lines.append('    s_waitcnt vmcnt(0)')
        tagcheck(regs)
        a('s_sub_u32 %s, %s, 1' % (s(sSPIN), s(sSPIN)))
        a('s_cbranch_scc1 L_%s_ok' % name)
        a('s_cbranch_vccnz L_%s_spin' % name)
        a.label('L_%s_ok' % name)
    a.wait_vm('qg')
    done = max([int(t_[1:]) for t_ in ['L-1'] ] + [j for j in range(ip[0]) if 'L%d' % j not in a.vm])
    pump(done, P.dpro)
    spin('q', [GQ, GQ + 4], q_gather)
    stamp()
    a('v_lshlrev_b32 %s, 3, %s' % (v(T[0]), v(vL)))
    a('s_lshl_b32 %s, %s, 10' % (s(sT0), s(sW)))
    a('v_add_u32 %s, %s, %s' % (v(T[0]), s(sT0), v(T[0])))
    a('v_add_u32 %s, %d, %s' % (v(T[0]), QG, v(T[0])))
    a('ds_write2_b32 %s, %s, %s offset0:0 offset1:1' % (v(T[0]), v(GQ), v(GQ + 2)))
    a('ds_write2_b32 %s, %s, %s offset0:128 offset1:129' % (v(T[0]), v(GQ + 4), v(GQ + 6)))
    a('s_waitcnt lgkmcnt(0)')
    a('s_barrier')
    a('v_mov_b32 %s, 0' % v(T[0]))
    oob_unless(T[0], T[0], 'v_cmp_eq_u32 vcc, 0, v0')
    a('v_mov_b32 %s, 1' % v(T[4]))
    a('buffer_atomic_add %s, %s, %s, 0 offen sc1' % (v(T[4]), v(T[0]), s(rDBG, 4)), tag='cnt')
    a('s_cmp_gt_u32 %s, 4' % s(sW)); a('s_cbranch_scc1 L_bar2')
    a('s_cmp_eq_u32 %s, 4' % s(sW)); a('s_cbranch_scc1 L_hfin')
    a('v_lshlrev_b32 %s, 2, v0' % v(T[0]))
    for w in range(8):
        a('ds_read_b32 %s, %s offset:%d' % (v(BQ + w), v(T[0]), QG + 1024 * w))
    a('s_waitcnt lgkmcnt(0)')
    for st in (1, 2, 4):
        for w in range(0, 8, 2 * st):
            a('v_add_f32 %s, %s, %s' % (v(BQ + w), v(BQ + w), v(BQ + w + st)))
    a('v_cvt_pk_bf16_f32 %s, %s, %s' % (v(BQ), v(BQ), v(BQ)))
    a('v_lshlrev_b32 %s, 1, v0' % v(T[0]))
    a('ds_write_b16 %s, %s offset:%d' % (v(T[0]), v(BQ), QB))
    a('s_branch L_bar2')
    a.label('L_hfin'); a.hist = []
    hregs = [48 + 4 * k for k in range(8)]
    for w in range(8):
        a('ds_read_b128 %s, %s offset:%d' % (v(hregs[w], 4), v(vVo), HPART + 1024 * w))
    a('s_waitcnt lgkmcnt(0)')
    for st in (1, 2, 4):
        for w in range(0, 8, 2 * st):
            for r in range(4):
                a('v_add_f32 %s, %s, %s' % (v(hregs[w] + r), v(hregs[w] + r), v(hregs[w + st] + r)))
    H = hregs[0]; HA = hregs[1]
    for r in range(4):
        a('v_add_f32_dpp %s, %s, %s row_shl:3%s bound_ctrl:0' % (v(HA + r), v(H + r), v(H + r), DPP))
    for r in range(4):
        a('v_add_f32_dpp %s, %s, %s row_shl:6%s bound_ctrl:0' % (v(HA + r), v(HA + r), v(HA + r), DPP))
    for r in range(4):
        a('v_add_f32_dpp %s, %s, %s row_shl:12%s bound_ctrl:0' % (v(HA + r), v(H + r), v(HA + r), DPP))
    assert 'b1' not in a.vm
    for r in range(4):
        if r & 1:
            a('v_and_b32 %s, %s, %s' % (v(H + r), s(sHI), v(B1 + r // 2)))
        else:
            a('v_lshlrev_b32 %s, 16, %s' % (v(H + r), v(B1 + r // 2)))
        a('v_add_f32 %s, %s, %s' % (v(HA + r), v(HA + r), v(H + r)))
    a('v_mov_b32 %s, %s' % (v(T[0]), s(sG0))); a('v_mov_b32 %s, %s' % (v(T[4]), s(sG1)))
    a('v_cmp_lt_u32 vcc, 31, %s' % v(vL))
    a('v_cndmask_b32 %s, %s, %s, vcc' % (v(T[0]), v(T[0]), v(T[4])))
    a('v_sub_f32 %s, 1.0, %s' % (v(T[0]), v(T[0])))
    kz = -2.0 * math.sqrt(2.0 / math.pi) * math.log2(math.e)
    steps = [
        lambda x, z: a('v_mul_f32 %s, %s, %s' % (v(z), v(x), v(x))),
        lambda x, z: a('v_mul_f32 %s, 0x%x, %s' % (v(z), f2u(0.044715), v(z))),
        lambda x, z: a('v_add_f32 %s, 1.0, %s' % (v(z), v(z))),
        lambda x, z: a('v_mul_f32 %s, %s, %s' % (v(z), v(z), v(x))),
        lambda x, z: a('v_mul_f32 %s, 0x%x, %s' % (v(z), f2u(kz), v(z))),
        lambda x, z: a('v_exp_f32 %s, %s' % (v(z), v(z))),
        lambda x, z: a('v_add_f32 %s, 1.0, %s' % (v(z), v(z))),
        lambda x, z: a('v_rcp_f32 %s, %s' % (v(z), v(z))),
        lambda x, z: a('v_mul_f32 %s, %s, %s' % (v(x), v(x), v(T[0]))),
        lambda x, z: a('v_mul_f32 %s, %s, %s' % (v(x), v(x), v(z))),
    ]
    for st in steps:
        for r in range(4):
            st(HA + r, H + r)
    a('v_cvt_pk_bf16_f32 %s, %s, %s' % (v(H), v(HA), v(HA + 1)))
    a('v_cvt_pk_bf16_f32 %s, %s, %s' % (v(H + 1), v(HA + 2), v(HA + 3)))
    a('v_lshrrev_b32 %s, 5, %s' % (v(T[0]), v(vL)))
    a('v_mul_u32_u24 %s, 48, %s' % (v(T[0]), v(T[0])))
    a('v_lshl_add_u32 %s, %s, 4, %s' % (v(T[0]), v(vN), v(T[0])))
    a('v_and_b32 %s, 1, %s' % (v(T[4]), v(vG)))
    a('v_lshl_add_u32 %s, %s, 3, %s' % (v(T[0]), v(T[4]), v(T[0])))
    a('s_mov_b32 exec_lo, 0x00070007'); a('s_mov_b32 exec_hi, 0x00070007')
    a('ds_write_b64 %s, %s offset:%d' % (v(T[0]), v(H, 2), HB))
    a('s_mov_b64 exec, -1')
    a.label('L_bar2'); a.hist = []
    a('s_waitcnt lgkmcnt(0)')
    a('s_barrier')
    a('v_and_b32 %s, 3, %s' % (v(T[0]), v(vL)))
    a('v_lshl_add_u32 %s, %s, 2, %s' % (v(T[0]), v(vG), v(T[0])))
    a('v_lshlrev_b32 %s, 4, %s' % (v(T[0]), v(T[0])))
    a('ds_read_b128 %s, %s offset:%d' % (v(AF[0], 4), v(T[0]), QB))
    a('ds_read_b128 %s, %s offset:%d' % (v(AF[1], 4), v(T[0]), QB + 256))
    a('v_mul_u32_u24 %s, 48, %s' % (v(T[0]), v(vBB)))
    a('v_mad_u32_u24 %s, %s, 10, %s' % (v(T[0]), v(vG), v(T[0])))
    for i in range(5):
        a('ds_read_u16 %s, %s offset:%d' % (v(T[1 + i]), v(T[0]), HB + 2 * i))
    a('s_waitcnt lgkmcnt(5)')
    for i in range(4):
        smask(0xf << (4 * i))
        for b in range(2):
            for d in range(4):
                a('v_cndmask_b32 %s, 0, %s, %s' % (v(BQ + 16 * b + 4 * i + d), v(AF[b] + d), s(sM, 2)))
    stamp()
    def late_prep():
        a('s_waitcnt lgkmcnt(0)')
        a('v_cmp_gt_u32 vcc, 48, %s' % v(vL))
        for i in range(5):
            if i >= 3:
                a('v_cndmask_b32 %s, 0, %s, vcc' % (v(T[1 + i]), v(T[1 + i])))
            a('v_lshl_or_b32 %s, %s, 16, %s' % (v(T[1 + i]), v(T[1 + i]), v(T[1 + i])))
            delta(HF + 4 * i, T[1 + i])
        assert 'b2' not in a.vm
        a('v_mov_b32 %s, %s' % (v(T[0]), s(sG0))); a('v_mov_b32 %s, %s' % (v(T[1]), s(sG1)))
        a('v_cmp_lt_u32 vcc, 31, %s' % v(vL))
        a('v_cndmask_b32 %s, %s, %s, vcc' % (v(T[0]), v(T[0]), v(T[1])))
        a('v_sub_f32 %s, 1.0, %s' % (v(T[0]), v(T[0])))
        for r in range(4):
            if r & 1:
                a('v_and_b32 %s, %s, %s' % (v(PACC + r), s(sHI), v(vB2 + r // 2)))
            else:
                a('v_lshlrev_b32 %s, 16, %s' % (v(PACC + r), v(vB2 + r // 2)))
            a('v_mul_f32 %s, %s, %s' % (v(PACC + r), v(PACC + r), v(T[0])))
    def score(n):
        acc = SACC[n & 1]
        a('v_mov_b32_dpp %s, %s quad_perm:[0,0,0,0]%s' % (v(SC + n), v(acc), DPP))
        for c in range(1, 4):
            a('v_add_f32_dpp %s, %s, %s quad_perm:[%d,%d,%d,%d]%s' % (v(SC + n), v(acc + c), v(SC + n), c, c, c, c, DPP))
    B = P.batch
    def step(j, depth=None):
        a.wait_vm('L%d' % j)
    def refill(j, depth=None):
        cp[0] = j + 1
        if (j + 1) % B == 0:
            while ip[0] < min(64, j + 1 + (depth or D)):
                issue_one()
    vCNT = 124
    for n in range(8):
        for i in range(4):
            j = 4 * n + i
            step(j)
            mfma(SACC[n & 1], RB + 4 * (j % RN), BQ + 16 * (n >> 2) + 4 * i, None if i == 0 else 1)
            refill(j, P.dmid if j == 31 else None)
        if n > 0:
            score(n - 1)
        if n == P.prep_at:
            late_prep()
    score(7)
    stamp()
    for b in range(2):
        a('v_max3_f32 %s, %s, %s, %s' % (v(vMC + b), v(SC + 4 * b), v(SC + 4 * b + 1), v(SC + 4 * b + 2)))
        a('v_max_f32 %s, %s, %s' % (v(vMC + b), v(vMC + b), v(SC + 4 * b + 3)))
    redquads64([vMC, vMC + 1], [T[0], T[1]], 'v_max_f32')
    a('s_lshl_b32 %s, %s, 3' % (s(sT0), s(sW)))
    a('v_mov_b32 %s, %s' % (v(T[0]), s(sT0)))
    a('ds_write_b64 %s, %s offset:%d' % (v(T[0]), v(vMC, 2), MX))
    a('v_and_b32 %s, 7, %s' % (v(T[1]), v(vL)))
    a('v_lshlrev_b32 %s, 3, %s' % (v(T[1]), v(T[1])))
    a('v_mov_b32 %s, 0' % v(T[2]))
    a('buffer_load_dword %s, %s, %s, 0 offen sc1' % (v(vCNT), v(T[2]), s(rDBG, 4)), tag='cntld')
    a('s_waitcnt lgkmcnt(0)')
    a('s_barrier')
    a('ds_read_b64 %s, %s offset:%d' % (v(vMC, 2), v(T[1]), MX))
    a('s_waitcnt lgkmcnt(0)')
    red8([vMC, vMC + 1], 'v_max_f32')
    for b in range(2):
        a('v_mul_f32 %s, %s, %s' % (v(vMC + b), s(sC), v(vMC + b)))
    for n in range(8):
        a('v_fma_f32 %s, %s, %s, -%s' % (v(SC + n), v(SC + n), s(sC), v(vMC + (n >> 2))))
    for n in range(8):
        a('v_exp_f32 %s, %s' % (v(SC + n), v(SC + n)))
    for b in range(2):
        L_ = ML + 2 * b + 1
        a('v_add_f32 %s, %s, %s' % (v(L_), v(SC + 4 * b), v(SC + 4 * b + 1)))
        a('v_add_f32 %s, %s, %s' % (v(L_), v(L_), v(SC + 4 * b + 2)))
        a('v_add_f32 %s, %s, %s' % (v(L_), v(L_), v(SC + 4 * b + 3)))
    for n in range(8):
        a('v_cvt_pk_bf16_f32 %s, %s, %s' % (v(SC + n), v(SC + n), v(SC + n)))
    vOW, vOR, vOP, vXA, vXM, vYS, vW2o, vW2o2, vWoo = 40, 41, 42, 43, 44, 45, 46, 47, 125
    sOP, sOG, sW2, sWO, sYS = 88, 89, 100, 101, 15
    def tail_prep():
        redquads64([ML + 1, ML + 3], [T[0], T[1]], 'v_add_f32')
        a('s_cmp_eq_u32 %s, 0' % s(sW))
        a('s_cselect_b32 %s, -1, 0' % s(sT0))
        for b in range(2):
            a('v_and_b32 %s, %s, %s' % (v(ML + 2 * b), s(sT0), v(vMC + b)))
        a('s_mul_i32 %s, %s, %d' % (s(sT0), s(sW), OP))
        a('v_mov_b32 %s, %s' % (v(T[0]), s(sT0)))
        a('ds_write_b128 %s, %s offset:%d' % (v(T[0]), v(ML, 4), OBUF + 1024))
        a('v_lshrrev_b32 %s, 5, %s' % (v(T[1]), v(vL)))
        a('v_lshlrev_b32 %s, 5, %s' % (v(T[2]), v(vN)))
        a('v_and_b32 %s, 16, %s' % (v(T[3]), v(vL)))
        a('v_add_u32 %s, %s, %s' % (v(T[2]), v(T[2]), v(T[3])))
        a('v_lshl_add_u32 %s, %s, 9, %s' % (v(vOW), v(T[1]), v(T[2])))
        a('v_add_u32 %s, %s, %s' % (v(vOW), s(sT0), v(vOW)))
        a('v_mul_u32_u24 %s, 0x900, %s' % (v(T[1]), v(T[1])))
        a('v_add_u32 %s, %s, %s' % (v(vYS), v(T[1]), v(T[2])))
        a('s_cmp_eq_u32 %s, 4' % s(sW))
        a('s_cselect_b32 %s, 8, 16' % s(sT1))
        a('s_cmp_gt_u32 %s, 4' % s(sW))
        a('s_cselect_b32 %s, 0, %s' % (s(sT1), s(sT1)))
        oob_unless(vYS, vYS, 'v_cmp_gt_u32 vcc, %s, %s' % (s(sT1), v(vN)))
        a('v_mul_u32_u24 %s, 0x1200, %s' % (v(T[1]), v(vG)))
        a('v_lshl_add_u32 %s, %s, 4, %s' % (v(T[1]), v(vN), v(T[1])))
        a('v_cndmask_b32 %s, %s, %s, vcc' % (v(vWoo), v(T[11]), v(T[1])))
        a('v_mul_u32_u24 %s, 0x1680, %s' % (v(T[1]), v(vG)))
        a('v_lshl_add_u32 %s, %s, 4, %s' % (v(T[1]), v(vN), v(T[1])))
        a('v_cndmask_b32 %s, %s, %s, vcc' % (v(vW2o), v(T[11]), v(T[1])))
        oob_unless(vW2o2, vW2o, 'v_cmp_gt_u32 vcc, 48, %s' % v(vL))
        a('s_lshl_b32 %s, %s, 8' % (s(sT1), s(sW)))
        a('s_mul_i32 %s, %s, 0x480' % (s(sW2), s(sC0)))
        a('s_add_u32 %s, %s, %s' % (s(sW2), s(sW2), s(sT1)))
        a('s_add_u32 %s, %s, %s' % (s(sWO), s(sHG), s(sS)))
        a('s_mul_i32 %s, %s, %d' % (s(sWO), s(sWO), 16 * 1152))
        a('s_add_u32 %s, %s, %s' % (s(sWO), s(sWO), s(sT1)))
        a('s_mul_i32 %s, s2, 4608' % s(sYS))
        a('s_lshl_b32 %s, %s, 9' % (s(sT1), s(sW)))
        a('s_add_u32 %s, %s, %s' % (s(sYS), s(sYS), s(sT1)))
        a('v_min_u32 %s, 129, v0' % v(vOR))
        a('v_lshlrev_b32 %s, 3, %s' % (v(vOR), v(vOR)))
        a('v_lshlrev_b32 %s, 4, v0' % v(vOP))
        oob_unless(vOP, vOP, 'v_cmp_gt_u32 vcc, 130, v0')
        a('s_add_u32 %s, %s, %s' % (s(sOP), s(sHG), s(sS)))
        a('s_mul_i32 %s, %s, %d' % (s(sOP), s(sOP), OXP))
        a('s_add_u32 %s, %s, 0x%x' % (s(sOP), s(sOP), OX))
        a('s_mul_i32 %s, %s, %d' % (s(sOG), s(sHG), OXP))
        a('s_add_u32 %s, %s, 0x%x' % (s(sOG), s(sOG), OX))
        a('v_and_b32 %s, 7, %s' % (v(T[1]), v(vL)))
        a('v_mul_u32_u24 %s, 0x%x, %s' % (v(T[1]), OXP, v(T[1])))
        a('v_lshl_add_u32 %s, %s, 4, %s' % (v(vXM), v(vBB), v(T[1])))
        a('v_lshl_add_u32 %s, %s, 10, %s' % (v(vXA), v(vBB), v(T[1])))
        a('v_lshl_add_u32 %s, %s, 5, %s' % (v(vXA), v(vG), v(vXA)))
        a('s_lshl_b32 %s, %s, 7' % (s(sT1), s(sS)))
        a('v_add_u32 %s, %s, %s' % (v(vXA), s(sT1), v(vXA)))
    def check_counter():
        a.wait_vm('cntld')
        a('v_readfirstlane_b32 %s, %s' % (s(sT0), v(vCNT)))
        a('s_cmp_ge_u32 %s, 256' % s(sT0))
        a('s_cbranch_scc1 L_cnt_ok')
        a('s_mov_b32 %s, 0x%x' % (s(sSPIN), P.spin))
        a.label('L_cnt_spin')
        a('v_mov_b32 %s, 0' % v(T[0]))
        a.lines.append('    buffer_load_dword %s, %s, %s, 0 offen sc1' % (v(vCNT), v(T[0]), s(rDBG, 4)))
        a.lines.append('    s_waitcnt vmcnt(0)')
        a('v_readfirstlane_b32 %s, %s' % (s(sT0), v(vCNT)))
        a('s_sub_u32 %s, %s, 1' % (s(sSPIN), s(sSPIN)))
        a('s_cbranch_scc1 L_cnt_ok')
        a('s_cmp_lt_u32 %s, 256' % s(sT0))
        a('s_cbranch_scc1 L_cnt_spin')
        a.label('L_cnt_ok')
    WD = RB
    def deferred():
        for i in range(5):
            so = 1152 * i
            if i < 3:
                a('buffer_load_dwordx4 %s, %s, %s, %s offen offset:%d%s' % (v(WD + 4 * i, 4), v(vW2o), s(rW2, 4), s(sW2), so, wnt), tag='w2')
            else:
                if i == 3:
                    a('s_add_u32 %s, %s, %d' % (s(sW2), s(sW2), 3 * 1152))
                a('buffer_load_dwordx4 %s, %s, %s, %s offen offset:%d%s' % (v(WD + 4 * i, 4), v(vW2o2), s(rW2, 4), s(sW2), so - 3 * 1152, wnt), tag='w2')
        for i in range(4):
            a('buffer_load_dwordx4 %s, %s, %s, %s offen offset:%d%s' % (v(WD + 20 + 4 * i, 4), v(vWoo), s(rWO, 4), s(sWO), 1152 * i, wnt), tag='wo')
    did = False
    for n in range(8, 16):
        for r in range(4):
            j = 4 * n + r
            A = AF[r & 1]
            for d in range(4):
                a('v_and_b32_dpp %s, %s, %s row_newbcast:%d%s' % (v(A + d), v(SC + n - 8), v(MASK + d), 4 * r, DPP))
            step(j)
            mfma(OA[(n - 8) >> 2], A, RB + 4 * (j % RN), None if (n & 3) == 0 and r == 0 else 1)
            refill(j)
            if j == P.defer_at:
                assert j > 44
                deferred(); did = True
        if n == 8:
            tail_prep()
        if n == 11:
            check_counter()
    assert did
    stamp()
    a('s_mov_b32 %s, 0' % s(sM)); a('s_mov_b32 %s, -1' % s(sM + 1))
    for r in range(4):
        a('v_cndmask_b32 %s, %s, %s, %s' % (v(OA[0] + r), v(OA[0] + r), v(OA[1] + r), s(sM, 2)))
    a('ds_write_b128 %s, %s offset:%d' % (v(vOW), v(OA[0], 4), OBUF))
    a('s_waitcnt lgkmcnt(0)')
    a('s_barrier')
    a('s_cmp_gt_u32 %s, 2' % s(sW)); a('s_cbranch_scc1 L_pubbed')
    for w in range(8):
        a('ds_read_b64 %s, %s offset:%d' % (v(QR + 2 * w, 2), v(vOR), OBUF + OP * w))
    a('s_waitcnt lgkmcnt(0)')
    for st in (1, 2):
        for w in range(0, 8, 2 * st):
            for r in range(2):
                a('v_add_f32 %s, %s, %s' % (v(QR + 2 * w + r), v(QR + 2 * w + r), v(QR + 2 * (w + st) + r)))
    a('v_add_f32 %s, %s, %s' % (v(TAG), v(QR), v(QR + 8)))
    a('v_add_f32 %s, %s, %s' % (v(TAG + 2), v(QR + 1), v(QR + 9)))
    a.lines.append('    buffer_store_dwordx4 %s, %s, %s, %s offen sc1' % (v(TAG, 4), v(vOP), s(rWS, 4), s(sOP)))
    a.label('L_pubbed'); a.hist = []
    stamp()
    a('s_cmp_gt_u32 %s, 4' % s(sW)); a('s_cbranch_scc1 L_stored')
    XG = 48
    def o_gather(track):
        for txt in ('buffer_load_dwordx4 %s, %s, %s, %s offen sc1' % (v(XG, 4), v(vXA), s(rWS, 4), s(sOG)),
                    'buffer_load_dwordx4 %s, %s, %s, %s offen offset:16 sc1' % (v(XG + 4, 4), v(vXA), s(rWS, 4), s(sOG)),
                    'buffer_load_dwordx4 %s, %s, %s, %s offen offset:2048 sc1' % (v(XG + 8, 4), v(vXM), s(rWS, 4), s(sOG))):
            a.lines.append('    ' + txt)
    o_gather(False)
    a('s_waitcnt vmcnt(3)')
    for i in range(5):
        mfma(PACC, HF + 4 * i, WD + 4 * i, 1)
    a('v_mov_b32 %s, %s' % (v(T[6]), s(sG0))); a('v_mov_b32 %s, %s' % (v(T[5]), s(sG1)))
    a('v_cndmask_b32 %s, %s, %s, %s' % (v(T[6]), v(T[6]), v(T[5]), s(sBB, 2)))
    a.wait_vm0()
    spin('o', [XG, XG + 4, XG + 8], o_gather)
    stamp()
    MM = T[4]
    a('v_mov_b32 %s, %s' % (v(MM), v(XG + 8)))
    red8([MM], 'v_max_f32')
    a('v_sub_f32 %s, %s, %s' % (v(MM), v(XG + 8), v(MM)))
    a('v_exp_f32 %s, %s' % (v(MM), v(MM)))
    U = [XG, XG + 2, XG + 4, XG + 6]
    for x in U + [XG + 10]:
        a('v_mul_f32 %s, %s, %s' % (v(x), v(x), v(MM)))
    red8([XG + 10] + U, 'v_add_f32')
    a('v_rcp_f32 %s, %s' % (v(MM), v(XG + 10)))
    a('v_mul_f32 %s, %s, %s' % (v(MM), v(MM), v(T[6])))
    AQ = 16
    for i in range(4):
        a('v_mul_f32 %s, %s, %s' % (v(U[i]), v(U[i]), v(MM)))
    for i in range(4):
        a('v_cvt_pk_bf16_f32 %s, %s, %s' % (v(U[i]), v(U[i]), v(U[i])))
    for i in range(4):
        delta(AQ + 4 * i, U[i])
    for i in range(4):
        mfma(PACC, AQ + 4 * i, WD + 20 + 4 * i, 1)
    for r in range(4):
        a('v_min_u32 %s, -2, %s' % (v(PACC + r), v(PACC + r)))
    a('buffer_store_dwordx4 %s, %s, %s, %s offen sc1' % (v(PACC, 4), v(vYS), s(rWS, 4), s(sYS)))
    a.label('L_stored'); a.hist = []
    stamp()
    a('s_cmp_ge_u32 s2, 144'); a('s_cbranch_scc1 L_fin')
    if P.fbar:
        a('s_barrier')
    R, vo, t_ = 8, 12, 13
    a('v_lshrrev_b32 %s, 1, v0' % v(vo))
    a('v_mul_u32_u24 %s, 0x1200, %s' % (v(vo), v(vo)))
    a('v_and_b32 %s, 1, v0' % v(t_))
    a('v_lshl_add_u32 %s, %s, 4, %s' % (v(vo), v(t_), v(vo)))
    a('s_lshl_b32 %s, s2, 5' % s(sT0))
    a('s_mov_b32 %s, 0x%x' % (s(sSPIN), P.spin))
    a.label('L_poll')
    a('buffer_load_dwordx4 %s, %s, %s, %s offen sc1' % (v(R, 4), v(vo), s(rWS, 4), s(sT0)))
    a.wait_vm0()
    a('v_max3_u32 %s, %s, %s, %s' % (v(t_), v(R), v(R + 1), v(R + 2)))
    a('v_max_u32 %s, %s, %s' % (v(t_), v(t_), v(R + 3)))
    a('v_cmp_eq_u32 vcc, -1, %s' % v(t_))
    a('s_sub_u32 %s, %s, 1' % (s(sSPIN), s(sSPIN)))
    a('s_cbranch_scc1 L_poll_ok')
    a('s_cbranch_vccnz L_poll')
    a.label('L_poll_ok')
    for d in ('quad_perm:[2,3,0,1]', 'row_ror:4', 'row_ror:8'):
        for r in range(4):
            a('v_add_f32_dpp %s, %s, %s %s%s' % (v(R + r), v(R + r), v(R + r), d, DPP))
    a('v_and_b32 %s, 1, v0' % v(t_))
    a('v_lshlrev_b32 %s, 9, %s' % (v(t_), v(t_)))
    a('v_lshrrev_b32 %s, 4, v0' % v(vo))
    a('v_lshl_add_u32 %s, %s, 2, %s' % (v(t_), v(vo), v(t_)))
    a('s_mov_b32 exec_lo, 0x00030003'); a('s_mov_b32 exec_hi, 0x00030003')
    for r in range(4):
        a('ds_write_b32 %s, %s offset:%d' % (v(t_), v(R + r), RED + 128 * r))
    a('s_mov_b64 exec, -1')
    a('s_waitcnt lgkmcnt(0)')
    a('s_barrier')
    a('s_cmp_lg_u32 %s, 0' % s(sW)); a('s_cbranch_scc1 L_fin')
    a('v_lshlrev_b32 %s, 4, v0' % v(t_))
    a('ds_read_b128 %s, %s offset:%d' % (v(R, 4), v(t_), RED))
    a('v_lshrrev_b32 %s, 3, v0' % v(vo))
    a('v_lshlrev_b32 %s, 1, %s' % (v(vo), v(vo)))
    a('s_lshl_b32 %s, s2, 4' % s(sT0))
    a('v_add_u32 %s, %s, %s' % (v(vo), s(sT0), v(vo)))
    a('s_waitcnt lgkmcnt(0)')
    a('v_add_f32 %s, %s, %s' % (v(R), v(R), v(R + 1)))
    a('v_add_f32 %s, %s, %s' % (v(R + 2), v(R + 2), v(R + 3)))
    a('v_add_f32 %s, %s, %s' % (v(R), v(R), v(R + 2)))
    red8([R], 'v_add_f32')
    a('v_cvt_pk_bf16_f32 %s, %s, %s' % (v(R), v(R), v(R)))
    a('s_mov_b32 exec_lo, 0x01010101'); a('s_mov_b32 exec_hi, 0x01010101')
    a('global_store_short %s, %s, %s' % (v(vo), v(R), s(pOUT, 2)))
    a('s_cmp_lg_u32 s2, 0'); a('s_cbranch_scc1 L_fin')
    a('s_mov_b64 exec, 1')
    a('v_mov_b32 v14, %s' % s(sTG0)); a('v_mov_b32 v15, %s' % s(sTG1))
    a('v_mov_b32 v12, 0x%x' % EP)
    a('global_store_dwordx2 v12, v[14:15], %s sc1' % s(pWS, 2))
    a.label('L_fin'); a.hist = []
    stamp()
    stamp_flush()
    a.label('L_end')
    a('s_endpgm')
    a.raw('.section .rodata,"a"')
    a.raw('.p2align 6')
    a.raw('.amdhsa_kernel ' + K1)
    a.raw('  .amdhsa_next_free_vgpr 256')
    a.raw('  .amdhsa_next_free_sgpr 102')
    a.raw('  .amdhsa_accum_offset 256')
    a.raw('  .amdhsa_group_segment_fixed_size 0')
    a.raw('  .amdhsa_kernarg_size 112')
    a.raw('  .amdhsa_user_sgpr_count 2')
    a.raw('  .amdhsa_user_sgpr_kernarg_segment_ptr 1')
    a.raw('  .amdhsa_system_sgpr_workgroup_id_x 1')
    a.raw('  .amdhsa_float_denorm_mode_32 3')
    a.raw('.end_amdhsa_kernel')
    launch = '; @launch grid=(256,1,1) block=(512,1,1) lds=%d\n' % LDS_BYTES
    return HEADER + launch + a.text(), stampn[0]

def parse(argv=None):
    ap = argparse.ArgumentParser()
    ap.add_argument('-o', default=None)
    for k, d in (('depth', 4), ('batch', 2), ('k0', 4), ('p1', 1), ('p2', 3), ('p3', 5), ('dpro', 6), ('dmid', 6), ('w1nt', 0), ('kfl', 1), ('vfl', 1), ('wfl', 1),
                 ('diag', 0), ('early0', 0), ('probe', -1), ('probe_wg', 0), ('prep_at', 5), ('defer_at', 61), ('fbar', 1)):
        ap.add_argument('--' + k, type=int, default=d)
    ap.add_argument('--spin', type=lambda x: int(x, 0), default=0x40000)
    return ap.parse_args(argv)

if __name__ == '__main__':
    P = parse()
    txt, ns = gen(P)
    out = P.o or os.path.join(os.path.dirname(os.path.abspath(__file__)), '..', 'cdna_kernels', NAME + '.s')
    open(out, 'w').write(txt)
    print('wrote', out, len(txt), 'bytes; stamps', ns, 'lds', LDS_BYTES)
```

```python
import sys, os, math, struct, argparse
sys.path.insert(0, os.path.dirname(os.path.abspath(__file__)))
from asmlib import Asm

NAME = 'gated_mix__mha_block_cached__mixer_channel_mlp__decode'
def f2u(x):
    return struct.unpack('<I', struct.pack('<f', x))[0]
HEADER = open(os.path.join(os.path.dirname(os.path.abspath(__file__)), '..', 'cdna_kernels', NAME + '.s.ref')).read().split('; Override launch')[0]

HPART, QB, TG, HB, MX, OBUF = 0, 4096, 4608, 4624, 5136, 5200
OP = 1040
RED = OBUF + 8 * OP
LDS_BYTES = RED + 1024
PART_BYTES = 256 * 4608
QX = PART_BYTES
OX = QX + 256 * 2048
OXP = 2304
EP = OX + 256 * OXP
WS_BYTES = EP + 128
DIAG = 0x400000
OOB = 0x80000000
NV = 168

def gen(P):
    a = Asm()
    FL = {0: '', 1: ' nt', 2: ' sc1', 3: ' sc0 sc1', 4: ' sc1 nt', 5: ' sc0 sc1 nt'}
    wnt = FL[P.wfl]; w1nt = FL[P.w1fl]
    D = P.depth
    vL = 1; MASK = 4; AF = [8, 12]
    sW, sH, sS, sHG, sC0, sKV, sT0, sT1, sT2, sG, sSPIN = 3, 4, 5, 6, 7, 8, 9, 10, 11, 12, 13
    pX, pK, pV, pWQ, pWO, pW1, pB1, pW2, pB2, pGW, pOUT, pDBG, pWS = 16, 18, 20, 22, 24, 28, 30, 32, 34, 36, 38, 40, 42
    rK, rV, rWQ, rWO, rW1, rW2, rWS, rDBG, rB1, rB2 = 44, 48, 52, 56, 60, 64, 68, 72, 76, 96
    sMU0, sMU1, sRS0, sRS1, sG0, sG1, sTG0, sTG1 = 80, 81, 82, 83, 84, 85, 86, 87
    sHI, sC, sBB, sM = 90, 91, 92, 94
    sST = 26
    vSTAMP = 2 if False else None
    def v(n, k=1):
        assert n + k <= NV, n
        return 'v%d' % n if k == 1 else 'v[%d:%d]' % (n, n + k - 1)
    def s(n, k=1):
        return 's%d' % n if k == 1 else 's[%d:%d]' % (n, n + k - 1)
    def srd(r, p, nbytes):
        a('s_mov_b32 %s, %s' % (s(r), s(p)))
        a('s_mov_b32 %s, %s' % (s(r + 1), s(p + 1)))
        a('s_mov_b32 %s, 0x%x' % (s(r + 2), nbytes))
        a('s_mov_b32 %s, 0x20000' % s(r + 3))
    def smask(val16):
        w = val16 | (val16 << 16)
        a('s_mov_b32 %s, 0x%x' % (s(sM), w)); a('s_mov_b32 %s, 0x%x' % (s(sM + 1), w))
    DPP = ' row_mask:0xf bank_mask:0xf'
    VS = 71
    def stamp(n):
        if not P.diag:
            return
        a('s_memrealtime %s' % s(sST, 2))
        a('s_waitcnt lgkmcnt(0)')
        a('v_writelane_b32 v%d, %s, %d' % (VS, s(sST), n))
    def stamp_flush():
        if not P.diag:
            return
        a('s_mov_b64 exec, -1')
        a('s_mul_i32 s100, s2, 12'); a('s_add_u32 s100, s100, %s' % s(sW)); a('s_lshl_b32 s100, s100, 7')
        a('s_add_u32 s100, s100, 0x%x' % DIAG)
        a('v_lshlrev_b32 v70, 2, %s' % v(vL))
        a('s_mov_b32 exec_hi, 0')
        a('buffer_store_dword v%d, v70, %s, s100 offen' % (VS, s(rWS, 4)))
    def red32(x, t, op):
        for d in ('quad_perm:[1,0,3,2]', 'quad_perm:[2,3,0,1]', 'row_ror:4', 'row_ror:8'):
            a('%s_dpp %s, %s, %s %s%s' % (op, v(x), v(x), v(x), d, DPP))
        a('v_mov_b32 %s, %s' % (v(t), v(x)))
        a('v_permlane16_swap_b32 %s, %s' % (v(x), v(t)))
        a('%s %s, %s, %s' % (op, v(x), v(x), v(t)))
    def redquads64(xs, ts, op):
        for d in ('row_ror:4', 'row_ror:8'):
            for x in xs:
                a('%s_dpp %s, %s, %s %s%s' % (op, v(x), v(x), v(x), d, DPP))
        for sw in ('v_permlane16_swap_b32', 'v_permlane32_swap_b32'):
            for x, t in zip(xs, ts):
                a('v_mov_b32 %s, %s' % (v(t), v(x)))
            for x, t in zip(xs, ts):
                a('%s %s, %s' % (sw, v(x), v(t)))
            for x, t in zip(xs, ts):
                a('%s %s, %s, %s' % (op, v(x), v(x), v(t)))
    def red8(xs, op):
        for d in ('quad_perm:[1,0,3,2]', 'quad_perm:[2,3,0,1]', 'row_half_mirror'):
            for x in xs:
                a('%s_dpp %s, %s, %s %s%s' % (op, v(x), v(x), v(x), d, DPP))
    def delta(dst, src):
        for d in range(4):
            a('v_and_b32 %s, %s, %s' % (v(dst + d), v(src), v(MASK + d)))
    def mfma(d, A, B, c=None):
        a('v_mfma_f32_16x16x32_bf16 %s, %s, %s, %s' % (v(d, 4), v(A, 4), v(B, 4), '0' if c is None else v(d, 4)))
    def masks(t0, t1):
        a('v_and_b32 %s, 1, %s' % (v(t0), v(vL)))
        a('v_lshlrev_b32 %s, 4, %s' % (v(t0), v(t0)))
        a('v_mov_b32 %s, 0xffff' % v(t1))
        a('v_lshlrev_b32 %s, %s, %s' % (v(t0), v(t0), v(t1)))
        for d in range(4):
            smask(0x0303 << (2 * d))
            a('v_cndmask_b32 %s, 0, %s, %s' % (v(MASK + d), v(t0), s(sM, 2)))
    def newpath(name):
        a.label(name); a.hist = []; a.vm = []

    K1 = NAME + '_kernel'
    a.raw('.amdgcn_target "amdgcn-amd-amdhsa--gfx950"')
    a.raw('.text'); a.raw('.globl ' + K1); a.raw('.p2align 8'); a.raw('.type %s,@function' % K1)
    a.label(K1)
    a('s_cmp_ge_u32 s2, 256'); a('s_cbranch_scc1 L_end')
    a('s_load_dwordx16 s[16:31], s[0:1], 0')
    a('s_load_dwordx8 s[32:39], s[0:1], 64')
    a('s_load_dwordx4 s[40:43], s[0:1], 96')
    a('v_lshrrev_b32 v2, 6, v0')
    a('v_and_b32 %s, 63, v0' % v(vL))
    a('v_readfirstlane_b32 %s, v2' % s(sW))
    a('s_and_b32 %s, s2, 7' % s(sT0))
    a('s_lshr_b32 %s, s2, 3' % s(sT1))
    a('s_and_b32 %s, %s, 3' % (s(sH), s(sT1)))
    a('s_lshl_b32 %s, %s, 2' % (s(sT2), s(sT0)))
    a('s_add_u32 %s, %s, %s' % (s(sH), s(sH), s(sT2)))
    a('s_lshr_b32 %s, %s, 2' % (s(sS), s(sT1)))
    a('s_lshl_b32 %s, %s, 3' % (s(sHG), s(sH)))
    if P.diag:
        a('v_mov_b32 v%d, 0' % VS)
    a('s_cmp_lt_u32 %s, 4' % s(sW)); a('s_cbranch_scc1 L_helper')

    vKo, vVo = 2, 3
    BQ = 16; QV = 32; SC = 40; SACC = [48, 52]; OA = [56, 60]; T = list(range(64, 70))
    RB = 72; RN = (NV - RB) // 4
    sSW = 14
    a('s_sub_u32 %s, %s, 4' % (s(sSW), s(sW)))
    a('s_lshl_b32 %s, %s, 20' % (s(sKV), s(sH)))
    a('s_lshl_b32 %s, %s, 17' % (s(sT2), s(sS))); a('s_add_u32 %s, %s, %s' % (s(sKV), s(sKV), s(sT2)))
    a('s_lshl_b32 %s, %s, 12' % (s(sT2), s(sSW))); a('s_add_u32 %s, %s, %s' % (s(sKV), s(sKV), s(sT2)))
    a('v_lshrrev_b32 %s, 4, %s' % (v(T[1]), v(vL)))
    a('v_lshlrev_b32 %s, 4, %s' % (v(vVo), v(vL)))
    a('v_bfe_u32 %s, %s, 2, 2' % (v(T[0]), v(vL)))
    a('v_lshlrev_b32 %s, 8, %s' % (v(vKo), v(T[0])))
    a('v_lshl_add_u32 %s, %s, 6, %s' % (v(vKo), v(T[1]), v(vKo)))
    a('v_and_b32 %s, 3, %s' % (v(T[0]), v(vL)))
    a('v_lshl_add_u32 %s, %s, 4, %s' % (v(vKo), v(T[0]), v(vKo)))
    a('s_waitcnt lgkmcnt(0)')
    srd(rK, pK, 1 << 26)
    stamp(0)
    ip = [0]; cp = [0]
    def issue_one():
        j = ip[0]; ip[0] += 1
        assert j - RN < cp[0]
        n, i = j >> 2, j & 3
        if i == 0:
            g = n & 7
            a('s_add_u32 %s, %s, 0x%x' % (s(sG), s(sKV), ((g >> 2) << 25) + ((g & 3) << 15)))
        a('buffer_load_dwordx4 %s, %s, %s, %s offen offset:%d%s' % (
            v(RB + 4 * (j % RN), 4), v(vKo if j < 32 else vVo), s(rK if j < 32 else rV, 4), s(sG), 1024 * i, FL[P.kfl if j < 32 else P.vfl]), tag='L%d' % j)
    B = P.batch
    for _ in range(D):
        issue_one()
    srd(rV, pV, 1 << 26)
    srd(rWS, pWS, (DIAG + 0x80000) if P.diag else WS_BYTES)
    a('s_mov_b32 %s, 0x%x' % (s(sC), f2u(math.log2(math.e) / math.sqrt(128.0))))
    a('v_lshl_add_u32 %s, %s, 2, %s' % (v(T[2]), v(T[1]), v(T[0])))
    a('v_lshlrev_b32 %s, 4, %s' % (v(T[2]), v(T[2])))
    a('v_mov_b32 %s, 0' % v(T[3]))
    masks(T[0], T[1])
    assert P.pre <= RN
    while ip[0] < P.pre:
        a.wait_vm('L%d' % (ip[0] - D + B - 1))
        for _ in range(B):
            issue_one()
    stamp(1)
    a('s_barrier')
    a('ds_read_b128 %s, %s offset:%d' % (v(QV, 4), v(T[2]), QB))
    a('ds_read_b128 %s, %s offset:%d' % (v(QV + 4, 4), v(T[2]), QB + 256))
    a('ds_read_b64 %s, %s offset:%d' % (v(T[4], 2), v(T[3]), TG))
    a('s_waitcnt lgkmcnt(0)')
    def qfrag(b):
        for i in range(4):
            smask(0xf << (4 * i))
            for d in range(4):
                a('v_cndmask_b32 %s, 0, %s, %s' % (v(BQ + 4 * i + d), v(QV + 4 * b + d), s(sM, 2)))
    stamp(2)
    def score(n):
        acc = SACC[n & 1]
        a('v_mov_b32_dpp %s, %s quad_perm:[0,0,0,0]%s' % (v(SC + n), v(acc), DPP))
        for c in range(1, 4):
            a('v_add_f32_dpp %s, %s, %s quad_perm:[%d,%d,%d,%d]%s' % (v(SC + n), v(acc + c), v(SC + n), c, c, c, c, DPP))
    def refill(j, depth=None):
        cp[0] = j + 1
        if (j + 1) % B == 0:
            while ip[0] < min(64, j + 1 + (depth or D)):
                issue_one()
    for n in range(8):
        if n % 4 == 0:
            qfrag(n >> 2)
        for i in range(4):
            j = 4 * n + i
            a.wait_vm('L%d' % j)
            mfma(SACC[n & 1], RB + 4 * (j % RN), BQ + 4 * i, None if i == 0 else 1)
            if n == 0 and P.kick:
                cp[0] = j + 1
                if i < P.kick:
                    issue_one()
            refill(j, P.dmid if j == 31 else None)
        if n > 0:
            score(n - 1)
    score(7)
    stamp(3)
    vMC = 16; ML = 20; TAG = 24; vOW, vOR, vOP = 28, 29, 30; QR = 72
    for b in range(2):
        a('v_max3_f32 %s, %s, %s, %s' % (v(vMC + b), v(SC + 4 * b), v(SC + 4 * b + 1), v(SC + 4 * b + 2)))
        a('v_max_f32 %s, %s, %s' % (v(vMC + b), v(vMC + b), v(SC + 4 * b + 3)))
    redquads64([vMC, vMC + 1], [T[0], T[1]], 'v_max_f32')
    a('s_lshl_b32 %s, %s, 3' % (s(sT0), s(sSW)))
    a('v_mov_b32 %s, %s' % (v(T[0]), s(sT0)))
    a('ds_write_b64 %s, %s offset:%d' % (v(T[0]), v(vMC, 2), MX))
    a('v_and_b32 %s, 7, %s' % (v(T[1]), v(vL)))
    a('v_lshlrev_b32 %s, 3, %s' % (v(T[1]), v(T[1])))
    a('s_waitcnt lgkmcnt(0)')
    a('s_barrier')
    a('ds_read_b64 %s, %s offset:%d' % (v(vMC, 2), v(T[1]), MX))
    a('s_waitcnt lgkmcnt(0)')
    red8([vMC, vMC + 1], 'v_max_f32')
    for b in range(2):
        a('v_mul_f32 %s, %s, %s' % (v(vMC + b), s(sC), v(vMC + b)))
    for n in range(8):
        a('v_fma_f32 %s, %s, %s, -%s' % (v(SC + n), v(SC + n), s(sC), v(vMC + (n >> 2))))
    for n in range(8):
        a('v_exp_f32 %s, %s' % (v(SC + n), v(SC + n)))
    for b in range(2):
        L_ = ML + 2 * b + 1
        a('v_add_f32 %s, %s, %s' % (v(L_), v(SC + 4 * b), v(SC + 4 * b + 1)))
        a('v_add_f32 %s, %s, %s' % (v(L_), v(L_), v(SC + 4 * b + 2)))
        a('v_add_f32 %s, %s, %s' % (v(L_), v(L_), v(SC + 4 * b + 3)))
    for n in range(8):
        a('v_cvt_pk_bf16_f32 %s, %s, %s' % (v(SC + n), v(SC + n), v(SC + n)))
    sOP = 88
    vRO = 31
    def tail_prep():
        redquads64([ML + 1, ML + 3], [T[0], T[1]], 'v_add_f32')
        a('s_cmp_eq_u32 %s, 0' % s(sSW))
        a('s_cselect_b32 %s, -1, 0' % s(sT0))
        for b in range(2):
            a('v_and_b32 %s, %s, %s' % (v(ML + 2 * b), s(sT0), v(vMC + b)))
        a('s_mul_i32 %s, %s, %d' % (s(sT0), s(sSW), OP))
        a('v_mov_b32 %s, %s' % (v(T[0]), s(sT0)))
        a('ds_write_b128 %s, %s offset:%d' % (v(T[0]), v(ML, 4), OBUF + 1024))
        a('v_mov_b32 %s, %s' % (v(TAG + 1), v(T[4]))); a('v_mov_b32 %s, %s' % (v(TAG + 3), v(T[5])))
        a('v_lshrrev_b32 %s, 5, %s' % (v(T[1]), v(vL)))
        a('v_and_b32 %s, 15, %s' % (v(T[2]), v(vL)))
        a('v_lshlrev_b32 %s, 5, %s' % (v(T[2]), v(T[2])))
        a('v_and_b32 %s, 16, %s' % (v(T[3]), v(vL)))
        a('v_add_u32 %s, %s, %s' % (v(T[2]), v(T[2]), v(T[3])))
        a('v_lshl_add_u32 %s, %s, 9, %s' % (v(vOW), v(T[1]), v(T[2])))
        a('v_add_u32 %s, %s, %s' % (v(vOW), s(sT0), v(vOW)))
        a('v_subrev_u32 v0, 256, v0')
        a('v_min_u32 %s, 129, v0' % v(vOR))
        a('v_lshlrev_b32 %s, 3, %s' % (v(vOR), v(vOR)))
        a('v_lshlrev_b32 %s, 4, v0' % v(vOP))
        a('v_cmp_gt_u32 vcc, 130, v0')
        a('v_mov_b32 %s, 0x%x' % (v(T[0]), OOB))
        a('v_cndmask_b32 %s, %s, %s, vcc' % (v(vOP), v(T[0]), v(vOP)))
        a('s_add_u32 %s, %s, %s' % (s(sOP), s(sHG), s(sS)))
        a('s_mul_i32 %s, %s, %d' % (s(sOP), s(sOP), OXP))
        a('s_add_u32 %s, %s, 0x%x' % (s(sOP), s(sOP), OX))
        a('v_lshrrev_b32 %s, 1, v0' % v(vRO))
        a('v_mul_u32_u24 %s, 0x1200, %s' % (v(vRO), v(vRO)))
        a('v_and_b32 %s, 1, v0' % v(T[0]))
        a('v_lshl_add_u32 %s, %s, 4, %s' % (v(vRO), v(T[0]), v(vRO)))
    for n in range(8, 16):
        for r in range(4):
            j = 4 * n + r
            A = AF[r & 1]
            for d in range(4):
                a('v_and_b32_dpp %s, %s, %s row_newbcast:%d%s' % (v(A + d), v(SC + n - 8), v(MASK + d), 4 * r, DPP))
            a.wait_vm('L%d' % j)
            mfma(OA[(n - 8) >> 2], A, RB + 4 * (j % RN), None if (n & 3) == 0 and r == 0 else 1)
            refill(j)
            if j == P.defer_at:
                a('s_barrier')
        if n == 8:
            tail_prep()
    stamp(4)
    a('s_mov_b32 %s, 0' % s(sM)); a('s_mov_b32 %s, -1' % s(sM + 1))
    for r in range(4):
        a('v_cndmask_b32 %s, %s, %s, %s' % (v(OA[0] + r), v(OA[0] + r), v(OA[1] + r), s(sM, 2)))
    a('ds_write_b128 %s, %s offset:%d' % (v(vOW), v(OA[0], 4), OBUF))
    a('s_waitcnt lgkmcnt(0)')
    a('s_barrier')
    a('s_cmp_gt_u32 %s, 2' % s(sSW)); a('s_cbranch_scc1 L_pubbed')
    for w in range(8):
        a('ds_read_b64 %s, %s offset:%d' % (v(QR + 2 * w, 2), v(vOR), OBUF + OP * w))
    a('s_waitcnt lgkmcnt(0)')
    for st in (1, 2):
        for w in range(0, 8, 2 * st):
            for r in range(2):
                a('v_add_f32 %s, %s, %s' % (v(QR + 2 * w + r), v(QR + 2 * w + r), v(QR + 2 * (w + st) + r)))
    a('v_add_f32 %s, %s, %s' % (v(TAG), v(QR), v(QR + 8)))
    a('v_add_f32 %s, %s, %s' % (v(TAG + 2), v(QR + 1), v(QR + 9)))
    a('buffer_store_dwordx4 %s, %s, %s, %s offen sc1' % (v(TAG, 4), v(vOP), s(rWS, 4), s(sOP)))
    newpath('L_pubbed')
    stamp(5)
    a('s_cmp_ge_u32 s2, 144'); a('s_cbranch_scc1 L_fin')
    a('s_barrier')
    R, vo, t_ = 8, 12, 13
    a('s_lshl_b32 %s, s2, 5' % s(sT0))
    a('s_mov_b32 %s, 0x%x' % (s(sSPIN), P.spin))
    a.label('L_poll')
    a('buffer_load_dwordx4 %s, %s, %s, %s offen sc1' % (v(R, 4), v(vRO), s(rWS, 4), s(sT0)))
    a.wait_vm0()
    a('v_max3_u32 %s, %s, %s, %s' % (v(t_), v(R), v(R + 1), v(R + 2)))
    a('v_max_u32 %s, %s, %s' % (v(t_), v(t_), v(R + 3)))
    a('v_cmp_eq_u32 vcc, -1, %s' % v(t_))
    a('s_sub_u32 %s, %s, 1' % (s(sSPIN), s(sSPIN)))
    a('s_cbranch_scc1 L_poll_ok')
    a('s_cbranch_vccnz L_poll')
    a.label('L_poll_ok')
    for d in ('quad_perm:[2,3,0,1]', 'row_ror:4', 'row_ror:8'):
        for r in range(4):
            a('v_add_f32_dpp %s, %s, %s %s%s' % (v(R + r), v(R + r), v(R + r), d, DPP))
    a('v_and_b32 %s, 1, v0' % v(t_))
    a('v_lshlrev_b32 %s, 9, %s' % (v(t_), v(t_)))
    a('v_lshrrev_b32 %s, 4, v0' % v(vo))
    a('v_lshl_add_u32 %s, %s, 2, %s' % (v(t_), v(vo), v(t_)))
    a('s_mov_b32 exec_lo, 0x00030003'); a('s_mov_b32 exec_hi, 0x00030003')
    for r in range(4):
        a('ds_write_b32 %s, %s offset:%d' % (v(t_), v(R + r), RED + 128 * r))
    a('s_mov_b64 exec, -1')
    a('s_waitcnt lgkmcnt(0)')
    a('s_barrier')
    a('s_cmp_lg_u32 %s, 0' % s(sSW)); a('s_cbranch_scc1 L_fin')
    a('v_lshlrev_b32 %s, 4, v0' % v(t_))
    a('ds_read_b128 %s, %s offset:%d' % (v(R, 4), v(t_), RED))
    a('v_lshrrev_b32 %s, 3, v0' % v(vo))
    a('v_lshlrev_b32 %s, 1, %s' % (v(vo), v(vo)))
    a('s_lshl_b32 %s, s2, 4' % s(sT0))
    a('v_add_u32 %s, %s, %s' % (v(vo), s(sT0), v(vo)))
    a('s_waitcnt lgkmcnt(0)')
    a('v_add_f32 %s, %s, %s' % (v(R), v(R), v(R + 1)))
    a('v_add_f32 %s, %s, %s' % (v(R + 2), v(R + 2), v(R + 3)))
    a('v_add_f32 %s, %s, %s' % (v(R), v(R), v(R + 2)))
    red8([R], 'v_add_f32')
    a('v_cvt_pk_bf16_f32 %s, %s, %s' % (v(R), v(R), v(R)))
    a('s_mov_b32 exec_lo, 0x01010101'); a('s_mov_b32 exec_hi, 0x01010101')
    a('global_store_short %s, %s, %s' % (v(vo), v(R), s(pOUT, 2)))
    a('s_cmp_lg_u32 s2, 0'); a('s_cbranch_scc1 L_fin')
    a('s_mov_b64 exec, 1')
    a('v_mov_b32 v14, %s' % v(TAG + 1)); a('v_mov_b32 v15, %s' % v(TAG + 3))
    a('v_mov_b32 v12, 0x%x' % EP)
    a('global_store_dwordx2 v12, v[14:15], %s sc1' % s(pWS, 2))
    a.label('L_fin'); a.hist = []
    stamp(6)
    stamp_flush()
    a('s_endpgm')

    newpath('L_helper')
    vG, vN, vBB = 2, 3, 16
    T = list(range(17, 29))
    tO = T[11]
    XD = 30
    XS, GW = 48, 58
    HACC = 48
    B1 = 68
    W1R = 72
    BIG = 96
    XQ = 72
    def oob_unless(dst, src, cmp):
        a(cmp)
        a('v_mov_b32 %s, 0x%x' % (v(tO), OOB))
        a('v_cndmask_b32 %s, %s, %s, vcc' % (v(dst), v(tO), v(src)))
    a('v_lshrrev_b32 %s, 4, %s' % (v(vG), v(vL)))
    a('v_and_b32 %s, 15, %s' % (v(vN), v(vL)))
    a('v_bfe_u32 %s, %s, 3, 1' % (v(vBB), v(vL)))
    a('s_mul_i32 %s, %s, 576' % (s(sC0), s(sT0)))
    a('s_mul_i32 %s, %s, 18' % (s(sT2), s(sT1)))
    a('s_add_u32 %s, %s, %s' % (s(sC0), s(sC0), s(sT2)))
    a('s_mov_b32 %s, 0xffff0000' % s(sHI))
    a('s_mov_b32 %s, 0xff00ff00' % s(sBB)); a('s_mov_b32 %s, 0xff00ff00' % s(sBB + 1))
    a('s_cmp_lg_u32 %s, 0' % s(sW)); a('s_cbranch_scc1 L_noq')
    a('v_mul_u32_u24 %s, 18, %s' % (v(T[0]), v(vG)))
    a('v_lshlrev_b32 %s, 13, %s' % (v(T[1]), v(T[0])))
    a('v_lshl_add_u32 %s, %s, 4, %s' % (v(T[1]), v(vN), v(T[1])))
    a('v_mul_u32_u24 %s, 0x480, %s' % (v(T[2]), v(vBB)))
    a('v_lshl_add_u32 %s, %s, 1, %s' % (v(T[2]), v(T[0]), v(T[2])))
    a('s_mul_i32 %s, %s, 144' % (s(sT0), s(sS)))
    a('v_add_u32 %s, %s, %s' % (v(T[2]), s(sT0), v(T[2])))
    a('s_mul_i32 %s, %s, %d' % (s(sT0), s(sS), 72 * 8192))
    a('s_lshl_b32 %s, %s, 8' % (s(sT1), s(sH)))
    a('s_add_u32 %s, %s, %s' % (s(sT0), s(sT0), s(sT1)))
    a('v_mov_b32 %s, 0x%x' % (v(T[3]), EP))
    a('s_waitcnt lgkmcnt(0)')
    stamp(0)
    srd(rWQ, pWQ, 576 * 8192)
    a('global_load_dwordx4 %s, %s, %s' % (v(XQ, 4), v(T[2]), s(pX, 2)), tag='xq')
    a('global_load_dwordx4 %s, %s, %s offset:16' % (v(XQ + 4, 4), v(T[2]), s(pX, 2)), tag='xq')
    a('global_load_dword %s, %s, %s offset:32' % (v(XQ + 8), v(T[2]), s(pX, 2)), tag='xq')
    EV = 82
    a('global_load_dwordx2 %s, %s, %s sc1' % (v(EV, 2), v(T[3]), s(pWS, 2)), tag='ep')
    for i in range(18):
        a('buffer_load_dwordx4 %s, %s, %s, %s offen%s' % (v(BIG + 4 * i, 4), v(T[1]), s(rWQ, 4), s(sT0), wnt), tag='wq%d' % i)
        if i < 17:
            a('s_add_u32 %s, %s, 0x2000' % (s(sT0), s(sT0)))
    srd(rWS, pWS, (DIAG + 0x80000) if P.diag else WS_BYTES)
    masks(T[0], T[1])
    a('s_mov_b32 s88, 0x01000100'); a('s_mov_b32 s89, 0x03020302')
    a('v_lshrrev_b32 %s, 5, %s' % (v(T[0]), v(vL)))
    a('v_lshlrev_b32 %s, 10, %s' % (v(T[0]), v(T[0])))
    a('v_lshl_add_u32 %s, %s, 6, %s' % (v(T[0]), v(vN), v(T[0])))
    a('v_and_b32 %s, 16, %s' % (v(T[1]), v(vL)))
    a('v_lshl_add_u32 %s, %s, 1, %s' % (v(T[4]), v(T[1]), v(T[0])))
    a('s_add_u32 %s, %s, %s' % (s(sT0), s(sHG), s(sS)))
    a('s_lshl_b32 %s, %s, 11' % (s(sT0), s(sT0)))
    a('s_add_u32 %s, %s, 0x%x' % (s(sT0), s(sT0), QX))
    a.wait_vm('ep')
    PG = 84
    a('v_add_u32 %s, 1, %s' % (v(PG + 1), v(EV)))
    a('v_add_u32 %s, 0x9e3779b9, %s' % (v(PG + 3), v(EV + 1)))
    a('v_mov_b32 %s, %s' % (v(PG + 5), v(PG + 1))); a('v_mov_b32 %s, %s' % (v(PG + 7), v(PG + 3)))
    a('v_mov_b32 %s, %s' % (v(EV), v(PG + 1))); a('v_mov_b32 %s, %s' % (v(EV + 1), v(PG + 3)))
    a('v_mov_b32 %s, 0' % v(T[3]))
    a('ds_write_b64 %s, %s offset:%d' % (v(T[3]), v(EV, 2), TG))
    a('v_readfirstlane_b32 %s, %s' % (s(sTG0), v(PG + 1)))
    a('v_readfirstlane_b32 %s, %s' % (s(sTG1), v(PG + 3)))
    QA = 92
    for i in range(18):
        A = AF[i & 1]
        a('v_perm_b32 %s, %s, %s, %s' % (v(T[0]), v(XQ + i // 2), v(XQ + i // 2), 's89' if i & 1 else 's88'))
        delta(A, T[0])
        a.wait_vm('wq%d' % i)
        mfma(QA, A, BIG + 4 * i, None if i == 0 else 1)
    for r in range(4):
        a('v_mov_b32 %s, %s' % (v(PG + 2 * r), v(QA + r)))
    a('buffer_store_dwordx4 %s, %s, %s, %s offen sc1' % (v(PG, 4), v(T[4]), s(rWS, 4), s(sT0)))
    a('buffer_store_dwordx4 %s, %s, %s, %s offen offset:16 sc1' % (v(PG + 4, 4), v(T[4]), s(rWS, 4), s(sT0)))
    stamp(8)
    a('s_branch L_mlp')
    newpath('L_noq')
    a('s_waitcnt lgkmcnt(0)')
    stamp(0)
    srd(rWS, pWS, (DIAG + 0x80000) if P.diag else WS_BYTES)
    masks(T[0], T[1])
    a('s_cmp_lg_u32 %s, 1' % s(sW)); a('s_cbranch_scc1 L_mlp')
    srd(rDBG, pDBG, 256)
    a('v_lshlrev_b32 %s, 4, %s' % (v(T[0]), v(vL)))
    oob_unless(T[1], T[0], 'v_cmp_gt_u32 vcc, 32, %s' % v(vL))
    a('s_mul_i32 %s, s2, 4608' % s(sT0))
    a('s_add_u32 %s, %s, 4096' % (s(sT1), s(sT0)))
    for d in range(4):
        a('v_mov_b32 %s, -1' % v(AF[0] + d))
    for k in range(4):
        a('buffer_store_dwordx4 %s, %s, %s, %s offen offset:%d sc1' % (v(AF[0], 4), v(T[0]), s(rWS, 4), s(sT0), 1024 * k))
    a('buffer_store_dwordx4 %s, %s, %s, %s offen sc1' % (v(AF[0], 4), v(T[1]), s(rWS, 4), s(sT1)))
    a('v_mov_b32 %s, 0' % v(T[0]))
    oob_unless(T[0], T[0], 'v_cmp_eq_u32 vcc, 0, %s' % v(vL))
    a('v_mov_b32 %s, 1' % v(T[2]))
    a.wait_vm0()
    a('buffer_atomic_add %s, %s, %s, 0 offen sc1' % (v(T[2]), v(T[0]), s(rDBG, 4)))
    newpath('L_mlp')
    a('s_nop 1')
    vXd, vXs, vGw = T[4], T[5], T[6]
    a('v_mul_u32_u24 %s, 0x480, %s' % (v(vXd), v(vBB)))
    a('v_mul_u32_u24 %s, 72, %s' % (v(T[0]), v(vG)))
    a('s_mul_i32 %s, %s, 288' % (s(sT2), s(sW)))
    a('v_add3_u32 %s, %s, %s, %s' % (v(vXd), v(vXd), v(T[0]), s(sT2)))
    a('v_and_b32 %s, 31, %s' % (v(vGw), v(vL)))
    a('v_mul_u32_u24 %s, 36, %s' % (v(vGw), v(vGw)))
    a('v_lshrrev_b32 %s, 5, %s' % (v(vXs), v(vL)))
    a('v_mul_u32_u24 %s, 0x480, %s' % (v(vXs), v(vXs)))
    a('v_add_u32 %s, %s, %s' % (v(vXs), v(vXs), v(vGw)))
    for (dst, off, base, tag) in ((XS, vXs, pX, 'xs'), (GW, vGw, pGW, 'gw')):
        a('global_load_dwordx4 %s, %s, %s' % (v(dst, 4), v(off), s(base, 2)), tag=tag)
        a('global_load_dwordx4 %s, %s, %s offset:16' % (v(dst + 4, 4), v(off), s(base, 2)), tag=tag)
        a('global_load_dword %s, %s, %s offset:32' % (v(dst + 8), v(off), s(base, 2)), tag=tag)
    for k in range(4):
        a('global_load_dwordx4 %s, %s, %s offset:%d' % (v(XD + 4 * k, 4), v(vXd), s(pX, 2), 16 * k), tag='xd')
    a('global_load_dwordx2 %s, %s, %s offset:64' % (v(XD + 16, 2), v(vXd), s(pX, 2)), tag='xd')
    srd(rW1, pW1, 576 * 9216)
    vO, vO2 = T[4], T[5]
    a('v_mul_u32_u24 %s, 11, %s' % (v(T[0]), v(vN)))
    a('v_lshrrev_b32 %s, 5, %s' % (v(T[0]), v(T[0])))
    a('v_mul_u32_u24 %s, 3, %s' % (v(T[7]), v(T[0])))
    a('v_sub_u32 %s, %s, %s' % (v(T[7]), v(vN), v(T[7])))
    a('v_mad_u32_u24 %s, %s, 36, %s' % (v(T[0]), v(vG), v(T[0])))
    a('v_mul_u32_u24 %s, 0x2400, %s' % (v(vO), v(T[0])))
    a('v_lshl_add_u32 %s, %s, 4, %s' % (v(vO), v(T[7]), v(vO)))
    oob_unless(vO, vO, 'v_cmp_gt_u32 vcc, 15, %s' % v(vN))
    oob_unless(vO2, vO, 'v_cmp_gt_u32 vcc, 3, %s' % v(vN))
    a('s_mul_i32 %s, %s, %d' % (s(sT0), s(sW), 144 * 9216))
    a('s_lshl_b32 %s, %s, 1' % (s(sT1), s(sC0)))
    a('s_add_u32 %s, %s, %s' % (s(sT0), s(sT0), s(sT1)))
    for u in range(8):
        a('buffer_load_dwordx4 %s, %s, %s, %s offen%s' % (v(W1R + 4 * u, 4), v(vO if u < 7 else vO2), s(rW1, 4), s(sT0), w1nt), tag='w1_%d' % u)
        if u < 7:
            a('s_add_u32 %s, %s, %d' % (s(sT0), s(sT0), 5 * 9216))
    srd(rB1, pB1, 9216)
    a('v_and_b32 %s, 1, %s' % (v(T[0]), v(vG)))
    a('v_lshlrev_b32 %s, 3, %s' % (v(T[0]), v(T[0])))
    vC8 = T[8]
    a('v_lshl_add_u32 %s, %s, 4, %s' % (v(vC8), v(vN), v(T[0])))
    a('buffer_load_dwordx2 %s, %s, %s, %s offen' % (v(B1, 2), v(vC8), s(rB1, 4), s(sT1)), tag='b1')
    a.wait_vm('gw')
    S1, GD, t0, t1, t2, t3 = T[4], T[5], T[6], T[7], T[0], T[1]
    a('v_mov_b32 %s, 0' % v(S1)); a('v_mov_b32 %s, 0' % v(GD))
    for k in range(9):
        a('v_lshlrev_b32 %s, 16, %s' % (v(t0), v(XS + k)))
        a('v_and_b32 %s, %s, %s' % (v(t1), s(sHI), v(XS + k)))
        a('v_lshlrev_b32 %s, 16, %s' % (v(t2), v(GW + k)))
        a('v_and_b32 %s, %s, %s' % (v(t3), s(sHI), v(GW + k)))
        a('v_add_f32 %s, %s, %s' % (v(S1), v(S1), v(t0)))
        a('v_fmac_f32 %s, %s, %s' % (v(GD), v(t0), v(t2)))
        a('v_add_f32 %s, %s, %s' % (v(S1), v(S1), v(t1)))
        a('v_fmac_f32 %s, %s, %s' % (v(GD), v(t1), v(t3)))
    red32(S1, t0, 'v_add_f32')
    red32(GD, t0, 'v_add_f32')
    a('v_mul_f32 %s, 0x%x, %s' % (v(S1), f2u(1.0 / 576), v(S1)))
    S2 = t3
    a('v_mov_b32 %s, 0' % v(S2))
    for k in range(9):
        a('v_lshlrev_b32 %s, 16, %s' % (v(t0), v(XS + k)))
        a('v_and_b32 %s, %s, %s' % (v(t1), s(sHI), v(XS + k)))
        a('v_sub_f32 %s, %s, %s' % (v(t0), v(t0), v(S1)))
        a('v_sub_f32 %s, %s, %s' % (v(t1), v(t1), v(S1)))
        a('v_fmac_f32 %s, %s, %s' % (v(S2), v(t0), v(t0)))
        a('v_fmac_f32 %s, %s, %s' % (v(S2), v(t1), v(t1)))
    red32(S2, t0, 'v_add_f32')
    a('v_mov_b32 %s, 0x%x' % (v(t0), f2u(1e-5)))
    a('v_fmac_f32 %s, 0x%x, %s' % (v(t0), f2u(1.0 / 576), v(S2)))
    a('v_rsq_f32 %s, %s' % (v(S2), v(t0)))
    a('v_mul_f32 %s, 0x%x, %s' % (v(GD), f2u(-math.log2(math.e)), v(GD)))
    a('v_exp_f32 %s, %s' % (v(GD), v(GD)))
    a('v_add_f32 %s, 1.0, %s' % (v(GD), v(GD)))
    a('v_rcp_f32 %s, %s' % (v(GD), v(GD)))
    a('v_readlane_b32 %s, %s, 0' % (s(sMU0), v(S1))); a('v_readlane_b32 %s, %s, 32' % (s(sMU1), v(S1)))
    a('v_readlane_b32 %s, %s, 0' % (s(sRS0), v(S2))); a('v_readlane_b32 %s, %s, 32' % (s(sRS1), v(S2)))
    a('v_readlane_b32 %s, %s, 0' % (s(sG0), v(GD))); a('v_readlane_b32 %s, %s, 32' % (s(sG1), v(GD)))
    vOMG = T[9]
    a('v_sub_f32 %s, 1.0, %s' % (v(vOMG), v(GD)))
    MU, RS = T[4], T[5]
    a('v_mov_b32 %s, %s' % (v(MU), s(sMU0))); a('v_mov_b32 %s, %s' % (v(t0), s(sMU1)))
    a('v_cndmask_b32 %s, %s, %s, %s' % (v(MU), v(MU), v(t0), s(sBB, 2)))
    a('v_mov_b32 %s, %s' % (v(RS), s(sRS0))); a('v_mov_b32 %s, %s' % (v(t0), s(sRS1)))
    a('v_cndmask_b32 %s, %s, %s, %s' % (v(RS), v(RS), v(t0), s(sBB, 2)))
    def tagcheck(regs):
        first = True
        for r in regs:
            a('v_xor_b32 %s, %s, %s' % (v(T[2]), s(sTG0), v(r + 1)))
            a('v_xor_b32 %s, %s, %s' % (v(T[3]), s(sTG1), v(r + 3)))
            if first:
                a('v_or_b32 %s, %s, %s' % (v(T[0]), v(T[2]), v(T[3])))
            else:
                a('v_or3_b32 %s, %s, %s, %s' % (v(T[0]), v(T[0]), v(T[2]), v(T[3])))
            first = False
        a('v_cmp_ne_u32 vcc, 0, %s' % v(T[0]))
    def poll(name, regs, load):
        a('s_mov_b32 %s, 0x%x' % (s(sSPIN), P.spin))
        a.label('L_%s_spin' % name)
        load()
        a.wait_vm0()
        tagcheck(regs)
        a('s_sub_u32 %s, %s, 1' % (s(sSPIN), s(sSPIN)))
        a('s_cbranch_scc1 L_%s_ok' % name)
        a('s_cbranch_vccnz L_%s_spin' % name)
        a.label('L_%s_ok' % name)
    def q_exchange():
        a('s_cmp_lg_u32 %s, 0' % s(sW)); a('s_cbranch_scc1 L_qdone')
        GQ = 104
        a('v_lshlrev_b32 %s, 4, %s' % (v(T[10]), v(vL)))
        a('s_lshl_b32 s88, %s, 11' % s(sHG))
        a('s_add_u32 s88, s88, 0x%x' % QX)
        def load():
            for k in range(16):
                if k % 4 == 0:
                    a('s_add_u32 s89, s88, %d' % (1024 * k))
                a('buffer_load_dwordx4 %s, %s, %s, s89 offen offset:%d sc1' % (v(GQ + 4 * k, 4), v(T[10]), s(rWS, 4), 1024 * (k % 4)))
        saved = list(a.vm)
        poll('q', [GQ + 4 * k for k in range(16)], load)
        for st in (1, 2, 4):
            for w in range(0, 8, 2 * st):
                for r in (0, 2, 4, 6):
                    a('v_add_f32 %s, %s, %s' % (v(GQ + 8 * w + r), v(GQ + 8 * w + r), v(GQ + 8 * (w + st) + r)))
        a('v_cvt_pk_bf16_f32 %s, %s, %s' % (v(GQ), v(GQ), v(GQ + 2)))
        a('v_cvt_pk_bf16_f32 %s, %s, %s' % (v(GQ + 4), v(GQ + 4), v(GQ + 6)))
        a('v_lshlrev_b32 %s, 2, %s' % (v(T[10]), v(vL)))
        a('ds_write_b32 %s, %s offset:%d' % (v(T[10]), v(GQ), QB))
        a('ds_write_b32 %s, %s offset:%d' % (v(T[10]), v(GQ + 4), QB + 256))
        stamp(9)
        a.label('L_qdone'); a.hist = []
        a.vm = saved
    def mlp1():
        a.wait_vm('xd')
        for i in range(36):
            u, t = divmod(i, 5)
            A = AF[i & 1]
            if i & 1:
                a('v_and_b32 %s, %s, %s' % (v(t0), s(sHI), v(XD + i // 2)))
            else:
                a('v_lshlrev_b32 %s, 16, %s' % (v(t0), v(XD + i // 2)))
            a('v_sub_f32 %s, %s, %s' % (v(t0), v(t0), v(MU)))
            a('v_mul_f32 %s, %s, %s' % (v(t0), v(t0), v(RS)))
            a('v_cvt_pk_bf16_f32 %s, %s, %s' % (v(t0), v(t0), v(t0)))
            delta(A, t0)
            a.wait_vm('w1_%d' % u)
            mfma(HACC + 4 * t, A, W1R + 4 * u, None if u == 0 else 1)
        a('v_lshlrev_b32 %s, 4, v0' % v(t1))
        for t in range(5):
            w = (0x7 << (3 * t)); w |= w << 16
            a('s_mov_b32 exec_lo, 0x%x' % w); a('s_mov_b32 exec_hi, 0x%x' % w)
            a('ds_write_b128 %s, %s offset:%d' % (v(t1), v(HACC + 4 * t, 4), HPART))
        a('s_mov_b64 exec, -1')
        stamp(10)
    if P.mlp_first:
        mlp1(); q_exchange()
        a('s_waitcnt lgkmcnt(0)')
        a('s_barrier')
    else:
        q_exchange()
        a('s_waitcnt lgkmcnt(0)')
        a('s_barrier')
        mlp1()
    a('v_mov_b32 %s, 0' % v(T[3]))
    a('ds_read_b64 %s, %s offset:%d' % (v(T[1] + 0 if T[1] % 2 == 0 else T[2], 2), v(T[3]), TG))
    tg = T[1] if T[1] % 2 == 0 else T[2]
    a('s_waitcnt lgkmcnt(0)')
    a('v_readfirstlane_b32 %s, %s' % (s(sTG0), v(tg)))
    a('v_readfirstlane_b32 %s, %s' % (s(sTG1), v(tg + 1)))
    a('s_barrier')
    hregs = [72 + 4 * k for k in range(4)]
    a('v_lshlrev_b32 %s, 4, %s' % (v(T[0]), v(vL)))
    for w in range(4):
        a('ds_read_b128 %s, %s offset:%d' % (v(hregs[w], 4), v(T[0]), HPART + 1024 * w))
    srd(rB2, pB2, 1152)
    vB2 = 30
    a('s_lshl_b32 %s, %s, 8' % (s(sT1), s(sW)))
    a('s_cmp_eq_u32 s2, 0')
    a('s_cselect_b32 %s, %s, 0x%x' % (s(sT1), s(sT1), OOB))
    a('v_add_u32 %s, %s, %s' % (v(T[1]), s(sT1), v(vC8)))
    a('buffer_load_dwordx2 %s, %s, %s, 0 offen' % (v(vB2, 2), v(T[1]), s(rB2, 4)), tag='b2')
    a('buffer_load_dwordx2 %s, %s, %s, 0 offen offset:256' % (v(vB2 + 2, 2), v(T[1]), s(rB2, 4)), tag='b2')
    srd(rDBG, pDBG, 256)
    srd(rWO, pWO, 4096 * 1152)
    srd(rW2, pW2, 4608 * 1152)
    a('s_waitcnt lgkmcnt(0)')
    for st in (1, 2):
        for w in range(0, 4, 2 * st):
            for r in range(4):
                a('v_add_f32 %s, %s, %s' % (v(hregs[w] + r), v(hregs[w] + r), v(hregs[w + st] + r)))
    H = hregs[0]; HA = hregs[1]
    for r in range(4):
        a('v_add_f32_dpp %s, %s, %s row_shl:3%s bound_ctrl:0' % (v(HA + r), v(H + r), v(H + r), DPP))
    for r in range(4):
        a('v_add_f32_dpp %s, %s, %s row_shl:6%s bound_ctrl:0' % (v(HA + r), v(HA + r), v(HA + r), DPP))
    for r in range(4):
        a('v_add_f32_dpp %s, %s, %s row_shl:12%s bound_ctrl:0' % (v(HA + r), v(H + r), v(HA + r), DPP))
    a.wait_vm('b1')
    for r in range(4):
        if r & 1:
            a('v_and_b32 %s, %s, %s' % (v(H + r), s(sHI), v(B1 + r // 2)))
        else:
            a('v_lshlrev_b32 %s, 16, %s' % (v(H + r), v(B1 + r // 2)))
        a('v_add_f32 %s, %s, %s' % (v(HA + r), v(HA + r), v(H + r)))
    kz = -2.0 * math.sqrt(2.0 / math.pi) * math.log2(math.e)
    steps = [
        lambda x, z: a('v_mul_f32 %s, %s, %s' % (v(z), v(x), v(x))),
        lambda x, z: a('v_mul_f32 %s, 0x%x, %s' % (v(z), f2u(0.044715), v(z))),
        lambda x, z: a('v_add_f32 %s, 1.0, %s' % (v(z), v(z))),
        lambda x, z: a('v_mul_f32 %s, %s, %s' % (v(z), v(z), v(x))),
        lambda x, z: a('v_mul_f32 %s, 0x%x, %s' % (v(z), f2u(kz), v(z))),
        lambda x, z: a('v_exp_f32 %s, %s' % (v(z), v(z))),
        lambda x, z: a('v_add_f32 %s, 1.0, %s' % (v(z), v(z))),
        lambda x, z: a('v_rcp_f32 %s, %s' % (v(z), v(z))),
        lambda x, z: a('v_mul_f32 %s, %s, %s' % (v(x), v(x), v(vOMG))),
        lambda x, z: a('v_mul_f32 %s, %s, %s' % (v(x), v(x), v(z))),
    ]
    for st in steps:
        for r in range(4):
            st(HA + r, H + r)
    a('v_cvt_pk_bf16_f32 %s, %s, %s' % (v(H), v(HA), v(HA + 1)))
    a('v_cvt_pk_bf16_f32 %s, %s, %s' % (v(H + 1), v(HA + 2), v(HA + 3)))
    a('s_lshl_b32 %s, %s, 7' % (s(sT0), s(sW)))
    a('v_lshrrev_b32 %s, 5, %s' % (v(T[0]), v(vL)))
    a('v_mul_u32_u24 %s, 48, %s' % (v(T[0]), v(T[0])))
    a('v_add3_u32 %s, %s, %s, %s' % (v(T[0]), v(T[0]), v(vC8), s(sT0)))
    a('s_mov_b32 exec_lo, 0x00070007'); a('s_mov_b32 exec_hi, 0x00070007')
    a('ds_write_b64 %s, %s offset:%d' % (v(T[0]), v(H, 2), HB))
    a('s_mov_b64 exec, -1')
    a('v_mul_u32_u24 %s, 48, %s' % (v(T[0]), v(vBB)))
    a('v_mad_u32_u24 %s, %s, 10, %s' % (v(T[0]), v(vG), v(T[0])))
    a('v_add_u32 %s, %s, %s' % (v(T[0]), s(sT0), v(T[0])))
    a('s_waitcnt lgkmcnt(0)')
    for i in range(5):
        a('ds_read_u16 %s, %s offset:%d' % (v(T[1 + i]), v(T[0]), HB + 2 * i))
    a('s_waitcnt lgkmcnt(0)')
    HF = 48
    a('v_cmp_gt_u32 vcc, 48, %s' % v(vL))
    for i in range(5):
        if i >= 3:
            a('v_cndmask_b32 %s, 0, %s, vcc' % (v(T[1 + i]), v(T[1 + i])))
        a('v_lshl_or_b32 %s, %s, 16, %s' % (v(T[1 + i]), v(T[1 + i]), v(T[1 + i])))
        delta(HF + 4 * i, T[1 + i])
    PA = [36, 40]
    a.wait_vm('b2')
    for k in range(2):
        for r in range(4):
            if r & 1:
                a('v_and_b32 %s, %s, %s' % (v(PA[k] + r), s(sHI), v(vB2 + 2 * k + r // 2)))
            else:
                a('v_lshlrev_b32 %s, 16, %s' % (v(PA[k] + r), v(vB2 + 2 * k + r // 2)))
            a('v_mul_f32 %s, %s, %s' % (v(PA[k] + r), v(PA[k] + r), v(vOMG)))
    vW2o, vW2o2, vWoo, vW2h, vW2h2, vWoh, vYS, vYH, vXA, vXM, vGB = 30, 31, 32, 33, 34, 35, 44, 45, 46, 47, 68
    sW2, sW2b, sWO, sYS, sOG = 88, 89, 100, 101, 15
    a('v_mul_u32_u24 %s, 0x1200, %s' % (v(vWoo), v(vG)))
    a('v_lshl_add_u32 %s, %s, 4, %s' % (v(vWoo), v(vN), v(vWoo)))
    a('v_mul_u32_u24 %s, 0x1680, %s' % (v(vW2o), v(vG)))
    a('v_lshl_add_u32 %s, %s, 4, %s' % (v(vW2o), v(vN), v(vW2o)))
    oob_unless(vW2o2, vW2o, 'v_cmp_gt_u32 vcc, 48, %s' % v(vL))
    a('v_lshrrev_b32 %s, 5, %s' % (v(T[1]), v(vL)))
    a('v_mul_u32_u24 %s, 0x900, %s' % (v(T[1]), v(T[1])))
    a('v_lshl_add_u32 %s, %s, 1, %s' % (v(vYS), v(vC8), v(T[1])))
    a('v_cmp_gt_u32 vcc, 8, %s' % v(vN))
    for d_, s_ in ((vW2h, vW2o), (vW2h2, vW2o2), (vWoh, vWoo), (vYH, vYS)):
        a('v_cndmask_b32 %s, %s, %s, vcc' % (v(d_), v(tO), v(s_)))
    a('s_lshl_b32 %s, %s, 8' % (s(sT1), s(sW)))
    a('s_mul_i32 %s, %s, 0x480' % (s(sW2), s(sC0)))
    a('s_add_u32 %s, %s, %s' % (s(sW2), s(sW2), s(sT1)))
    a('s_add_u32 %s, %s, %d' % (s(sW2b), s(sW2), 3 * 1152))
    a('s_add_u32 %s, %s, %s' % (s(sWO), s(sHG), s(sS)))
    a('s_mul_i32 %s, %s, %d' % (s(sWO), s(sWO), 16 * 1152))
    a('s_add_u32 %s, %s, %s' % (s(sWO), s(sWO), s(sT1)))
    a('s_mul_i32 %s, s2, 4608' % s(sYS))
    a('s_lshl_b32 %s, %s, 9' % (s(sT1), s(sW)))
    a('s_add_u32 %s, %s, %s' % (s(sYS), s(sYS), s(sT1)))
    a('s_mul_i32 %s, %s, %d' % (s(sOG), s(sHG), OXP))
    a('s_add_u32 %s, %s, 0x%x' % (s(sOG), s(sOG), OX))
    a('v_and_b32 %s, 7, %s' % (v(T[1]), v(vL)))
    a('v_mul_u32_u24 %s, 0x%x, %s' % (v(T[1]), OXP, v(T[1])))
    a('v_lshl_add_u32 %s, %s, 4, %s' % (v(vXM), v(vBB), v(T[1])))
    a('v_lshl_add_u32 %s, %s, 10, %s' % (v(vXA), v(vBB), v(T[1])))
    a('v_lshl_add_u32 %s, %s, 5, %s' % (v(vXA), v(vG), v(vXA)))
    a('s_lshl_b32 %s, %s, 7' % (s(sT1), s(sS)))
    a('v_add_u32 %s, %s, %s' % (v(vXA), s(sT1), v(vXA)))
    a('v_mov_b32 %s, %s' % (v(vGB), s(sG0))); a('v_mov_b32 %s, %s' % (v(T[1]), s(sG1)))
    a('v_cndmask_b32 %s, %s, %s, %s' % (v(vGB), v(vGB), v(T[1]), s(sBB, 2)))
    a('s_cmp_lg_u32 %s, 2' % s(sW)); a('s_cbranch_scc1 L_cnt_ok')
    a('s_mov_b32 %s, 0x%x' % (s(sSPIN), P.spin))
    a('v_mov_b32 %s, 0' % v(T[0]))
    a.label('L_cnt_spin')
    a('buffer_load_dword %s, %s, %s, 0 offen sc1' % (v(T[1]), v(T[0]), s(rDBG, 4)))
    a.wait_vm0()
    a('v_readfirstlane_b32 %s, %s' % (s(sT0), v(T[1])))
    a('s_sub_u32 %s, %s, 1' % (s(sSPIN), s(sSPIN)))
    a('s_cbranch_scc1 L_cnt_ok')
    a('s_cmp_lt_u32 %s, 256' % s(sT0))
    a('s_cbranch_scc1 L_cnt_spin')
    newpath('L_cnt_ok')
    stamp(11)
    a('s_barrier')
    WD = 72
    WH = 108
    def wloads(dst, o2, o2b, oo, extra):
        for i in range(5):
            a('buffer_load_dwordx4 %s, %s, %s, %s offen offset:%d%s' % (v(dst + 4 * i, 4), v(o2 if i < 3 else o2b), s(rW2, 4), s(sW2 if i < 3 else sW2b), 1152 * (i % 3) + extra, wnt))
        for i in range(4):
            a('buffer_load_dwordx4 %s, %s, %s, %s offen offset:%d%s' % (v(dst + 20 + 4 * i, 4), v(oo), s(rWO, 4), s(sWO), 1152 * i + extra, wnt))
    wloads(WD, vW2o, vW2o2, vWoo, 0)
    a('s_cmp_lg_u32 %s, 3' % s(sW)); a('s_cbranch_scc1 L_now')
    wloads(WH, vW2h, vW2h2, vWoh, 256)
    newpath('L_now')
    a('s_barrier')
    a.wait_vm0()
    stamp(12)
    for i in range(5):
        mfma(PA[0], HF + 4 * i, WD + 4 * i, 1)
    a('s_cmp_lg_u32 %s, 3' % s(sW)); a('s_cbranch_scc1 L_now2')
    for i in range(5):
        mfma(PA[1], HF + 4 * i, WH + 4 * i, 1)
    a.label('L_now2')
    XG = 144
    def o_load():
        a('buffer_load_dwordx4 %s, %s, %s, %s offen sc1' % (v(XG, 4), v(vXA), s(rWS, 4), s(sOG)))
        a('buffer_load_dwordx4 %s, %s, %s, %s offen offset:16 sc1' % (v(XG + 4, 4), v(vXA), s(rWS, 4), s(sOG)))
        a('buffer_load_dwordx4 %s, %s, %s, %s offen offset:2048 sc1' % (v(XG + 8, 4), v(vXM), s(rWS, 4), s(sOG)))
    poll('o', [XG, XG + 4, XG + 8], o_load)
    stamp(13)
    MM = T[4]
    a('v_mov_b32 %s, %s' % (v(MM), v(XG + 8)))
    red8([MM], 'v_max_f32')
    a('v_sub_f32 %s, %s, %s' % (v(MM), v(XG + 8), v(MM)))
    a('v_exp_f32 %s, %s' % (v(MM), v(MM)))
    U = [XG, XG + 2, XG + 4, XG + 6]
    for x in [XG + 10] + U:
        a('v_mul_f32 %s, %s, %s' % (v(x), v(x), v(MM)))
    red8([XG + 10] + U, 'v_add_f32')
    a('v_rcp_f32 %s, %s' % (v(MM), v(XG + 10)))
    a('v_mul_f32 %s, %s, %s' % (v(MM), v(MM), v(vGB)))
    AQ = 48
    for i in range(4):
        a('v_mul_f32 %s, %s, %s' % (v(U[i]), v(U[i]), v(MM)))
    for i in range(4):
        a('v_cvt_pk_bf16_f32 %s, %s, %s' % (v(U[i]), v(U[i]), v(U[i])))
    for i in range(4):
        delta(AQ + 4 * i, U[i])
    for i in range(4):
        mfma(PA[0], AQ + 4 * i, WD + 20 + 4 * i, 1)
    a('s_cmp_lg_u32 %s, 3' % s(sW)); a('s_cbranch_scc1 L_now3')
    for i in range(4):
        mfma(PA[1], AQ + 4 * i, WH + 20 + 4 * i, 1)
    for r in range(4):
        a('v_min_u32 %s, -2, %s' % (v(PA[1] + r), v(PA[1] + r)))
    a('buffer_store_dwordx4 %s, %s, %s, %s offen offset:512 sc1' % (v(PA[1], 4), v(vYH), s(rWS, 4), s(sYS)))
    a.label('L_now3')
    a('s_nop 5')
    for r in range(4):
        a('v_min_u32 %s, -2, %s' % (v(PA[0] + r), v(PA[0] + r)))
    a('buffer_store_dwordx4 %s, %s, %s, %s offen sc1' % (v(PA[0], 4), v(vYS), s(rWS, 4), s(sYS)))
    stamp(14)
    a('s_cmp_ge_u32 s2, 144'); a('s_cbranch_scc1 L_hfin')
    a('s_barrier')
    a.label('L_hfin')
    stamp_flush()
    a.label('L_end')
    a('s_endpgm')
    a.raw('.section .rodata,"a"')
    a.raw('.p2align 6')
    a.raw('.amdhsa_kernel ' + K1)
    a.raw('  .amdhsa_next_free_vgpr %d' % NV)
    a.raw('  .amdhsa_next_free_sgpr 102')
    a.raw('  .amdhsa_accum_offset %d' % NV)
    a.raw('  .amdhsa_group_segment_fixed_size 0')
    a.raw('  .amdhsa_kernarg_size 112')
    a.raw('  .amdhsa_user_sgpr_count 2')
    a.raw('  .amdhsa_user_sgpr_kernarg_segment_ptr 1')
    a.raw('  .amdhsa_system_sgpr_workgroup_id_x 1')
    a.raw('  .amdhsa_float_denorm_mode_32 3')
    a.raw('.end_amdhsa_kernel')
    launch = '; @launch grid=(256,1,1) block=(768,1,1) lds=%d\n' % LDS_BYTES
    return HEADER + launch + a.text()

def parse(argv=None):
    ap = argparse.ArgumentParser()
    ap.add_argument('-o', default=None)
    for k, d in (('depth', 4), ('batch', 2), ('pre', 24), ('dmid', 6), ('kick', 2), ('kfl', 1), ('vfl', 1), ('wfl', 1), ('w1fl', 0),
                 ('diag', 0), ('defer_at', 59), ('mlp_first', 1)):
        ap.add_argument('--' + k, type=int, default=d)
    ap.add_argument('--spin', type=lambda x: int(x, 0), default=0x40000)
    return ap.parse_args(argv)

if __name__ == '__main__':
    P = parse()
    txt = gen(P)
    out = P.o or os.path.join(os.path.dirname(os.path.abspath(__file__)), '..', 'cdna_kernels', NAME + '.s')
    open(out, 'w').write(txt)
    print('wrote', out, len(txt), 'bytes; lds', LDS_BYTES)
```

```python
import sys, os, math, struct, argparse
sys.path.insert(0, os.path.dirname(os.path.abspath(__file__)))
from asmlib import Asm

NAME = 'gated_mix__mha_block_cached__mixer_channel_mlp__decode'
def f2u(x):
    return struct.unpack('<I', struct.pack('<f', x))[0]
HEADER = open(os.path.join(os.path.dirname(os.path.abspath(__file__)), '..', 'cdna_kernels', NAME + '.s.ref')).read().split('; Override launch')[0]

LS, FQ, FD, FP, QB, YT = 0, 128, 132, 136, 256, 768
YP = 592 * 4
OBUF = YT + 2 * YP
RED = OBUF + 8 * 1024
LDS_BYTES = RED + 1024
QX = 256 * 4608
HX = QX + 256 * 1024
OX = HX + 256 * 1024
MLX = OX + 256 * 1024
EP = MLX + 256 * 32
WS_BYTES = EP + 128
DIAG = 0x400000
OOB = 0x80000000
NV = 168

def gen(P):
    a = Asm()
    FL = {0: '', 1: ' nt', 2: ' sc1', 3: ' sc0 sc1', 4: ' sc1 nt', 5: ' sc0 sc1 nt'}
    wnt = FL[P.wfl]
    D = P.depth
    vL = 1; MASK = 4; AF = [8, 12]
    sW, sH, sS, sHG, sKV, sT0, sT1, sT2, sG, sSPIN = 3, 4, 5, 6, 8, 9, 10, 11, 12, 13
    pX, pK, pV, pWQ, pWO, pW1, pB1, pW2, pB2, pGW, pOUT, pDBG, pWS = 16, 18, 20, 22, 24, 28, 30, 32, 34, 36, 38, 40, 42
    rK, rV, rWA, rWO, rW2, rWS, rB1, rB2 = 44, 48, 52, 56, 64, 68, 76, 96
    sG0, sG1, sTG0, sTG1 = 84, 85, 86, 87
    sTK = 72
    sHI, sC, sBB, sM = 90, 91, 92, 94
    sST = 26
    def v(n, k=1):
        assert n + k <= NV, n
        return 'v%d' % n if k == 1 else 'v[%d:%d]' % (n, n + k - 1)
    def s(n, k=1):
        return 's%d' % n if k == 1 else 's[%d:%d]' % (n, n + k - 1)
    def srd(r, p, nbytes):
        a('s_mov_b32 %s, %s' % (s(r), s(p)))
        a('s_mov_b32 %s, %s' % (s(r + 1), s(p + 1)))
        a('s_mov_b32 %s, 0x%x' % (s(r + 2), nbytes))
        a('s_mov_b32 %s, 0x20000' % s(r + 3))
    def smask(val16):
        w = val16 | (val16 << 16)
        a('s_mov_b32 %s, 0x%x' % (s(sM), w)); a('s_mov_b32 %s, 0x%x' % (s(sM + 1), w))
    DPP = ' row_mask:0xf bank_mask:0xf'
    VS = 71
    def stamp(n):
        if not P.diag:
            return
        a('s_memrealtime %s' % s(sST, 2))
        a('s_waitcnt lgkmcnt(0)')
        a('v_writelane_b32 v%d, %s, %d' % (VS, s(sST), n))
    def stamp_flush():
        if not P.diag:
            return
        a('s_mov_b64 exec, -1')
        a('s_mul_i32 s100, s2, 12'); a('s_add_u32 s100, s100, %s' % s(sW)); a('s_lshl_b32 s100, s100, 7')
        a('s_add_u32 s100, s100, 0x%x' % DIAG)
        a('v_lshlrev_b32 v70, 2, %s' % v(vL))
        a('s_mov_b32 exec_hi, 0')
        a('buffer_store_dword v%d, v70, %s, s100 offen' % (VS, s(rWS, 4)))
    def red32(xs, ts, op):
        for d in ('quad_perm:[1,0,3,2]', 'quad_perm:[2,3,0,1]', 'row_ror:4', 'row_ror:8'):
            for x in xs:
                a('%s_dpp %s, %s, %s %s%s' % (op, v(x), v(x), v(x), d, DPP))
        for x, t in zip(xs, ts):
            a('v_mov_b32 %s, %s' % (v(t), v(x)))
        for x, t in zip(xs, ts):
            a('v_permlane16_swap_b32 %s, %s' % (v(x), v(t)))
        for x, t in zip(xs, ts):
            a('%s %s, %s, %s' % (op, v(x), v(x), v(t)))
    def redquads64(xs, ts, op):
        for d in ('row_ror:4', 'row_ror:8'):
            for x in xs:
                a('%s_dpp %s, %s, %s %s%s' % (op, v(x), v(x), v(x), d, DPP))
        for sw in ('v_permlane16_swap_b32', 'v_permlane32_swap_b32'):
            for x, t in zip(xs, ts):
                a('v_mov_b32 %s, %s' % (v(t), v(x)))
            for x, t in zip(xs, ts):
                a('%s %s, %s' % (sw, v(x), v(t)))
            for x, t in zip(xs, ts):
                a('%s %s, %s, %s' % (op, v(x), v(x), v(t)))
    def red8(xs, op):
        for d in ('quad_perm:[1,0,3,2]', 'quad_perm:[2,3,0,1]', 'row_half_mirror'):
            for x in xs:
                a('%s_dpp %s, %s, %s %s%s' % (op, v(x), v(x), v(x), d, DPP))
    def delta(dst, src):
        for d in range(4):
            a('v_and_b32 %s, %s, %s' % (v(dst + d), v(src), v(MASK + d)))
    def mfma(d, A, B, c=None):
        a('v_mfma_f32_16x16x32_bf16 %s, %s, %s, %s' % (v(d, 4), v(A, 4), v(B, 4), '0' if c is None else v(d, 4)))
    def masks(t0, t1):
        a('v_and_b32 %s, 1, %s' % (v(t0), v(vL)))
        a('v_lshlrev_b32 %s, 4, %s' % (v(t0), v(t0)))
        a('v_mov_b32 %s, 0xffff' % v(t1))
        a('v_lshlrev_b32 %s, %s, %s' % (v(t0), v(t0), v(t1)))
        for d in range(4):
            smask(0x0303 << (2 * d))
            a('v_cndmask_b32 %s, 0, %s, %s' % (v(MASK + d), v(t0), s(sM, 2)))
    def epoch_load():
        a('s_add_u32 s72, %s, 0x%x' % (s(pWS), EP)); a('s_addc_u32 s73, %s, 0' % s(pWS + 1))
        a('s_load_dwordx2 %s, s[72:73], 0' % s(sTG0, 2))
    def epoch_tags():
        a('s_add_u32 %s, %s, 1' % (s(sTG0), s(sTG0)))
        a('s_add_u32 %s, %s, 0x9e3779b9' % (s(sTG1), s(sTG1)))
        a('s_and_b32 s72, %s, 0xfff' % s(sTG0))
        a('s_and_b32 s73, %s, 0xfff' % s(sTG1))
        a('s_bfe_u32 s74, %s, 0xc000c' % s(sTG1))
        a('s_lshr_b32 s75, %s, 20' % s(sTG1))
    def encode(dst, src, vm):
        for r in range(4):
            a('v_add_u32 %s, 0x800, %s' % (v(dst + r), v(src + r)))
        for r in range(4):
            a('v_and_or_b32 %s, %s, %s, %s' % (v(dst + r), v(dst + r), v(vm), s(sTK + r)))
    def decode(regs, t):
        for g in regs:
            for r in range(4):
                a('v_xor_b32 %s, %s, %s' % (v(g + r), s(sTK + r), v(g + r)))
        flat = [g + r for g in regs for r in range(4)]
        a('v_or3_b32 %s, %s, %s, %s' % (v(t), v(flat[0]), v(flat[1]), v(flat[2])))
        k = 3
        while k + 1 < len(flat):
            a('v_or3_b32 %s, %s, %s, %s' % (v(t), v(t), v(flat[k]), v(flat[k + 1]))); k += 2
        if k < len(flat):
            a('v_or_b32 %s, %s, %s' % (v(t), v(t), v(flat[k])))
        a('v_and_b32 %s, 0xfff, %s' % (v(t), v(t)))
        a('v_cmp_ne_u32 vcc, 0, %s' % v(t))
    def poll(name, load, check, lds=False, sleep=0, masked=False, first_done=False):
        a('s_mov_b32 %s, 0x%x' % (s(sSPIN), P.spin))
        if first_done:
            a('s_branch L_%s_chk' % name)
        elif sleep or masked:
            a('s_branch L_%s_go' % name)
        a.label('L_%s_spin' % name)
        if masked:
            a('s_mov_b64 exec, vcc')
        if sleep:
            a('s_sleep %d' % sleep)
        a.label('L_%s_go' % name)
        load()
        if lds:
            a('s_waitcnt lgkmcnt(0)')
        else:
            a.wait_vm0()
        a.label('L_%s_chk' % name)
        check()
        a('s_sub_u32 %s, %s, 1' % (s(sSPIN), s(sSPIN)))
        a('s_cbranch_scc1 L_%s_ok' % name)
        a('s_cbranch_vccnz L_%s_spin' % name)
        a.label('L_%s_ok' % name)
        if masked:
            a('s_mov_b64 exec, -1')
    def lds_count(flag, t0, t1):
        a('v_mov_b32 %s, 0' % v(t0)); a('v_mov_b32 %s, 1' % v(t1))
        a('s_mov_b64 exec, 1')
        a('ds_add_u32 %s, %s offset:%d' % (v(t0), v(t1), flag))
        a('s_mov_b64 exec, -1')
    def lds_wait(name, flag, n, t0, tz, sleep):
        a('v_mov_b32 %s, 0' % v(tz))
        poll(name, lambda: a('ds_read_b32 %s, %s offset:%d' % (v(t0), v(tz), flag)), lambda: a('v_cmp_gt_u32 vcc, %d, %s' % (n, v(t0))), lds=True, sleep=sleep)
    def newpath(name):
        a.label(name); a.hist = []; a.vm = []
    WSB = (DIAG + 0x80000) if P.diag else WS_BYTES

    K1 = NAME + '_kernel'
    a.raw('.amdgcn_target "amdgcn-amd-amdhsa--gfx950"')
    a.raw('.text'); a.raw('.globl ' + K1); a.raw('.p2align 8'); a.raw('.type %s,@function' % K1)
    a.label(K1)
    a('s_cmp_ge_u32 s2, 256'); a('s_cbranch_scc1 L_end')
    a('s_load_dwordx16 s[16:31], s[0:1], 0')
    a('s_load_dwordx8 s[32:39], s[0:1], 64')
    a('s_load_dwordx4 s[40:43], s[0:1], 96')
    a('v_lshrrev_b32 v2, 6, v0')
    a('v_and_b32 %s, 63, v0' % v(vL))
    a('v_readfirstlane_b32 %s, v2' % s(sW))
    a('s_and_b32 %s, s2, 7' % s(sT0))
    a('s_lshr_b32 %s, s2, 3' % s(sT1))
    a('s_and_b32 %s, %s, 3' % (s(sH), s(sT1)))
    a('s_lshl_b32 %s, %s, 2' % (s(sT2), s(sT0)))
    a('s_add_u32 %s, %s, %s' % (s(sH), s(sH), s(sT2)))
    a('s_lshr_b32 %s, %s, 2' % (s(sS), s(sT1)))
    a('s_lshl_b32 %s, %s, 3' % (s(sHG), s(sH)))
    if P.diag:
        a('v_mov_b32 v%d, 0' % VS)
    a('s_cmp_lt_u32 %s, 4' % s(sW)); a('s_cbranch_scc1 L_helper')

    vKo, vVo = 2, 3
    BQ = 16; QV = 32; SC = 40; SACC = [48, 52]; OA = [56, 60]; T = list(range(64, 70))
    RB = 72; RN = (NV - RB) // 4
    sSW = 14
    a('s_sub_u32 %s, %s, 4' % (s(sSW), s(sW)))
    a('s_lshl_b32 %s, %s, 20' % (s(sKV), s(sH)))
    a('s_lshl_b32 %s, %s, 17' % (s(sT2), s(sS))); a('s_add_u32 %s, %s, %s' % (s(sKV), s(sKV), s(sT2)))
    a('s_lshl_b32 %s, %s, 12' % (s(sT2), s(sSW))); a('s_add_u32 %s, %s, %s' % (s(sKV), s(sKV), s(sT2)))
    a('v_lshrrev_b32 %s, 4, %s' % (v(T[1]), v(vL)))
    a('v_lshlrev_b32 %s, 4, %s' % (v(vVo), v(vL)))
    a('v_bfe_u32 %s, %s, 2, 2' % (v(T[0]), v(vL)))
    a('v_lshlrev_b32 %s, 8, %s' % (v(vKo), v(T[0])))
    a('v_lshl_add_u32 %s, %s, 6, %s' % (v(vKo), v(T[1]), v(vKo)))
    a('v_and_b32 %s, 3, %s' % (v(T[0]), v(vL)))
    a('v_lshl_add_u32 %s, %s, 4, %s' % (v(vKo), v(T[0]), v(vKo)))
    a('s_waitcnt lgkmcnt(0)')
    srd(rK, pK, 1 << 26)
    stamp(0)
    ip = [0]; cp = [0]
    def issue_one():
        j = ip[0]; ip[0] += 1
        assert j - RN < cp[0]
        n, i = j >> 2, j & 3
        if i == 0:
            g = n & 7
            a('s_add_u32 %s, %s, 0x%x' % (s(sG), s(sKV), ((g >> 2) << 25) + ((g & 3) << 15)))
        a('buffer_load_dwordx4 %s, %s, %s, %s offen offset:%d%s' % (
            v(RB + 4 * (j % RN), 4), v(vKo if j < 32 else vVo), s(rK if j < 32 else rV, 4), s(sG), 1024 * i, FL[P.kfl if j < 32 else P.vfl]), tag='L%d' % j)
    B = P.batch
    for _ in range(D):
        issue_one()
    epoch_load()
    srd(rV, pV, 1 << 26)
    srd(rWS, pWS, WSB)
    a('s_mov_b32 %s, 0x%x' % (s(sC), f2u(math.log2(math.e) / math.sqrt(128.0))))
    a('v_lshl_add_u32 %s, %s, 2, %s' % (v(T[2]), v(T[1]), v(T[0])))
    a('v_lshlrev_b32 %s, 4, %s' % (v(T[2]), v(T[2])))
    a('v_mov_b32 %s, 0' % v(T[3]))
    masks(T[0], T[1])
    a('s_barrier')
    assert P.pre <= RN
    while ip[0] < P.pre:
        a.wait_vm('L%d' % (ip[0] - D + B - 1))
        for _ in range(B):
            issue_one()
        if ip[0] - B < P.prog_at <= ip[0]:
            lds_count(FP, T[0], T[1])
    stamp(1)
    poll('fq', lambda: a('ds_read_b32 %s, %s offset:%d' % (v(T[0]), v(T[3]), FQ)), lambda: a('v_cmp_eq_u32 vcc, 0, %s' % v(T[0])), lds=True, sleep=1)
    a('ds_read_b128 %s, %s offset:%d' % (v(QV, 4), v(T[2]), QB))
    a('ds_read_b128 %s, %s offset:%d' % (v(QV + 4, 4), v(T[2]), QB + 256))
    epoch_tags()
    a('s_waitcnt lgkmcnt(0)')
    def qfrag(b):
        for i in range(4):
            smask(0xf << (4 * i))
            for d in range(4):
                a('v_cndmask_b32 %s, 0, %s, %s' % (v(BQ + 4 * i + d), v(QV + 4 * b + d), s(sM, 2)))
    stamp(2)
    def score(n):
        acc = SACC[n & 1]
        a('v_mov_b32_dpp %s, %s quad_perm:[0,0,0,0]%s' % (v(SC + n), v(acc), DPP))
        for c in range(1, 4):
            a('v_add_f32_dpp %s, %s, %s quad_perm:[%d,%d,%d,%d]%s' % (v(SC + n), v(acc + c), v(SC + n), c, c, c, c, DPP))
    def refill(j, depth=None):
        cp[0] = j + 1
        if (j + 1) % B == 0:
            while ip[0] < min(64, j + 1 + (depth or D)):
                issue_one()
    for n in range(8):
        if n % 4 == 0:
            qfrag(n >> 2)
        for i in range(4):
            j = 4 * n + i
            a.wait_vm('L%d' % j)
            mfma(SACC[n & 1], RB + 4 * (j % RN), BQ + 4 * i, None if i == 0 else 1)
            if n == 0 and i < P.kick:
                cp[0] = j + 1
                issue_one()
            refill(j, P.dmid if j == 31 else None)
        if n > 0:
            score(n - 1)
    score(7)
    stamp(3)
    ML = 16; vMC = 18; vHM = 24; vOW = 28; vSCL = 29; vRO = 31; QR = 72; LSR = 20; vRW, vRR, vOO = 25, 26, 27
    for b in range(2):
        a('v_max3_f32 %s, %s, %s, %s' % (v(vMC + b), v(SC + 4 * b), v(SC + 4 * b + 1), v(SC + 4 * b + 2)))
        a('v_max_f32 %s, %s, %s' % (v(vMC + b), v(vMC + b), v(SC + 4 * b + 3)))
    redquads64([vMC, vMC + 1], [T[0], T[1]], 'v_max_f32')
    for b in range(2):
        a('v_mul_f32 %s, %s, %s' % (v(vMC + b), s(sC), v(vMC + b)))
    for n in range(8):
        a('v_fma_f32 %s, %s, %s, -%s' % (v(SC + n), v(SC + n), s(sC), v(vMC + (n >> 2))))
    for n in range(8):
        a('v_exp_f32 %s, %s' % (v(SC + n), v(SC + n)))
    for b in range(2):
        L_ = ML + b
        a('v_add_f32 %s, %s, %s' % (v(L_), v(SC + 4 * b), v(SC + 4 * b + 1)))
        a('v_add_f32 %s, %s, %s' % (v(L_), v(L_), v(SC + 4 * b + 2)))
        a('v_add_f32 %s, %s, %s' % (v(L_), v(L_), v(SC + 4 * b + 3)))
    for n in range(8):
        a('v_cvt_pk_bf16_f32 %s, %s, %s' % (v(SC + n), v(SC + n), v(SC + n)))
    sOP = 88
    def tail_prep():
        redquads64([ML, ML + 1], [T[0], T[1]], 'v_add_f32')
        a('s_lshl_b32 %s, %s, 4' % (s(sT0), s(sSW)))
        a('v_mov_b32 %s, %s' % (v(T[0]), s(sT0)))
        a('ds_write_b128 %s, %s offset:%d' % (v(T[0]), v(ML, 4), LS))
        a('v_subrev_u32 v0, 256, v0')
        a('v_lshrrev_b32 %s, 5, v0' % v(T[1]))
        a('v_and_b32 %s, 15, %s' % (v(T[2]), v(vL)))
        a('v_lshlrev_b32 %s, 5, %s' % (v(T[2]), v(T[2])))
        a('v_and_b32 %s, 16, %s' % (v(T[3]), v(vL)))
        a('v_add_u32 %s, %s, %s' % (v(T[2]), v(T[2]), v(T[3])))
        a('v_lshl_add_u32 %s, %s, 9, %s' % (v(vOW), v(T[1]), v(T[2])))
        a('s_add_u32 %s, %s, %s' % (s(sOP), s(sHG), s(sS)))
        a('s_lshl_b32 %s, %s, 10' % (s(sOP), s(sOP)))
        a('s_add_u32 %s, %s, 0x%x' % (s(sOP), s(sOP), OX))
        a('v_mov_b32 %s, 0xfffff000' % v(vHM))
        a('v_lshrrev_b32 %s, 3, %s' % (v(vRO), v(vL)))
        a('v_lshl_add_u32 %s, %s, 3, %s' % (v(vRO), v(vRO), s(sSW)))
        a('v_mul_u32_u24 %s, 0x1200, %s' % (v(vRO), v(vRO)))
        a('s_and_b32 s89, %s, 3' % s(sH))
        a('s_lshl_b32 %s, %s, 2' % (s(sT0), s(sSW)))
        a('s_add_u32 s89, s89, %s' % s(sT0))
        a('s_lshl_b32 s89, s89, 3')
        a('s_add_u32 s89, s89, %s' % s(sS))
        a('s_lshl_b32 s89, s89, 10')
        a('s_and_b32 %s, s2, 7' % s(sT0))
        a('s_lshl_b32 %s, %s, 7' % (s(sT0), s(sT0)))
        a('s_add_u32 s89, s89, %s' % s(sT0))
        a('s_add_u32 s89, s89, 0x%x' % OX)
        a('v_and_b32 %s, 7, v0' % v(T[0]))
        a('v_lshl_add_u32 %s, %s, 4, %s' % (v(vRO), v(T[0]), v(vRO)))
        a('s_lshl_b32 s96, s2, 7')
        for k in range(1, 4):
            a('s_add_u32 s%d, s96, %d' % (96 + k, k * 64 * 4608))
        a('v_lshlrev_b32 %s, 4, %s' % (v(vRW), v(T[0])))
        a('s_lshl_b32 %s, %s, 7' % (s(sT0), s(sSW)))
        a('v_add_u32 %s, %s, %s' % (v(vRW), s(sT0), v(vRW)))
        a('v_and_b32 %s, 31, %s' % (v(vRR), v(vL)))
        a('v_lshlrev_b32 %s, 1, %s' % (v(vOO), v(vRR)))
        a('s_lshl_b32 %s, s2, 6' % s(sT0))
        a('v_add_u32 %s, %s, %s' % (v(vOO), s(sT0), v(vOO)))
        a('v_lshlrev_b32 %s, 2, %s' % (v(vRR), v(vRR)))
        a('v_lshrrev_b32 %s, 5, %s' % (v(T[0]), v(vL)))
        a('v_lshl_add_u32 %s, %s, 9, %s' % (v(vRR), v(T[0]), v(vRR)))
        a('v_add_u32 %s, %d, %s' % (v(vRR), RED, v(vRR)))
    def ls_check(r, t):
        a('v_min_u32 %s, %s, %s' % (v(t), v(r), v(r + 1)))
        a('v_cmp_eq_u32 vcc, 0, %s' % v(t))
    def scale_prep():
        a('v_and_b32 %s, 7, %s' % (v(T[1]), v(vL)))
        a('v_lshlrev_b32 %s, 4, %s' % (v(T[1]), v(T[1])))
        poll('ls', lambda: a('ds_read_b128 %s, %s offset:%d' % (v(LSR, 4), v(T[1]), LS)), lambda: ls_check(LSR, T[0]), lds=True, sleep=1)
        red8([LSR + 2, LSR + 3], 'v_max_f32')
        for b in range(2):
            a('v_sub_f32 %s, %s, %s' % (v(LSR + 2 + b), v(vMC + b), v(LSR + 2 + b)))
        a('v_exp_f32 %s, %s' % (v(LSR + 2), v(LSR + 2)))
        a('v_exp_f32 %s, %s' % (v(vSCL), v(LSR + 3)))
        for r in range(4):
            a('v_mul_f32 %s, %s, %s' % (v(OA[0] + r), v(OA[0] + r), v(LSR + 2)))
    for n in range(8, 16):
        for r in range(4):
            j = 4 * n + r
            A = AF[r & 1]
            for d in range(4):
                a('v_and_b32_dpp %s, %s, %s row_newbcast:%d%s' % (v(A + d), v(SC + n - 8), v(MASK + d), 4 * r, DPP))
            a.wait_vm('L%d' % j)
            mfma(OA[(n - 8) >> 2], A, RB + 4 * (j % RN), None if (n & 3) == 0 and r == 0 else 1)
            refill(j)
            if j == P.defer_at:
                lds_count(FD, T[0], T[1])
        if n == 8:
            tail_prep()
        if n == 13:
            scale_prep()
    stamp(4)
    a('s_mov_b32 exec_lo, 0')
    for r in range(4):
        a('v_mul_f32 %s, %s, %s' % (v(OA[0] + r), v(OA[1] + r), v(vSCL)))
    a('s_mov_b32 exec_lo, -1')
    a('ds_write_b128 %s, %s offset:%d' % (v(vOW), v(OA[0], 4), OBUF))
    a('s_waitcnt lgkmcnt(0)')
    a('s_barrier')
    a('s_cmp_lg_u32 %s, 0' % s(sSW)); a('s_cbranch_scc1 L_pubbed')
    for w in range(8):
        a('ds_read_b128 %s, %s offset:%d' % (v(QR + 4 * w, 4), v(vVo), OBUF + 1024 * w))
    for w in range(0, 8, 2):
        a('s_waitcnt lgkmcnt(%d)' % (6 - w))
        for r in (0, 2):
            a('v_pk_add_f32 %s, %s, %s' % (v(QR + 4 * w + r, 2), v(QR + 4 * w + r, 2), v(QR + 4 * w + 4 + r, 2)))
    for st in (2, 4):
        for w in range(0, 8, 2 * st):
            for r in (0, 2):
                a('v_pk_add_f32 %s, %s, %s' % (v(QR + 4 * w + r, 2), v(QR + 4 * w + r, 2), v(QR + 4 * (w + st) + r, 2)))
    encode(QR, QR, vHM)
    a('buffer_store_dwordx4 %s, %s, %s, %s offen sc1' % (v(QR, 4), v(vVo), s(rWS, 4), s(sOP)))
    newpath('L_pubbed')
    stamp(5)
    a('s_cmp_ge_u32 s2, 36'); a('s_cbranch_scc1 L_fin')
    R, t_ = 104, 13
    a('s_mov_b64 exec, 1')
    poll('w', lambda: a('buffer_load_dwordx4 %s, %s, %s, s89 offen sc1' % (v(R, 4), v(vVo), s(rWS, 4))), lambda: decode([R], t_), sleep=P.w_sleep)
    a('s_mov_b64 exec, -1')
    if P.y_delay:
        a('s_sleep %d' % P.y_delay)
    def y_load():
        for k in range(4):
            a('buffer_load_dwordx4 %s, %s, %s, s%d offen sc1' % (v(R + 4 * k, 4), v(vRO), s(rWS, 4), 96 + k))
    poll('y', y_load, lambda: decode([R + 4 * k for k in range(4)], t_), masked=True)
    for (x, y) in ((0, 4), (8, 12), (0, 8)):
        for r in (0, 2):
            a('v_pk_add_f32 %s, %s, %s' % (v(R + x + r, 2), v(R + x + r, 2), v(R + y + r, 2)))
    for r in range(4):
        a('v_add_f32_dpp %s, %s, %s row_ror:8%s' % (v(R + r), v(R + r), v(R + r), DPP))
    a('v_permlane16_swap_b32 %s, %s' % (v(R), v(R + 1)))
    a('v_permlane16_swap_b32 %s, %s' % (v(R + 2), v(R + 3)))
    a('v_add_f32 %s, %s, %s' % (v(R), v(R), v(R + 1)))
    a('v_add_f32 %s, %s, %s' % (v(R + 2), v(R + 2), v(R + 3)))
    a('v_permlane32_swap_b32 %s, %s' % (v(R), v(R + 2)))
    a('v_add_f32 %s, %s, %s' % (v(R), v(R), v(R + 2)))
    a('v_lshrrev_b32 %s, 4, %s' % (v(t_), v(vL)))
    a('v_lshl_add_u32 %s, %s, 2, %s' % (v(t_), v(t_), v(vRW)))
    a('ds_write_b32 %s, %s offset:%d' % (v(t_), v(R), RED))
    a('s_waitcnt lgkmcnt(0)')
    a('s_barrier')
    a('s_cmp_lg_u32 %s, 0' % s(sSW)); a('s_cbranch_scc1 L_fin')
    a('ds_read2_b32 %s, %s offset0:0 offset1:32' % (v(R, 2), v(vRR)))
    a('ds_read2_b32 %s, %s offset0:64 offset1:96' % (v(R + 2, 2), v(vRR)))
    a('s_waitcnt lgkmcnt(0)')
    a('v_add_f32 %s, %s, %s' % (v(R), v(R), v(R + 1)))
    a('v_add_f32 %s, %s, %s' % (v(R + 2), v(R + 2), v(R + 3)))
    a('v_add_f32 %s, %s, %s' % (v(R), v(R), v(R + 2)))
    a('v_mov_b32 %s, %s' % (v(R + 1), v(R)))
    a('v_permlane32_swap_b32 %s, %s' % (v(R), v(R + 1)))
    a('v_add_f32 %s, %s, %s' % (v(R), v(R), v(R + 1)))
    a('v_cvt_pk_bf16_f32 %s, %s, %s' % (v(R), v(R), v(R)))
    a('s_mov_b32 exec_hi, 0')
    a('global_store_short %s, %s, %s' % (v(vOO), v(R), s(pOUT, 2)))
    a('s_cmp_lg_u32 s2, 0'); a('s_cbranch_scc1 L_fin')
    a('s_mov_b64 exec, 1')
    a('v_mov_b32 v14, %s' % s(sTG0)); a('v_mov_b32 v15, %s' % s(sTG1))
    a('v_mov_b32 v12, 0x%x' % EP)
    a('global_store_dwordx2 v12, v[14:15], %s sc1' % s(pWS, 2))
    a.label('L_fin'); a.hist = []
    stamp(6)
    stamp_flush()
    a('s_endpgm')

    newpath('L_helper')
    vG, vN, vBB = 2, 3, 16
    T = list(range(17, 29))
    tO = T[11]
    vHM = 29
    XS, GW = 30, 40
    XQ = 50
    QA = 72; BIG = 76
    sCB, sRB, sLID, sC0 = 60, 61, 62, 63
    def oob_unless(dst, src, cmp):
        a(cmp)
        a('v_mov_b32 %s, 0x%x' % (v(tO), OOB))
        a('v_cndmask_b32 %s, %s, %s, vcc' % (v(dst), v(tO), v(src)))
    a('v_lshrrev_b32 %s, 4, %s' % (v(vG), v(vL)))
    a('v_and_b32 %s, 15, %s' % (v(vN), v(vL)))
    a('v_bfe_u32 %s, %s, 3, 1' % (v(vBB), v(vL)))
    a('s_add_u32 %s, %s, %s' % (s(sLID), s(sHG), s(sS)))
    a('s_mul_i32 %s, %s, 9363' % (s(sCB), s(sLID)))
    a('s_lshr_b32 %s, %s, 16' % (s(sCB), s(sCB)))
    a('s_mul_i32 %s, %s, 7' % (s(sT0), s(sCB)))
    a('s_sub_u32 %s, %s, %s' % (s(sRB), s(sLID), s(sT0)))
    vXs, vGw = T[5], T[6]
    a('v_and_b32 %s, 31, %s' % (v(vGw), v(vL)))
    a('v_mul_u32_u24 %s, 36, %s' % (v(vGw), v(vGw)))
    a('v_lshrrev_b32 %s, 5, %s' % (v(vXs), v(vL)))
    a('v_mul_u32_u24 %s, 0x480, %s' % (v(vXs), v(vXs)))
    a('v_add_u32 %s, %s, %s' % (v(vXs), v(vXs), v(vGw)))
    def stat_loads():
        for (dst, off, base) in ((XS, vXs, pX), (GW, vGw, pGW)):
            a('global_load_dwordx4 %s, %s, %s' % (v(dst, 4), v(off), s(base, 2)), tag='st')
            a('global_load_dwordx4 %s, %s, %s offset:16' % (v(dst + 4, 4), v(off), s(base, 2)), tag='st')
            a('global_load_dword %s, %s, %s offset:32' % (v(dst + 8), v(off), s(base, 2)), tag='st')
    def common_setup():
        epoch_load()
        a('s_barrier')
        srd(rWS, pWS, WSB)
        masks(T[0], T[1])
        a('v_mov_b32 %s, 0xfffff000' % v(vHM))
        a('s_mov_b32 %s, 0xffff0000' % s(sHI))
        a('s_mov_b32 %s, 0xff00ff00' % s(sBB)); a('s_mov_b32 %s, 0xff00ff00' % s(sBB + 1))
        a('v_lshrrev_b32 %s, 5, %s' % (v(T[0]), v(vL)))
        a('v_lshlrev_b32 %s, 9, %s' % (v(T[0]), v(T[0])))
        a('v_lshl_add_u32 %s, %s, 5, %s' % (v(T[0]), v(vN), v(T[0])))
        a('v_and_b32 %s, 16, %s' % (v(T[1]), v(vL)))
        a('v_add_u32 %s, %s, %s' % (v(T[10]), v(T[1]), v(T[0])))
        a('s_waitcnt lgkmcnt(0)')
        epoch_tags()
    S1, GD, t0, t1, t2, t3 = T[4], T[5], T[6], T[7], T[0], T[1]
    vOMG = T[9]
    def stats(full):
        a('v_mov_b32 %s, 0' % v(GD))
        if full:
            a('v_mov_b32 %s, 0' % v(S1))
        for k in range(9):
            a('v_lshlrev_b32 %s, 16, %s' % (v(t0), v(XS + k)))
            a('v_and_b32 %s, %s, %s' % (v(t1), s(sHI), v(XS + k)))
            a('v_lshlrev_b32 %s, 16, %s' % (v(t2), v(GW + k)))
            a('v_and_b32 %s, %s, %s' % (v(t3), s(sHI), v(GW + k)))
            a('v_fmac_f32 %s, %s, %s' % (v(GD), v(t0), v(t2)))
            if full:
                a('v_add_f32 %s, %s, %s' % (v(S1), v(S1), v(t0)))
            a('v_fmac_f32 %s, %s, %s' % (v(GD), v(t1), v(t3)))
            if full:
                a('v_add_f32 %s, %s, %s' % (v(S1), v(S1), v(t1)))
        red32([GD, S1] if full else [GD], [t0, t1], 'v_add_f32')
        a('v_mul_f32 %s, 0x%x, %s' % (v(GD), f2u(-math.log2(math.e)), v(GD)))
        a('v_exp_f32 %s, %s' % (v(GD), v(GD)))
        a('v_add_f32 %s, 1.0, %s' % (v(GD), v(GD)))
        a('v_rcp_f32 %s, %s' % (v(GD), v(GD)))
        a('v_sub_f32 %s, 1.0, %s' % (v(vOMG), v(GD)))
        a('v_readlane_b32 %s, %s, 0' % (s(sG0), v(GD))); a('v_readlane_b32 %s, %s, 32' % (s(sG1), v(GD)))
    a('s_cmp_eq_u32 %s, 1' % s(sW)); a('s_cbranch_scc1 L_h1')
    a('s_cmp_lg_u32 %s, 0' % s(sW)); a('s_cbranch_scc1 L_h23')
    a('v_mul_u32_u24 %s, 18, %s' % (v(T[0]), v(vG)))
    a('v_lshlrev_b32 %s, 13, %s' % (v(T[1]), v(T[0])))
    a('v_lshl_add_u32 %s, %s, 4, %s' % (v(T[1]), v(vN), v(T[1])))
    if P.no_wq:
        a('v_mov_b32 %s, 0x%x' % (v(T[1]), OOB))
    a('v_mul_u32_u24 %s, 0x480, %s' % (v(T[2]), v(vBB)))
    a('v_lshl_add_u32 %s, %s, 1, %s' % (v(T[2]), v(T[0]), v(T[2])))
    a('s_mul_i32 %s, %s, 144' % (s(sT0), s(sS)))
    a('v_add_u32 %s, %s, %s' % (v(T[2]), s(sT0), v(T[2])))
    a('s_mul_i32 %s, %s, %d' % (s(sT0), s(sS), 72 * 8192))
    a('s_lshl_b32 %s, %s, 8' % (s(sT1), s(sH)))
    a('s_add_u32 %s, %s, %s' % (s(sT0), s(sT0), s(sT1)))
    a('s_waitcnt lgkmcnt(0)')
    stamp(0)
    srd(rWA, pWQ, 576 * 8192)
    a('global_load_dwordx4 %s, %s, %s' % (v(XQ, 4), v(T[2]), s(pX, 2)), tag='xq')
    a('global_load_dwordx4 %s, %s, %s offset:16' % (v(XQ + 4, 4), v(T[2]), s(pX, 2)), tag='xq')
    a('global_load_dword %s, %s, %s offset:32' % (v(XQ + 8), v(T[2]), s(pX, 2)), tag='xq')
    for i in range(18):
        a('buffer_load_dwordx4 %s, %s, %s, %s offen%s' % (v(BIG + 4 * i, 4), v(T[1]), s(rWA, 4), s(sT0), wnt), tag='wq%d' % i)
        if i < 17:
            a('s_add_u32 %s, %s, 0x2000' % (s(sT0), s(sT0)))
    stat_loads()
    common_setup()
    a('s_mov_b32 s88, 0x01000100'); a('s_mov_b32 s89, 0x03020302')
    a('s_lshl_b32 %s, %s, 10' % (s(sT0), s(sLID)))
    a('s_add_u32 %s, %s, 0x%x' % (s(sT0), s(sT0), QX))
    a.wait_vm('xq')
    for i in range(18):
        A = AF[i & 1]
        a('v_perm_b32 %s, %s, %s, %s' % (v(T[0]), v(XQ + i // 2), v(XQ + i // 2), 's89' if i & 1 else 's88'))
        delta(A, T[0])
        a.wait_vm('wq%d' % i)
        mfma(QA, A, BIG + 4 * i, None if i == 0 else 1)
    encode(QA, QA, vHM)
    a('buffer_store_dwordx4 %s, %s, %s, %s offen sc1' % (v(QA, 4), v(T[10]), s(rWS, 4), s(sT0)))
    stamp(8)
    a.wait_vm0()
    stats(False)
    lds_wait('fp', FP, P.prog_n, T[0], T[1], 2)
    GQ = BIG
    a('v_lshlrev_b32 %s, 4, %s' % (v(T[10]), v(vL)))
    a('s_lshl_b32 s88, %s, 10' % s(sHG))
    a('s_add_u32 s88, s88, 0x%x' % QX)
    a('s_add_u32 s89, s88, 4096')
    def q_load():
        for k in range(8):
            a('buffer_load_dwordx4 %s, %s, %s, %s offen offset:%d sc1' % (v(GQ + 4 * k, 4), v(T[10]), s(rWS, 4), 's88' if k < 4 else 's89', 1024 * (k % 4)))
    poll('q', q_load, lambda: decode([GQ + 4 * k for k in range(8)], T[0]), sleep=P.q_sleep)
    for st in (1, 2, 4):
        for w in range(0, 8, 2 * st):
            for r in (0, 2):
                a('v_pk_add_f32 %s, %s, %s' % (v(GQ + 4 * w + r, 2), v(GQ + 4 * w + r, 2), v(GQ + 4 * (w + st) + r, 2)))
    a('v_cvt_pk_bf16_f32 %s, %s, %s' % (v(GQ), v(GQ), v(GQ + 1)))
    a('v_cvt_pk_bf16_f32 %s, %s, %s' % (v(GQ + 1), v(GQ + 2), v(GQ + 3)))
    a('v_lshlrev_b32 %s, 3, %s' % (v(T[10]), v(vL)))
    a('ds_write_b64 %s, %s offset:%d' % (v(T[10]), v(GQ, 2), QB))
    a('v_mov_b32 %s, 0' % v(T[0])); a('v_mov_b32 %s, 1' % v(T[1]))
    a('s_waitcnt lgkmcnt(0)')
    a('ds_write_b32 %s, %s offset:%d' % (v(T[0]), v(T[1]), FQ))
    stamp(9)
    a('s_branch L_mid')
    newpath('L_h1')
    a('v_mul_u32_u24 %s, 21, %s' % (v(T[0]), v(vG)))
    a('v_mul_u32_u24 %s, 0x2400, %s' % (v(T[1]), v(T[0])))
    a('v_lshl_add_u32 %s, %s, 4, %s' % (v(T[1]), v(vN), v(T[1])))
    a('s_cmp_lt_u32 %s, %d' % (s(sCB), 0 if P.no_w1 else 36))
    a('s_cselect_b32 %s, 0, 0x%x' % (s(sT1), OOB))
    a('v_or_b32 %s, %s, %s' % (v(T[1]), s(sT1), v(T[1])))
    a('s_mul_i32 %s, %s, 84' % (s(sT2), s(sRB)))
    a('v_add_u32 %s, %s, %s' % (v(T[8]), s(sT2), v(T[0])))
    a('v_mul_u32_u24 %s, %d, %s' % (v(T[2]), YP, v(vBB)))
    a('v_lshl_add_u32 %s, %s, 2, %s' % (v(T[8]), v(T[8]), v(T[2])))
    a('s_mul_i32 %s, %s, 9216' % (s(sT0), s(sT2)))
    a('s_lshl_b32 %s, %s, 8' % (s(sT1), s(sCB)))
    a('s_add_u32 %s, %s, %s' % (s(sT0), s(sT0), s(sT1)))
    a('s_waitcnt lgkmcnt(0)')
    stamp(0)
    stat_loads()
    srd(rWA, pW1, 576 * 9216)
    for i in range(21):
        a('buffer_load_dwordx4 %s, %s, %s, %s offen%s' % (v(BIG + 4 * i, 4), v(T[1]), s(rWA, 4), s(sT0), wnt), tag='w1_%d' % i)
        if i < 20:
            a('s_add_u32 %s, %s, 0x2400' % (s(sT0), s(sT0)))
    vYW = T[3]
    a('v_lshrrev_b32 %s, 5, %s' % (v(vYW), v(vL)))
    a('v_mul_u32_u24 %s, %d, %s' % (v(vYW), YP, v(vYW)))
    a('v_lshl_add_u32 %s, %s, 1, %s' % (v(vYW), v(vGw), v(vYW)))
    common_setup()
    a.wait_vm('st')
    stats(True)
    a('v_mul_f32 %s, 0x%x, %s' % (v(S1), f2u(1.0 / 576), v(S1)))
    S2 = GD
    a('v_mov_b32 %s, 0' % v(S2))
    for k in range(9):
        a('v_lshlrev_b32 %s, 16, %s' % (v(XQ + 2 * k), v(XS + k)))
        a('v_and_b32 %s, %s, %s' % (v(XQ + 2 * k + 1), s(sHI), v(XS + k)))
        a('v_sub_f32 %s, %s, %s' % (v(XQ + 2 * k), v(XQ + 2 * k), v(S1)))
        a('v_sub_f32 %s, %s, %s' % (v(XQ + 2 * k + 1), v(XQ + 2 * k + 1), v(S1)))
        a('v_fmac_f32 %s, %s, %s' % (v(S2), v(XQ + 2 * k), v(XQ + 2 * k)))
        a('v_fmac_f32 %s, %s, %s' % (v(S2), v(XQ + 2 * k + 1), v(XQ + 2 * k + 1)))
    red32([S2], [t0], 'v_add_f32')
    a('v_mov_b32 %s, 0x%x' % (v(t0), f2u(1e-5)))
    a('v_fmac_f32 %s, 0x%x, %s' % (v(t0), f2u(1.0 / 576), v(S2)))
    a('v_rsq_f32 %s, %s' % (v(S2), v(t0)))
    for k in range(18):
        a('v_mul_f32 %s, %s, %s' % (v(XQ + k), v(XQ + k), v(S2)))
    for k in range(18):
        a('v_cvt_pk_bf16_f32 %s, %s, %s' % (v(XQ + k), v(XQ + k), v(XQ + k)))
    for k in range(9):
        a('ds_write_b64 %s, %s offset:%d' % (v(vYW), v(XQ + 2 * k, 2), YT + 8 * k))
    a('s_waitcnt lgkmcnt(0)')
    a('v_add_u32 %s, %d, %s' % (v(T[8]), YT, v(T[8])))
    YR = 30
    for k in range(11):
        a('ds_read2_b32 %s, %s offset0:%d offset1:%d' % (v(YR + 2 * k, 2), v(T[8]), 2 * k, 2 * k + 1))
    a('s_lshl_b32 %s, %s, 10' % (s(sT0), s(sLID)))
    a('s_add_u32 %s, %s, 0x%x' % (s(sT0), s(sT0), HX))
    a('s_waitcnt lgkmcnt(0)')
    for i in range(21):
        A = AF[i & 1]
        delta(A, YR + i)
        a.wait_vm('w1_%d' % i)
        mfma(QA, A, BIG + 4 * i, None if i == 0 else 1)
    encode(QA, QA, vHM)
    a('buffer_store_dwordx4 %s, %s, %s, %s offen sc1' % (v(QA, 4), v(T[10]), s(rWS, 4), s(sT0)))
    stamp(10)
    a('s_branch L_mid')
    newpath('L_h23')
    a('v_mov_b32 %s, 0' % v(T[0]))
    a('v_lshlrev_b32 %s, 2, %s' % (v(T[1]), v(vL)))
    a('ds_write_b32 %s, %s offset:%d' % (v(T[1]), v(T[0]), LS))
    a('v_lshlrev_b32 %s, 2, %s' % (v(T[1]), v(vN)))
    a('ds_write_b32 %s, %s offset:%d' % (v(T[1]), v(T[0]), YT + 576 * 4))
    a('ds_write_b32 %s, %s offset:%d' % (v(T[1]), v(T[0]), YT + YP + 576 * 4))
    a('s_waitcnt lgkmcnt(0)')
    stamp(0)
    stat_loads()
    common_setup()
    a.wait_vm0()
    stats(False)
    newpath('L_mid')
    a('v_and_b32 %s, 7, %s' % (v(T[1]), v(vL)))
    a('v_lshlrev_b32 %s, 4, %s' % (v(T[1]), v(T[1])))
    XG = 144
    a('s_lshl_b32 %s, %s, 5' % (s(sT2), s(sHG)))
    a('s_add_u32 %s, %s, 0x%x' % (s(sT2), s(sT2), MLX))
    poll('ls2', lambda: a('ds_read_b128 %s, %s offset:%d' % (v(XG, 4), v(T[1]), LS)), lambda: ls_check(XG, T[0]), lds=True, sleep=8)
    a('s_cmp_lg_u32 %s, 1' % s(sW)); a('s_cbranch_scc1 L_mlpub')
    a('v_mov_b32 %s, %s' % (v(XG + 4), v(XG + 2))); a('v_mov_b32 %s, %s' % (v(XG + 5), v(XG + 3)))
    red8([XG + 4, XG + 5], 'v_max_f32')
    for b in range(2):
        a('v_sub_f32 %s, %s, %s' % (v(XG + 2 + b), v(XG + 2 + b), v(XG + 4 + b)))
    for b in range(2):
        a('v_exp_f32 %s, %s' % (v(XG + 2 + b), v(XG + 2 + b)))
    for b in range(2):
        a('v_mul_f32 %s, %s, %s' % (v(XG + b), v(XG + b), v(XG + 2 + b)))
    red8([XG, XG + 1], 'v_add_f32')
    a('v_cmp_eq_u32 vcc, 1, %s' % v(vL))
    a('v_cndmask_b32 %s, %s, %s, vcc' % (v(XG + 4), v(XG + 4), v(XG + 5)))
    a('v_cndmask_b32 %s, %s, %s, vcc' % (v(XG + 6), v(XG), v(XG + 1)))
    a('v_mov_b32 %s, %s' % (v(XG + 5), s(sTG0))); a('v_mov_b32 %s, %s' % (v(XG + 7), s(sTG1)))
    oob_unless(T[1], T[1], 'v_cmp_gt_u32 vcc, 2, %s' % v(vL))
    a('s_lshl_b32 %s, %s, 5' % (s(sT0), s(sS)))
    a('s_add_u32 %s, %s, %s' % (s(sT0), s(sT0), s(sT2)))
    a('buffer_store_dwordx4 %s, %s, %s, %s offen sc1' % (v(XG + 4, 4), v(T[1]), s(rWS, 4), s(sT0)))
    newpath('L_mlpub')
    a('s_lshl_b32 %s, %s, 4' % (s(sC0), s(sRB)))
    a('s_min_u32 %s, %s, 4' % (s(sT0), s(sRB)))
    a('s_lshl_b32 %s, %s, 2' % (s(sT0), s(sT0)))
    a('s_add_u32 %s, %s, %s' % (s(sC0), s(sC0), s(sT0)))
    vC8 = T[8]
    a('v_and_b32 %s, 1, %s' % (v(T[0]), v(vG)))
    a('v_lshlrev_b32 %s, 3, %s' % (v(T[0]), v(T[0])))
    a('v_lshl_add_u32 %s, %s, 4, %s' % (v(vC8), v(vN), v(T[0])))
    srd(rB2, pB2, 1152)
    vB2 = 30
    a('s_lshl_b32 %s, %s, 8' % (s(sT1), s(sW)))
    a('s_cmp_eq_u32 s2, 0')
    a('s_cselect_b32 %s, %s, 0x%x' % (s(sT1), s(sT1), OOB))
    a('v_add_u32 %s, %s, %s' % (v(T[1]), s(sT1), v(vC8)))
    a('buffer_load_dwordx2 %s, %s, %s, 0 offen' % (v(vB2, 2), v(T[1]), s(rB2, 4)))
    a('buffer_load_dwordx2 %s, %s, %s, 0 offen offset:256' % (v(vB2 + 2, 2), v(T[1]), s(rB2, 4)))
    HF = 48
    for k in range(20):
        a('v_mov_b32 %s, 0' % v(HF + k))
    a('s_cmp_ge_u32 %s, 36' % s(sCB)); a('s_cbranch_scc1 L_noh')
    srd(rB1, pB1, 9216)
    B1 = 34
    a('s_lshl_b32 %s, %s, 7' % (s(sT0), s(sCB)))
    a('s_add_u32 %s, %s, %s' % (s(sT0), s(sT0), s(sC0)))
    a('s_lshl_b32 %s, %s, 1' % (s(sT0), s(sT0)))
    a('v_lshlrev_b32 %s, 3, %s' % (v(T[0]), v(vG)))
    a('buffer_load_dwordx2 %s, %s, %s, %s offen' % (v(B1, 2), v(T[0]), s(rB1, 4), s(sT0)))
    a('v_lshlrev_b32 %s, 1, %s' % (v(T[0]), v(vG)))
    a('buffer_load_ushort %s, %s, %s, %s offen offset:32' % (v(B1 + 2), v(T[0]), s(rB1, 4), s(sT0)))
    a('v_and_b32 %s, 7, %s' % (v(T[2]), v(vL)))
    a('v_min_u32 %s, 6, %s' % (v(T[2]), v(T[2])))
    a('v_lshlrev_b32 %s, 10, %s' % (v(T[2]), v(T[2])))
    a('v_lshl_add_u32 %s, %s, 9, %s' % (v(T[2]), v(vBB), v(T[2])))
    a('v_lshl_add_u32 %s, %s, 4, %s' % (v(T[3]), v(vG), v(T[2])))
    a('s_mul_i32 %s, %s, %d' % (s(sT1), s(sCB), 7 * 1024))
    a('s_lshl_b32 %s, %s, 2' % (s(sT2), s(sC0)))
    a('s_add_u32 %s, %s, %s' % (s(sT1), s(sT1), s(sT2)))
    a('s_add_u32 %s, %s, 0x%x' % (s(sT1), s(sT1), HX))
    a('s_cmp_lt_u32 %s, 4' % s(sRB))
    a('s_cselect_b32 %s, 64, 0' % s(sT2))
    a('s_add_u32 %s, %s, %s' % (s(sT2), s(sT2), s(sT1)))
    HG = 72
    def h_load():
        a('buffer_load_dwordx4 %s, %s, %s, %s offen sc1' % (v(HG, 4), v(T[3]), s(rWS, 4), s(sT1)))
        a('buffer_load_dwordx4 %s, %s, %s, %s offen sc1' % (v(HG + 4, 4), v(T[2]), s(rWS, 4), s(sT2)))
    poll('h', h_load, lambda: decode([HG, HG + 4], T[0]), sleep=P.h_sleep)
    for k in range(1, 4):
        a('v_cmp_eq_u32 vcc, %d, %s' % (k, v(vG)))
        a('v_cndmask_b32 %s, %s, %s, vcc' % (v(HG + 4), v(HG + 4), v(HG + 4 + k)))
    smask(0x7f7f)
    HV = [HG + k for k in range(5)]
    for x in HV:
        a('v_cndmask_b32 %s, 0, %s, %s' % (v(x), v(x), s(sM, 2)))
    red8(HV, 'v_add_f32')
    Z = [80 + k for k in range(5)]
    for k in range(5):
        if k == 4:
            a('v_lshlrev_b32 %s, 16, %s' % (v(Z[k]), v(B1 + 2)))
        elif k & 1:
            a('v_and_b32 %s, %s, %s' % (v(Z[k]), s(sHI), v(B1 + k // 2)))
        else:
            a('v_lshlrev_b32 %s, 16, %s' % (v(Z[k]), v(B1 + k // 2)))
        a('v_add_f32 %s, %s, %s' % (v(HV[k]), v(HV[k]), v(Z[k])))
    a('v_mov_b32 %s, %s' % (v(T[0]), s(sG0))); a('v_mov_b32 %s, %s' % (v(T[1]), s(sG1)))
    a('v_cndmask_b32 %s, %s, %s, %s' % (v(T[0]), v(T[0]), v(T[1]), s(sBB, 2)))
    a('v_sub_f32 %s, 1.0, %s' % (v(T[0]), v(T[0])))
    kz = -2.0 * math.sqrt(2.0 / math.pi) * math.log2(math.e)
    steps = [
        lambda x, z: a('v_mul_f32 %s, %s, %s' % (v(z), v(x), v(x))),
        lambda x, z: a('v_mul_f32 %s, 0x%x, %s' % (v(z), f2u(0.044715), v(z))),
        lambda x, z: a('v_add_f32 %s, 1.0, %s' % (v(z), v(z))),
        lambda x, z: a('v_mul_f32 %s, %s, %s' % (v(z), v(z), v(x))),
        lambda x, z: a('v_mul_f32 %s, 0x%x, %s' % (v(z), f2u(kz), v(z))),
        lambda x, z: a('v_exp_f32 %s, %s' % (v(z), v(z))),
        lambda x, z: a('v_add_f32 %s, 1.0, %s' % (v(z), v(z))),
        lambda x, z: a('v_rcp_f32 %s, %s' % (v(z), v(z))),
        lambda x, z: a('v_mul_f32 %s, %s, %s' % (v(x), v(x), v(T[0]))),
        lambda x, z: a('v_mul_f32 %s, %s, %s' % (v(x), v(x), v(z))),
        lambda x, z: a('v_cvt_pk_bf16_f32 %s, %s, %s' % (v(x), v(x), v(x))),
    ]
    for st in steps:
        for k in range(5):
            st(HV[k], Z[k])
    for k in range(4):
        delta(HF + 4 * k, HV[k])
    a('s_cmp_ge_u32 %s, 4' % s(sRB)); a('s_cbranch_scc1 L_noh')
    delta(HF + 16, HV[4])
    newpath('L_noh')
    a.wait_vm0()
    PA = [36, 40]
    for k in range(2):
        for r in range(4):
            if r & 1:
                a('v_and_b32 %s, %s, %s' % (v(PA[k] + r), s(sHI), v(vB2 + 2 * k + r // 2)))
            else:
                a('v_lshlrev_b32 %s, 16, %s' % (v(PA[k] + r), v(vB2 + 2 * k + r // 2)))
            a('v_mul_f32 %s, %s, %s' % (v(PA[k] + r), v(PA[k] + r), v(vOMG)))
    srd(rWO, pWO, 4096 * 1152)
    srd(rW2, pW2, 4608 * 1152)
    vW2o, vW2o2, vWoo, vW2h, vW2h2, vWoh, vYS, vYH, vXA, vXM, vWT = 30, 31, 32, 33, 34, 35, 44, 45, 46, 47, 68
    sW2, sW2b, sWO, sYS, sOG = 88, 89, 100, 101, 15
    a('v_mul_u32_u24 %s, 0x1200, %s' % (v(vWoo), v(vG)))
    a('v_lshl_add_u32 %s, %s, 4, %s' % (v(vWoo), v(vN), v(vWoo)))
    if P.no_def:
        a('v_mov_b32 %s, 0x%x' % (v(vWoo), OOB))
    a('s_cmp_lt_u32 %s, 36' % s(sCB))
    a('s_cselect_b32 %s, 0, 0x%x' % (s(sT0), OOB))
    a('v_or_b32 %s, %s, %s' % (v(vW2o), s(sT0), v(vWoo)))
    a('s_cmp_lt_u32 %s, 4' % s(sRB))
    a('s_cselect_b32 %s, %s, 0x%x' % (s(sT0), s(sT0), OOB))
    a('v_mul_u32_u24 %s, 0x480, %s' % (v(vW2o2), v(vG)))
    a('v_lshl_add_u32 %s, %s, 4, %s' % (v(vW2o2), v(vN), v(vW2o2)))
    a('v_or_b32 %s, %s, %s' % (v(vW2o2), s(sT0), v(vW2o2)))
    a('v_lshrrev_b32 %s, 5, %s' % (v(T[1]), v(vL)))
    a('v_mul_u32_u24 %s, 0x900, %s' % (v(T[1]), v(T[1])))
    a('v_lshl_add_u32 %s, %s, 1, %s' % (v(vYS), v(vC8), v(T[1])))
    a('v_cmp_gt_u32 vcc, 8, %s' % v(vN))
    a('v_mov_b32 %s, 0x%x' % (v(tO), OOB))
    for d_, s_ in ((vW2h, vW2o), (vW2h2, vW2o2), (vWoh, vWoo), (vYH, vYS)):
        a('v_cndmask_b32 %s, %s, %s, vcc' % (v(d_), v(tO), v(s_)))
    a('s_lshl_b32 %s, %s, 8' % (s(sT1), s(sW)))
    a('s_min_u32 %s, %s, 35' % (s(sW2), s(sCB)))
    a('s_lshl_b32 %s, %s, 7' % (s(sW2), s(sW2)))
    a('s_add_u32 %s, %s, %s' % (s(sW2), s(sW2), s(sC0)))
    a('s_mul_i32 %s, %s, 0x480' % (s(sW2), s(sW2)))
    a('s_add_u32 %s, %s, %s' % (s(sW2), s(sW2), s(sT1)))
    a('s_cmp_lt_u32 %s, 4' % s(sRB))
    a('s_cselect_b32 %s, %d, 0' % (s(sW2b), 16 * 1152))
    a('s_add_u32 %s, %s, %s' % (s(sW2b), s(sW2b), s(sW2)))
    a('s_mul_i32 %s, %s, %d' % (s(sWO), s(sLID), 16 * 1152))
    a('s_add_u32 %s, %s, %s' % (s(sWO), s(sWO), s(sT1)))
    a('s_mul_i32 %s, s2, 4608' % s(sYS))
    a('s_lshl_b32 %s, %s, 9' % (s(sT1), s(sW)))
    a('s_add_u32 %s, %s, %s' % (s(sYS), s(sYS), s(sT1)))
    a('s_lshl_b32 %s, %s, 10' % (s(sOG), s(sHG)))
    a('s_add_u32 %s, %s, 0x%x' % (s(sOG), s(sOG), OX))
    a('v_and_b32 %s, 7, %s' % (v(T[1]), v(vL)))
    a('v_lshlrev_b32 %s, 5, %s' % (v(vXM), v(T[1])))
    a('v_lshl_add_u32 %s, %s, 4, %s' % (v(vXM), v(vBB), v(vXM)))
    a('v_lshlrev_b32 %s, 10, %s' % (v(vXA), v(T[1])))
    a('v_lshl_add_u32 %s, %s, 9, %s' % (v(vXA), v(vBB), v(vXA)))
    a('v_lshl_add_u32 %s, %s, 4, %s' % (v(vXA), v(vG), v(vXA)))
    a('s_lshl_b32 %s, %s, 6' % (s(sT1), s(sS)))
    a('v_add_u32 %s, %s, %s' % (v(vXA), s(sT1), v(vXA)))
    stamp(11)
    a('s_lshl_b32 s7, %s, 5' % s(sHG))
    a('s_add_u32 s7, s7, 0x%x' % MLX)
    def ml_load():
        a('buffer_load_dwordx4 %s, %s, %s, %s offen sc1' % (v(XG, 4), v(vXM), s(rWS, 4), 's7'))
    def ml_check():
        a('v_xor_b32 %s, %s, %s' % (v(T[2]), s(sTG0), v(XG + 1)))
        a('v_xor_b32 %s, %s, %s' % (v(T[3]), s(sTG1), v(XG + 3)))
        a('v_or_b32 %s, %s, %s' % (v(T[2]), v(T[2]), v(T[3])))
        a('v_cmp_ne_u32 vcc, 0, %s' % v(T[2]))
    lds_wait('fd', FD, P.defer_n, T[0], T[4], 2)
    stamp(7)
    ml_load()
    WD = 72
    WH = 108
    def wloads(dst, o2, o2b, oo, extra):
        for i in range(4):
            a('buffer_load_dwordx4 %s, %s, %s, %s offen offset:%d%s' % (v(dst + 4 * i, 4), v(o2), s(rW2, 4), s(sW2), 1152 * i + extra, wnt))
        a('buffer_load_dwordx4 %s, %s, %s, %s offen offset:%d%s' % (v(dst + 16, 4), v(o2b), s(rW2, 4), s(sW2b), extra, wnt))
        for i in range(4):
            a('buffer_load_dwordx4 %s, %s, %s, %s offen offset:%d%s' % (v(dst + 20 + 4 * i, 4), v(oo), s(rWO, 4), s(sWO), 1152 * i + extra, wnt))
    wloads(WD, vW2o, vW2o2, vWoo, 0)
    a('s_cmp_lg_u32 %s, 3' % s(sW)); a('s_cbranch_scc1 L_now')
    wloads(WH, vW2h, vW2h2, vWoh, 256)
    newpath('L_now')
    a('s_barrier')
    a.wait_vm0()
    stamp(12)
    for i in range(5):
        mfma(PA[0], HF + 4 * i, WD + 4 * i, 1)
    a('s_cmp_lg_u32 %s, 3' % s(sW)); a('s_cbranch_scc1 L_now2')
    for i in range(5):
        mfma(PA[1], HF + 4 * i, WH + 4 * i, 1)
    a.label('L_now2')
    XO = 148
    o_load = lambda: a('buffer_load_dwordx4 %s, %s, %s, %s offen sc1' % (v(XO, 4), v(vXA), s(rWS, 4), s(sOG)))
    o_load()
    poll('ml', ml_load, ml_check, sleep=4, first_done=True)
    a('v_mov_b32 %s, %s' % (v(vWT), v(XG)))
    red8([vWT], 'v_max_f32')
    a('v_sub_f32 %s, %s, %s' % (v(vWT), v(XG), v(vWT)))
    a('v_exp_f32 %s, %s' % (v(vWT), v(vWT)))
    a('v_mul_f32 %s, %s, %s' % (v(XG + 2), v(XG + 2), v(vWT)))
    red8([XG + 2], 'v_add_f32')
    a('v_rcp_f32 %s, %s' % (v(XG + 2), v(XG + 2)))
    a('v_mov_b32 %s, %s' % (v(T[0]), s(sG0))); a('v_mov_b32 %s, %s' % (v(T[1]), s(sG1)))
    a('v_cndmask_b32 %s, %s, %s, %s' % (v(T[0]), v(T[0]), v(T[1]), s(sBB, 2)))
    a('v_mul_f32 %s, %s, %s' % (v(vWT), v(vWT), v(XG + 2)))
    a('v_mul_f32 %s, %s, %s' % (v(vWT), v(vWT), v(T[0])))
    a.wait_vm0()
    poll('o', o_load, lambda: decode([XO], T[0]), masked=True, first_done=True)
    stamp(13)
    U = [XO + i for i in range(4)]
    for x in U:
        a('v_mul_f32 %s, %s, %s' % (v(x), v(x), v(vWT)))
    red8(U, 'v_add_f32')
    AQ = 48
    for i in range(4):
        a('v_cvt_pk_bf16_f32 %s, %s, %s' % (v(U[i]), v(U[i]), v(U[i])))
    for i in range(4):
        delta(AQ + 4 * i, U[i])
    for i in range(4):
        mfma(PA[0], AQ + 4 * i, WD + 20 + 4 * i, 1)
    a('s_cmp_lg_u32 %s, 3' % s(sW)); a('s_cbranch_scc1 L_now3')
    for i in range(4):
        mfma(PA[1], AQ + 4 * i, WH + 20 + 4 * i, 1)
    encode(PA[1], PA[1], vHM)
    a('buffer_store_dwordx4 %s, %s, %s, %s offen offset:512 sc1' % (v(PA[1], 4), v(vYH), s(rWS, 4), s(sYS)))
    a.label('L_now3')
    a('s_nop 5')
    encode(PA[0], PA[0], vHM)
    a('buffer_store_dwordx4 %s, %s, %s, %s offen sc1' % (v(PA[0], 4), v(vYS), s(rWS, 4), s(sYS)))
    stamp(14)
    stamp_flush()
    a.label('L_end')
    a('s_endpgm')
    a.raw('.section .rodata,"a"')
    a.raw('.p2align 6')
    a.raw('.amdhsa_kernel ' + K1)
    a.raw('  .amdhsa_next_free_vgpr %d' % NV)
    a.raw('  .amdhsa_next_free_sgpr 102')
    a.raw('  .amdhsa_accum_offset %d' % NV)
    a.raw('  .amdhsa_group_segment_fixed_size 0')
    a.raw('  .amdhsa_kernarg_size 112')
    a.raw('  .amdhsa_user_sgpr_count 2')
    a.raw('  .amdhsa_user_sgpr_kernarg_segment_ptr 1')
    a.raw('  .amdhsa_system_sgpr_workgroup_id_x 1')
    a.raw('  .amdhsa_float_denorm_mode_32 3')
    a.raw('.end_amdhsa_kernel')
    launch = '; @launch grid=(256,1,1) block=(768,1,1) lds=%d\n' % LDS_BYTES
    return HEADER + launch + a.text()

def parse(argv=None):
    ap = argparse.ArgumentParser()
    ap.add_argument('-o', default=None)
    for k, d in (('depth', 4), ('batch', 2), ('pre', 22), ('dmid', 6), ('kick', 0), ('kfl', 1), ('vfl', 1), ('wfl', 1),
                 ('diag', 0), ('no_w1', 0), ('no_wq', 0), ('no_def', 0), ('defer_at', 61), ('defer_n', 8), ('q_sleep', 8), ('h_sleep', 16), ('prog_at', 14), ('prog_n', 4), ('w_sleep', 4), ('y_delay', 0)):
        ap.add_argument('--' + k, type=int, default=d)
    ap.add_argument('--spin', type=lambda x: int(x, 0), default=0x40000)
    return ap.parse_args(argv)

if __name__ == '__main__':
    P = parse()
    txt = gen(P)
    out = P.o or os.path.join(os.path.dirname(os.path.abspath(__file__)), '..', 'cdna_kernels', NAME + '.s')
    open(out, 'w').write(txt)
    print('wrote', out, len(txt), 'bytes; lds', LDS_BYTES)
```

```python
import sys, os, math, struct, argparse
sys.path.insert(0, os.path.dirname(os.path.abspath(__file__)))
from asmlib import Asm

NAME = 'gated_mix__mha_block_cached__mixer_channel_mlp__decode'
def f2u(x):
    return struct.unpack('<I', struct.pack('<f', x))[0]
HEADER = open(os.path.join(os.path.dirname(os.path.abspath(__file__)), '..', 'cdna_kernels', NAME + '.s.ref')).read().split('; Override launch')[0]

LS, FQ, FD, FP, QB, YT = 0, 128, 132, 136, 256, 768
YP = 592 * 4
OBUF = YT + 2 * YP
RED = OBUF + 8 * 1024
LDS_BYTES = RED + 1024
QX = 256 * 4608
HX = QX + 256 * 1024
OX = HX + 256 * 1024
MLX = OX + 256 * 1024
EP = MLX + 256 * 32
WS_BYTES = EP + 128
DIAG = 0x400000
OOB = 0x80000000
NV = 168

def gen(P):
    a = Asm()
    FL = {0: '', 1: ' nt', 2: ' sc1', 3: ' sc0 sc1', 4: ' sc1 nt', 5: ' sc0 sc1 nt'}
    wnt = FL[P.wfl]
    D = P.depth
    vL = 1; MASK = 4; AF = [8, 12]
    sW, sH, sS, sHG, sKV, sT0, sT1, sT2, sG, sSPIN = 3, 4, 5, 6, 8, 9, 10, 11, 12, 13
    pX, pK, pV, pWQ, pWO, pW1, pB1, pW2, pB2, pGW, pOUT, pDBG, pWS = 16, 18, 20, 22, 24, 28, 30, 32, 34, 36, 38, 40, 42
    rK, rV, rWA, rWO, rW2, rWS, rB1, rB2 = 44, 48, 52, 56, 64, 68, 76, 96
    sG0, sG1, sTG0, sTG1 = 84, 85, 86, 87
    sTK = 72
    sHI, sC, sBB, sM = 90, 91, 92, 94
    sST = 26
    def v(n, k=1):
        assert n + k <= NV, n
        return 'v%d' % n if k == 1 else 'v[%d:%d]' % (n, n + k - 1)
    def s(n, k=1):
        return 's%d' % n if k == 1 else 's[%d:%d]' % (n, n + k - 1)
    def srd(r, p, nbytes):
        a('s_mov_b32 %s, %s' % (s(r), s(p)))
        a('s_mov_b32 %s, %s' % (s(r + 1), s(p + 1)))
        a('s_mov_b32 %s, 0x%x' % (s(r + 2), nbytes))
        a('s_mov_b32 %s, 0x20000' % s(r + 3))
    def smask(val16):
        w = val16 | (val16 << 16)
        a('s_mov_b32 %s, 0x%x' % (s(sM), w)); a('s_mov_b32 %s, 0x%x' % (s(sM + 1), w))
    DPP = ' row_mask:0xf bank_mask:0xf'
    VS = 71
    def stamp(n):
        if not P.diag:
            return
        a('s_memrealtime %s' % s(sST, 2))
        a('s_waitcnt lgkmcnt(0)')
        a('v_writelane_b32 v%d, %s, %d' % (VS, s(sST), n))
    def stamp_flush():
        if not P.diag:
            return
        a('s_mov_b64 exec, -1')
        a('s_mul_i32 s100, s2, 12'); a('s_add_u32 s100, s100, %s' % s(sW)); a('s_lshl_b32 s100, s100, 7')
        a('s_add_u32 s100, s100, 0x%x' % DIAG)
        a('v_lshlrev_b32 v70, 2, %s' % v(vL))
        a('s_mov_b32 exec_hi, 0')
        a('buffer_store_dword v%d, v70, %s, s100 offen' % (VS, s(rWS, 4)))
    def red32(xs, ts, op):
        for d in ('quad_perm:[1,0,3,2]', 'quad_perm:[2,3,0,1]', 'row_ror:4', 'row_ror:8'):
            for x in xs:
                a('%s_dpp %s, %s, %s %s%s' % (op, v(x), v(x), v(x), d, DPP))
        for x, t in zip(xs, ts):
            a('v_mov_b32 %s, %s' % (v(t), v(x)))
        for x, t in zip(xs, ts):
            a('v_permlane16_swap_b32 %s, %s' % (v(x), v(t)))
        for x, t in zip(xs, ts):
            a('%s %s, %s, %s' % (op, v(x), v(x), v(t)))
    def redquads64(xs, ts, op):
        for d in ('row_ror:4', 'row_ror:8'):
            for x in xs:
                a('%s_dpp %s, %s, %s %s%s' % (op, v(x), v(x), v(x), d, DPP))
        for sw in ('v_permlane16_swap_b32', 'v_permlane32_swap_b32'):
            for x, t in zip(xs, ts):
                a('v_mov_b32 %s, %s' % (v(t), v(x)))
            for x, t in zip(xs, ts):
                a('%s %s, %s' % (sw, v(x), v(t)))
            for x, t in zip(xs, ts):
                a('%s %s, %s, %s' % (op, v(x), v(x), v(t)))
    def red8(xs, op):
        for d in ('quad_perm:[1,0,3,2]', 'quad_perm:[2,3,0,1]', 'row_half_mirror'):
            for x in xs:
                a('%s_dpp %s, %s, %s %s%s' % (op, v(x), v(x), v(x), d, DPP))
    def delta(dst, src):
        for d in range(4):
            a('v_and_b32 %s, %s, %s' % (v(dst + d), v(src), v(MASK + d)))
    def mfma(d, A, B, c=None):
        a('v_mfma_f32_16x16x32_bf16 %s, %s, %s, %s' % (v(d, 4), v(A, 4), v(B, 4), '0' if c is None else v(d, 4)))
    def masks(t0, t1):
        a('v_and_b32 %s, 1, %s' % (v(t0), v(vL)))
        a('v_lshlrev_b32 %s, 4, %s' % (v(t0), v(t0)))
        a('v_mov_b32 %s, 0xffff' % v(t1))
        a('v_lshlrev_b32 %s, %s, %s' % (v(t0), v(t0), v(t1)))
        for d in range(4):
            smask(0x0303 << (2 * d))
            a('v_cndmask_b32 %s, 0, %s, %s' % (v(MASK + d), v(t0), s(sM, 2)))
    def epoch_load():
        a('s_add_u32 s72, %s, 0x%x' % (s(pWS), EP)); a('s_addc_u32 s73, %s, 0' % s(pWS + 1))
        a('s_load_dwordx2 %s, s[72:73], 0' % s(sTG0, 2))
    def epoch_tags():
        a('s_add_u32 %s, %s, 1' % (s(sTG0), s(sTG0)))
        a('s_add_u32 %s, %s, 0x9e3779b9' % (s(sTG1), s(sTG1)))
        a('s_and_b32 s72, %s, 0xfff' % s(sTG0))
        a('s_and_b32 s73, %s, 0xfff' % s(sTG1))
        a('s_bfe_u32 s74, %s, 0xc000c' % s(sTG1))
        a('s_lshr_b32 s75, %s, 20' % s(sTG1))
    def encode(dst, src, vm):
        for r in range(4):
            a('v_add_u32 %s, 0x800, %s' % (v(dst + r), v(src + r)))
        for r in range(4):
            a('v_and_or_b32 %s, %s, %s, %s' % (v(dst + r), v(dst + r), v(vm), s(sTK + r)))
    def decode(regs, t):
        for g in regs:
            for r in range(4):
                a('v_xor_b32 %s, %s, %s' % (v(g + r), s(sTK + r), v(g + r)))
        flat = [g + r for g in regs for r in range(4)]
        a('v_or3_b32 %s, %s, %s, %s' % (v(t), v(flat[0]), v(flat[1]), v(flat[2])))
        k = 3
        while k + 1 < len(flat):
            a('v_or3_b32 %s, %s, %s, %s' % (v(t), v(t), v(flat[k]), v(flat[k + 1]))); k += 2
        if k < len(flat):
            a('v_or_b32 %s, %s, %s' % (v(t), v(t), v(flat[k])))
        a('v_and_b32 %s, 0xfff, %s' % (v(t), v(t)))
        a('v_cmp_ne_u32 vcc, 0, %s' % v(t))
    def poll(name, load, check, lds=False, sleep=0, masked=False, first_done=False):
        a('s_mov_b32 %s, 0x%x' % (s(sSPIN), P.spin))
        if first_done:
            a('s_branch L_%s_chk' % name)
        elif sleep or masked:
            a('s_branch L_%s_go' % name)
        a.label('L_%s_spin' % name)
        if masked:
            a('s_mov_b64 exec, vcc')
        if sleep:
            a('s_sleep %d' % sleep)
        a.label('L_%s_go' % name)
        load()
        if lds:
            a('s_waitcnt lgkmcnt(0)')
        else:
            a.wait_vm0()
        a.label('L_%s_chk' % name)
        check()
        a('s_sub_u32 %s, %s, 1' % (s(sSPIN), s(sSPIN)))
        a('s_cbranch_scc1 L_%s_ok' % name)
        a('s_cbranch_vccnz L_%s_spin' % name)
        a.label('L_%s_ok' % name)
        if masked:
            a('s_mov_b64 exec, -1')
    def lds_count(flag, t0, t1):
        a('v_mov_b32 %s, 0' % v(t0)); a('v_mov_b32 %s, 1' % v(t1))
        a('s_mov_b64 exec, 1')
        a('ds_add_u32 %s, %s offset:%d' % (v(t0), v(t1), flag))
        a('s_mov_b64 exec, -1')
    def lds_wait(name, flag, n, t0, tz, sleep):
        a('v_mov_b32 %s, 0' % v(tz))
        poll(name, lambda: a('ds_read_b32 %s, %s offset:%d' % (v(t0), v(tz), flag)), lambda: a('v_cmp_gt_u32 vcc, %d, %s' % (n, v(t0))), lds=True, sleep=sleep)
    def newpath(name):
        a.label(name); a.hist = []; a.vm = []
    WSB = (DIAG + 0x80000) if P.diag else WS_BYTES

    K1 = NAME + '_kernel'
    a.raw('.amdgcn_target "amdgcn-amd-amdhsa--gfx950"')
    a.raw('.text'); a.raw('.globl ' + K1); a.raw('.p2align 8'); a.raw('.type %s,@function' % K1)
    a.label(K1)
    a('s_cmp_ge_u32 s2, 256'); a('s_cbranch_scc1 L_end')
    a('s_load_dwordx16 s[16:31], s[0:1], 0')
    a('s_load_dwordx8 s[32:39], s[0:1], 64')
    a('s_load_dwordx4 s[40:43], s[0:1], 96')
    a('v_lshrrev_b32 v2, 6, v0')
    a('v_and_b32 %s, 63, v0' % v(vL))
    a('v_readfirstlane_b32 %s, v2' % s(sW))
    a('s_and_b32 %s, s2, 7' % s(sT0))
    a('s_lshr_b32 %s, s2, 3' % s(sT1))
    a('s_and_b32 %s, %s, 3' % (s(sH), s(sT1)))
    a('s_lshl_b32 %s, %s, 2' % (s(sT2), s(sT0)))
    a('s_add_u32 %s, %s, %s' % (s(sH), s(sH), s(sT2)))
    a('s_lshr_b32 %s, %s, 2' % (s(sS), s(sT1)))
    a('s_lshl_b32 %s, %s, 3' % (s(sHG), s(sH)))
    if P.diag:
        a('v_mov_b32 v%d, 0' % VS)
    a('s_cmp_lt_u32 %s, 4' % s(sW)); a('s_cbranch_scc1 L_helper')

    vKo, vVo = 2, 3
    BQ = 16; QV = 32; SC = 40; SACC = [48, 52]; OA = [56, 60]; T = list(range(64, 70))
    RB = 72; RN = (NV - RB) // 4
    sSW = 14
    a('s_sub_u32 %s, %s, 4' % (s(sSW), s(sW)))
    a('s_lshl_b32 %s, %s, 20' % (s(sKV), s(sH)))
    a('s_lshl_b32 %s, %s, 17' % (s(sT2), s(sS))); a('s_add_u32 %s, %s, %s' % (s(sKV), s(sKV), s(sT2)))
    a('s_lshl_b32 %s, %s, 12' % (s(sT2), s(sSW))); a('s_add_u32 %s, %s, %s' % (s(sKV), s(sKV), s(sT2)))
    a('v_lshrrev_b32 %s, 4, %s' % (v(T[1]), v(vL)))
    a('v_lshlrev_b32 %s, 4, %s' % (v(vVo), v(vL)))
    a('v_bfe_u32 %s, %s, 2, 2' % (v(T[0]), v(vL)))
    a('v_lshlrev_b32 %s, 8, %s' % (v(vKo), v(T[0])))
    a('v_lshl_add_u32 %s, %s, 6, %s' % (v(vKo), v(T[1]), v(vKo)))
    a('v_and_b32 %s, 3, %s' % (v(T[0]), v(vL)))
    a('v_lshl_add_u32 %s, %s, 4, %s' % (v(vKo), v(T[0]), v(vKo)))
    a('s_waitcnt lgkmcnt(0)')
    srd(rK, pK, 1 << 26)
    stamp(0)
    ip = [0]; cp = [0]
    def issue_one():
        j = ip[0]; ip[0] += 1
        assert j - RN < cp[0]
        n, i = j >> 2, j & 3
        if i == 0:
            g = n & 7
            a('s_add_u32 %s, %s, 0x%x' % (s(sG), s(sKV), ((g >> 2) << 25) + ((g & 3) << 15)))
        a('buffer_load_dwordx4 %s, %s, %s, %s offen offset:%d%s' % (
            v(RB + 4 * (j % RN), 4), v(vKo if j < 32 else vVo), s(rK if j < 32 else rV, 4), s(sG), 1024 * i, FL[P.kfl if j < 32 else P.vfl]), tag='L%d' % j)
    B = P.batch
    for _ in range(D):
        issue_one()
    epoch_load()
    srd(rV, pV, 1 << 26)
    srd(rWS, pWS, WSB)
    a('s_mov_b32 %s, 0x%x' % (s(sC), f2u(math.log2(math.e) / math.sqrt(128.0))))
    a('v_lshl_add_u32 %s, %s, 2, %s' % (v(T[2]), v(T[1]), v(T[0])))
    a('v_lshlrev_b32 %s, 4, %s' % (v(T[2]), v(T[2])))
    a('v_mov_b32 %s, 0' % v(T[3]))
    masks(T[0], T[1])
    a('s_barrier')
    assert P.pre <= RN
    while ip[0] < P.pre:
        a.wait_vm('L%d' % (ip[0] - D + B - 1))
        for _ in range(B):
            issue_one()
        if ip[0] - B < P.prog_at <= ip[0]:
            lds_count(FP, T[0], T[1])
    stamp(1)
    poll('fq', lambda: a('ds_read_b32 %s, %s offset:%d' % (v(T[0]), v(T[3]), FQ)), lambda: a('v_cmp_eq_u32 vcc, 0, %s' % v(T[0])), lds=True, sleep=1)
    a('ds_read_b128 %s, %s offset:%d' % (v(QV, 4), v(T[2]), QB))
    a('ds_read_b128 %s, %s offset:%d' % (v(QV + 4, 4), v(T[2]), QB + 256))
    epoch_tags()
    a('s_waitcnt lgkmcnt(0)')
    def qfrag(b):
        for i in range(4):
            smask(0xf << (4 * i))
            for d in range(4):
                a('v_cndmask_b32 %s, 0, %s, %s' % (v(BQ + 4 * i + d), v(QV + 4 * b + d), s(sM, 2)))
    stamp(2)
    def score(n):
        acc = SACC[n & 1]
        a('v_mov_b32_dpp %s, %s quad_perm:[0,0,0,0]%s' % (v(SC + n), v(acc), DPP))
        for c in range(1, 4):
            a('v_add_f32_dpp %s, %s, %s quad_perm:[%d,%d,%d,%d]%s' % (v(SC + n), v(acc + c), v(SC + n), c, c, c, c, DPP))
    def refill(j, depth=None):
        cp[0] = j + 1
        if (j + 1) % B == 0:
            while ip[0] < min(64, j + 1 + (depth or D)):
                issue_one()
    for n in range(8):
        if n % 4 == 0:
            qfrag(n >> 2)
        for i in range(4):
            j = 4 * n + i
            a.wait_vm('L%d' % j)
            mfma(SACC[n & 1], RB + 4 * (j % RN), BQ + 4 * i, None if i == 0 else 1)
            if n == 0 and i < P.kick:
                cp[0] = j + 1
                issue_one()
            refill(j, P.dmid if j == 31 else None)
        if n > 0:
            score(n - 1)
    score(7)
    stamp(3)
    ML = 16; vMC = 18; vHM = 24; vOW = 28; vSCL = 29; vRO = 31; QR = 72; LSR = 20; vRW, vRR, vOO = 25, 26, 27
    for b in range(2):
        a('v_max3_f32 %s, %s, %s, %s' % (v(vMC + b), v(SC + 4 * b), v(SC + 4 * b + 1), v(SC + 4 * b + 2)))
        a('v_max_f32 %s, %s, %s' % (v(vMC + b), v(vMC + b), v(SC + 4 * b + 3)))
    redquads64([vMC, vMC + 1], [T[0], T[1]], 'v_max_f32')
    for b in range(2):
        a('v_mul_f32 %s, %s, %s' % (v(vMC + b), s(sC), v(vMC + b)))
    for n in range(8):
        a('v_fma_f32 %s, %s, %s, -%s' % (v(SC + n), v(SC + n), s(sC), v(vMC + (n >> 2))))
    for n in range(8):
        a('v_exp_f32 %s, %s' % (v(SC + n), v(SC + n)))
    for b in range(2):
        L_ = ML + b
        a('v_add_f32 %s, %s, %s' % (v(L_), v(SC + 4 * b), v(SC + 4 * b + 1)))
        a('v_add_f32 %s, %s, %s' % (v(L_), v(L_), v(SC + 4 * b + 2)))
        a('v_add_f32 %s, %s, %s' % (v(L_), v(L_), v(SC + 4 * b + 3)))
    for n in range(8):
        a('v_cvt_pk_bf16_f32 %s, %s, %s' % (v(SC + n), v(SC + n), v(SC + n)))
    sOP = 88
    def tail_prep():
        redquads64([ML, ML + 1], [T[0], T[1]], 'v_add_f32')
        a('s_lshl_b32 %s, %s, 4' % (s(sT0), s(sSW)))
        a('v_mov_b32 %s, %s' % (v(T[0]), s(sT0)))
        a('ds_write_b128 %s, %s offset:%d' % (v(T[0]), v(ML, 4), LS))
        a('v_subrev_u32 v0, 256, v0')
        a('v_lshrrev_b32 %s, 5, v0' % v(T[1]))
        a('v_and_b32 %s, 15, %s' % (v(T[2]), v(vL)))
        a('v_lshlrev_b32 %s, 5, %s' % (v(T[2]), v(T[2])))
        a('v_and_b32 %s, 16, %s' % (v(T[3]), v(vL)))
        a('v_add_u32 %s, %s, %s' % (v(T[2]), v(T[2]), v(T[3])))
        a('v_lshl_add_u32 %s, %s, 9, %s' % (v(vOW), v(T[1]), v(T[2])))
        a('s_add_u32 %s, %s, %s' % (s(sOP), s(sHG), s(sS)))
        a('s_lshl_b32 %s, %s, 10' % (s(sOP), s(sOP)))
        a('s_add_u32 %s, %s, 0x%x' % (s(sOP), s(sOP), OX))
        a('v_mov_b32 %s, 0xfffff000' % v(vHM))
        a('v_lshrrev_b32 %s, 3, %s' % (v(vRO), v(vL)))
        a('v_lshl_add_u32 %s, %s, 3, %s' % (v(vRO), v(vRO), s(sSW)))
        a('v_mul_u32_u24 %s, 0x1200, %s' % (v(vRO), v(vRO)))
        a('s_and_b32 s89, %s, 3' % s(sH))
        a('s_lshl_b32 %s, %s, 2' % (s(sT0), s(sSW)))
        a('s_add_u32 s89, s89, %s' % s(sT0))
        a('s_lshl_b32 s89, s89, 3')
        a('s_add_u32 s89, s89, %s' % s(sS))
        a('s_lshl_b32 s89, s89, 10')
        a('s_and_b32 %s, s2, 7' % s(sT0))
        a('s_lshl_b32 %s, %s, 7' % (s(sT0), s(sT0)))
        a('s_add_u32 s89, s89, %s' % s(sT0))
        a('s_add_u32 s89, s89, 0x%x' % OX)
        a('v_and_b32 %s, 7, v0' % v(T[0]))
        a('v_lshl_add_u32 %s, %s, 4, %s' % (v(vRO), v(T[0]), v(vRO)))
        a('s_lshl_b32 s96, s2, 7')
        for k in range(1, 4):
            a('s_add_u32 s%d, s96, %d' % (96 + k, k * 64 * 4608))
        a('v_lshlrev_b32 %s, 4, %s' % (v(vRW), v(T[0])))
        a('s_lshl_b32 %s, %s, 7' % (s(sT0), s(sSW)))
        a('v_add_u32 %s, %s, %s' % (v(vRW), s(sT0), v(vRW)))
        a('v_and_b32 %s, 31, %s' % (v(vRR), v(vL)))
        a('v_lshlrev_b32 %s, 1, %s' % (v(vOO), v(vRR)))
        a('s_lshl_b32 %s, s2, 6' % s(sT0))
        a('v_add_u32 %s, %s, %s' % (v(vOO), s(sT0), v(vOO)))
        a('v_lshlrev_b32 %s, 2, %s' % (v(vRR), v(vRR)))
        a('v_lshrrev_b32 %s, 5, %s' % (v(T[0]), v(vL)))
        a('v_lshl_add_u32 %s, %s, 9, %s' % (v(vRR), v(T[0]), v(vRR)))
        a('v_add_u32 %s, %d, %s' % (v(vRR), RED, v(vRR)))
    def ls_check(r, t):
        a('v_min_u32 %s, %s, %s' % (v(t), v(r), v(r + 1)))
        a('v_cmp_eq_u32 vcc, 0, %s' % v(t))
    def scale_prep():
        a('v_and_b32 %s, 7, %s' % (v(T[1]), v(vL)))
        a('v_lshlrev_b32 %s, 4, %s' % (v(T[1]), v(T[1])))
        poll('ls', lambda: a('ds_read_b128 %s, %s offset:%d' % (v(LSR, 4), v(T[1]), LS)), lambda: ls_check(LSR, T[0]), lds=True, sleep=1)
        red8([LSR + 2, LSR + 3], 'v_max_f32')
        for b in range(2):
            a('v_sub_f32 %s, %s, %s' % (v(LSR + 2 + b), v(vMC + b), v(LSR + 2 + b)))
        a('v_exp_f32 %s, %s' % (v(LSR + 2), v(LSR + 2)))
        a('v_exp_f32 %s, %s' % (v(vSCL), v(LSR + 3)))
        for r in range(4):
            a('v_mul_f32 %s, %s, %s' % (v(OA[0] + r), v(OA[0] + r), v(LSR + 2)))
    for n in range(8, 16):
        for r in range(4):
            j = 4 * n + r
            A = AF[r & 1]
            for d in range(4):
                a('v_and_b32_dpp %s, %s, %s row_newbcast:%d%s' % (v(A + d), v(SC + n - 8), v(MASK + d), 4 * r, DPP))
            a.wait_vm('L%d' % j)
            mfma(OA[(n - 8) >> 2], A, RB + 4 * (j % RN), None if (n & 3) == 0 and r == 0 else 1)
            refill(j)
            if j == P.defer_at:
                lds_count(FD, T[0], T[1])
        if n == 8:
            tail_prep()
        if n == 13:
            scale_prep()
    stamp(4)
    a('s_mov_b32 exec_lo, 0')
    for r in range(4):
        a('v_mul_f32 %s, %s, %s' % (v(OA[0] + r), v(OA[1] + r), v(vSCL)))
    a('s_mov_b32 exec_lo, -1')
    a('ds_write_b128 %s, %s offset:%d' % (v(vOW), v(OA[0], 4), OBUF))
    a('s_waitcnt lgkmcnt(0)')
    a('s_barrier')
    a('s_cmp_lg_u32 %s, 0' % s(sSW)); a('s_cbranch_scc1 L_pubbed')
    for w in range(8):
        a('ds_read_b128 %s, %s offset:%d' % (v(QR + 4 * w, 4), v(vVo), OBUF + 1024 * w))
    for w in range(0, 8, 2):
        a('s_waitcnt lgkmcnt(%d)' % (6 - w))
        for r in (0, 2):
            a('v_pk_add_f32 %s, %s, %s' % (v(QR + 4 * w + r, 2), v(QR + 4 * w + r, 2), v(QR + 4 * w + 4 + r, 2)))
    for st in (2, 4):
        for w in range(0, 8, 2 * st):
            for r in (0, 2):
                a('v_pk_add_f32 %s, %s, %s' % (v(QR + 4 * w + r, 2), v(QR + 4 * w + r, 2), v(QR + 4 * (w + st) + r, 2)))
    encode(QR, QR, vHM)
    a('buffer_store_dwordx4 %s, %s, %s, %s offen sc1' % (v(QR, 4), v(vVo), s(rWS, 4), s(sOP)))
    newpath('L_pubbed')
    stamp(5)
    if P.xprobe:
        a('s_cmp_lg_u32 s2, %d' % P.xprobe); a('s_cbranch_scc1 L_xp')
        a('s_getreg_b32 s99, hwreg(HW_REG_XCC_ID)'); a('s_and_b32 s99, s99, 15'); a('s_add_u32 s99, s99, 1')
        a('v_mov_b32 v14, s99'); a('v_mov_b32 v12, 0')
        a('global_store_dword v12, v14, %s sc1' % s(pDBG, 2))
        a('s_waitcnt vmcnt(0)')
        a('s_lshl_b32 s99, s2, 7'); a('s_add_u32 s99, s99, %d' % (3 * 64 * 4608))
        a.label('L_xp')
    a('s_cmp_ge_u32 s2, 36'); a('s_cbranch_scc1 L_fin')
    R, t_ = 104, 13
    a('s_mov_b64 exec, 1')
    poll('w', lambda: a('buffer_load_dwordx4 %s, %s, %s, s89 offen sc1' % (v(R, 4), v(vVo), s(rWS, 4))), lambda: decode([R], t_), sleep=P.w_sleep)
    a('s_mov_b64 exec, -1')
    if P.y_delay:
        a('s_sleep %d' % P.y_delay)
    def y_load():
        for k in range(4):
            a('buffer_load_dwordx4 %s, %s, %s, s%d offen sc1' % (v(R + 4 * k, 4), v(vRO), s(rWS, 4), 96 + k))
    poll('y', y_load, lambda: decode([R + 4 * k for k in range(4)], t_), masked=True)
    for (x, y) in ((0, 4), (8, 12), (0, 8)):
        for r in (0, 2):
            a('v_pk_add_f32 %s, %s, %s' % (v(R + x + r, 2), v(R + x + r, 2), v(R + y + r, 2)))
    for r in range(4):
        a('v_add_f32_dpp %s, %s, %s row_ror:8%s' % (v(R + r), v(R + r), v(R + r), DPP))
    a('v_permlane16_swap_b32 %s, %s' % (v(R), v(R + 1)))
    a('v_permlane16_swap_b32 %s, %s' % (v(R + 2), v(R + 3)))
    a('v_add_f32 %s, %s, %s' % (v(R), v(R), v(R + 1)))
    a('v_add_f32 %s, %s, %s' % (v(R + 2), v(R + 2), v(R + 3)))
    a('v_permlane32_swap_b32 %s, %s' % (v(R), v(R + 2)))
    a('v_add_f32 %s, %s, %s' % (v(R), v(R), v(R + 2)))
    a('v_lshrrev_b32 %s, 4, %s' % (v(t_), v(vL)))
    a('v_lshl_add_u32 %s, %s, 2, %s' % (v(t_), v(t_), v(vRW)))
    a('ds_write_b32 %s, %s offset:%d' % (v(t_), v(R), RED))
    a('s_waitcnt lgkmcnt(0)')
    a('s_barrier')
    a('s_cmp_lg_u32 %s, 0' % s(sSW)); a('s_cbranch_scc1 L_fin')
    a('ds_read2_b32 %s, %s offset0:0 offset1:32' % (v(R, 2), v(vRR)))
    a('ds_read2_b32 %s, %s offset0:64 offset1:96' % (v(R + 2, 2), v(vRR)))
    a('s_waitcnt lgkmcnt(0)')
    a('v_add_f32 %s, %s, %s' % (v(R), v(R), v(R + 1)))
    a('v_add_f32 %s, %s, %s' % (v(R + 2), v(R + 2), v(R + 3)))
    a('v_add_f32 %s, %s, %s' % (v(R), v(R), v(R + 2)))
    a('v_mov_b32 %s, %s' % (v(R + 1), v(R)))
    a('v_permlane32_swap_b32 %s, %s' % (v(R), v(R + 1)))
    a('v_add_f32 %s, %s, %s' % (v(R), v(R), v(R + 1)))
    a('v_cvt_pk_bf16_f32 %s, %s, %s' % (v(R), v(R), v(R)))
    a('s_mov_b32 exec_hi, 0')
    a('global_store_short %s, %s, %s' % (v(vOO), v(R), s(pOUT, 2)))
    a('s_cmp_lg_u32 s2, 0'); a('s_cbranch_scc1 L_fin')
    a('s_mov_b64 exec, 1')
    a('v_mov_b32 v14, %s' % s(sTG0)); a('v_mov_b32 v15, %s' % s(sTG1))
    a('v_mov_b32 v12, 0x%x' % EP)
    a('global_store_dwordx2 v12, v[14:15], %s sc1' % s(pWS, 2))
    if P.xprobe:
        a('s_sleep 64')
        a('v_mov_b32 v12, 0')
        a('global_load_dword v14, v12, %s sc1' % s(pDBG, 2))
        a('s_waitcnt vmcnt(0)')
        a('v_readfirstlane_b32 s98, v14')
        a('s_getreg_b32 s99, hwreg(HW_REG_XCC_ID)'); a('s_and_b32 s99, s99, 15'); a('s_add_u32 s99, s99, 1')
        a('s_cmp_eq_u32 s98, s99'); a('s_cbranch_scc1 L_fin')
        a('s_memrealtime s[26:27]'); a('s_waitcnt lgkmcnt(0)'); a('s_mov_b32 s97, s26')
        a.label('L_xspin')
        a('s_memrealtime s[26:27]'); a('s_waitcnt lgkmcnt(0)')
        a('s_sub_u32 s96, s26, s97'); a('s_cmp_lt_u32 s96, 3000'); a('s_cbranch_scc1 L_xspin')
    a.label('L_fin'); a.hist = []
    stamp(6)
    stamp_flush()
    a('s_endpgm')

    newpath('L_helper')
    vG, vN, vBB = 2, 3, 16
    T = list(range(17, 29))
    tO = T[11]
    vHM = 29
    XS, GW = 30, 40
    XQ = 50
    QA = 72; BIG = 76
    sCB, sRB, sLID, sC0 = 60, 61, 62, 63
    def oob_unless(dst, src, cmp):
        a(cmp)
        a('v_mov_b32 %s, 0x%x' % (v(tO), OOB))
        a('v_cndmask_b32 %s, %s, %s, vcc' % (v(dst), v(tO), v(src)))
    a('v_lshrrev_b32 %s, 4, %s' % (v(vG), v(vL)))
    a('v_and_b32 %s, 15, %s' % (v(vN), v(vL)))
    a('v_bfe_u32 %s, %s, 3, 1' % (v(vBB), v(vL)))
    a('s_add_u32 %s, %s, %s' % (s(sLID), s(sHG), s(sS)))
    a('s_mul_i32 %s, %s, 9363' % (s(sCB), s(sLID)))
    a('s_lshr_b32 %s, %s, 16' % (s(sCB), s(sCB)))
    a('s_mul_i32 %s, %s, 7' % (s(sT0), s(sCB)))
    a('s_sub_u32 %s, %s, %s' % (s(sRB), s(sLID), s(sT0)))
    vXs, vGw = T[5], T[6]
    a('v_and_b32 %s, 31, %s' % (v(vGw), v(vL)))
    a('v_mul_u32_u24 %s, 36, %s' % (v(vGw), v(vGw)))
    a('v_lshrrev_b32 %s, 5, %s' % (v(vXs), v(vL)))
    a('v_mul_u32_u24 %s, 0x480, %s' % (v(vXs), v(vXs)))
    a('v_add_u32 %s, %s, %s' % (v(vXs), v(vXs), v(vGw)))
    def stat_loads():
        for (dst, off, base) in ((XS, vXs, pX), (GW, vGw, pGW)):
            a('global_load_dwordx4 %s, %s, %s' % (v(dst, 4), v(off), s(base, 2)), tag='st')
            a('global_load_dwordx4 %s, %s, %s offset:16' % (v(dst + 4, 4), v(off), s(base, 2)), tag='st')
            a('global_load_dword %s, %s, %s offset:32' % (v(dst + 8), v(off), s(base, 2)), tag='st')
    def common_setup():
        epoch_load()
        a('s_barrier')
        srd(rWS, pWS, WSB)
        masks(T[0], T[1])
        a('v_mov_b32 %s, 0xfffff000' % v(vHM))
        a('s_mov_b32 %s, 0xffff0000' % s(sHI))
        a('s_mov_b32 %s, 0xff00ff00' % s(sBB)); a('s_mov_b32 %s, 0xff00ff00' % s(sBB + 1))
        a('v_lshrrev_b32 %s, 5, %s' % (v(T[0]), v(vL)))
        a('v_lshlrev_b32 %s, 9, %s' % (v(T[0]), v(T[0])))
        a('v_lshl_add_u32 %s, %s, 5, %s' % (v(T[0]), v(vN), v(T[0])))
        a('v_and_b32 %s, 16, %s' % (v(T[1]), v(vL)))
        a('v_add_u32 %s, %s, %s' % (v(T[10]), v(T[1]), v(T[0])))
        a('s_waitcnt lgkmcnt(0)')
        epoch_tags()
    S1, GD, t0, t1, t2, t3 = T[4], T[5], T[6], T[7], T[0], T[1]
    vOMG = T[9]
    def stats(full):
        a('v_mov_b32 %s, 0' % v(GD))
        if full:
            a('v_mov_b32 %s, 0' % v(S1))
        for k in range(9):
            a('v_lshlrev_b32 %s, 16, %s' % (v(t0), v(XS + k)))
            a('v_and_b32 %s, %s, %s' % (v(t1), s(sHI), v(XS + k)))
            a('v_lshlrev_b32 %s, 16, %s' % (v(t2), v(GW + k)))
            a('v_and_b32 %s, %s, %s' % (v(t3), s(sHI), v(GW + k)))
            a('v_fmac_f32 %s, %s, %s' % (v(GD), v(t0), v(t2)))
            if full:
                a('v_add_f32 %s, %s, %s' % (v(S1), v(S1), v(t0)))
            a('v_fmac_f32 %s, %s, %s' % (v(GD), v(t1), v(t3)))
            if full:
                a('v_add_f32 %s, %s, %s' % (v(S1), v(S1), v(t1)))
        red32([GD, S1] if full else [GD], [t0, t1], 'v_add_f32')
        a('v_mul_f32 %s, 0x%x, %s' % (v(GD), f2u(-math.log2(math.e)), v(GD)))
        a('v_exp_f32 %s, %s' % (v(GD), v(GD)))
        a('v_add_f32 %s, 1.0, %s' % (v(GD), v(GD)))
        a('v_rcp_f32 %s, %s' % (v(GD), v(GD)))
        a('v_sub_f32 %s, 1.0, %s' % (v(vOMG), v(GD)))
        a('v_readlane_b32 %s, %s, 0' % (s(sG0), v(GD))); a('v_readlane_b32 %s, %s, 32' % (s(sG1), v(GD)))
    a('s_cmp_eq_u32 %s, 1' % s(sW)); a('s_cbranch_scc1 L_h1')
    a('s_cmp_lg_u32 %s, 0' % s(sW)); a('s_cbranch_scc1 L_h23')
    a('v_mul_u32_u24 %s, 18, %s' % (v(T[0]), v(vG)))
    a('v_lshlrev_b32 %s, 13, %s' % (v(T[1]), v(T[0])))
    a('v_lshl_add_u32 %s, %s, 4, %s' % (v(T[1]), v(vN), v(T[1])))
    if P.no_wq:
        a('v_mov_b32 %s, 0x%x' % (v(T[1]), OOB))
    a('v_mul_u32_u24 %s, 0x480, %s' % (v(T[2]), v(vBB)))
    a('v_lshl_add_u32 %s, %s, 1, %s' % (v(T[2]), v(T[0]), v(T[2])))
    a('s_mul_i32 %s, %s, 144' % (s(sT0), s(sS)))
    a('v_add_u32 %s, %s, %s' % (v(T[2]), s(sT0), v(T[2])))
    a('s_mul_i32 %s, %s, %d' % (s(sT0), s(sS), 72 * 8192))
    a('s_lshl_b32 %s, %s, 8' % (s(sT1), s(sH)))
    a('s_add_u32 %s, %s, %s' % (s(sT0), s(sT0), s(sT1)))
    a('s_waitcnt lgkmcnt(0)')
    stamp(0)
    srd(rWA, pWQ, 576 * 8192)
    a('global_load_dwordx4 %s, %s, %s' % (v(XQ, 4), v(T[2]), s(pX, 2)), tag='xq')
    a('global_load_dwordx4 %s, %s, %s offset:16' % (v(XQ + 4, 4), v(T[2]), s(pX, 2)), tag='xq')
    a('global_load_dword %s, %s, %s offset:32' % (v(XQ + 8), v(T[2]), s(pX, 2)), tag='xq')
    for i in range(18):
        a('buffer_load_dwordx4 %s, %s, %s, %s offen%s' % (v(BIG + 4 * i, 4), v(T[1]), s(rWA, 4), s(sT0), wnt), tag='wq%d' % i)
        if i < 17:
            a('s_add_u32 %s, %s, 0x2000' % (s(sT0), s(sT0)))
    stat_loads()
    common_setup()
    a('s_mov_b32 s88, 0x01000100'); a('s_mov_b32 s89, 0x03020302')
    a('s_lshl_b32 %s, %s, 10' % (s(sT0), s(sLID)))
    a('s_add_u32 %s, %s, 0x%x' % (s(sT0), s(sT0), QX))
    a.wait_vm('xq')
    for i in range(18):
        A = AF[i & 1]
        a('v_perm_b32 %s, %s, %s, %s' % (v(T[0]), v(XQ + i // 2), v(XQ + i // 2), 's89' if i & 1 else 's88'))
        delta(A, T[0])
        a.wait_vm('wq%d' % i)
        mfma(QA, A, BIG + 4 * i, None if i == 0 else 1)
    encode(QA, QA, vHM)
    a('buffer_store_dwordx4 %s, %s, %s, %s offen sc1' % (v(QA, 4), v(T[10]), s(rWS, 4), s(sT0)))
    stamp(8)
    a.wait_vm0()
    stats(False)
    lds_wait('fp', FP, P.prog_n, T[0], T[1], 2)
    GQ = BIG
    a('v_lshlrev_b32 %s, 4, %s' % (v(T[10]), v(vL)))
    a('s_lshl_b32 s88, %s, 10' % s(sHG))
    a('s_add_u32 s88, s88, 0x%x' % QX)
    a('s_add_u32 s89, s88, 4096')
    def q_load():
        for k in range(8):
            a('buffer_load_dwordx4 %s, %s, %s, %s offen offset:%d sc1' % (v(GQ + 4 * k, 4), v(T[10]), s(rWS, 4), 's88' if k < 4 else 's89', 1024 * (k % 4)))
    poll('q', q_load, lambda: decode([GQ + 4 * k for k in range(8)], T[0]), sleep=P.q_sleep)
    for st in (1, 2, 4):
        for w in range(0, 8, 2 * st):
            for r in (0, 2):
                a('v_pk_add_f32 %s, %s, %s' % (v(GQ + 4 * w + r, 2), v(GQ + 4 * w + r, 2), v(GQ + 4 * (w + st) + r, 2)))
    a('v_cvt_pk_bf16_f32 %s, %s, %s' % (v(GQ), v(GQ), v(GQ + 1)))
    a('v_cvt_pk_bf16_f32 %s, %s, %s' % (v(GQ + 1), v(GQ + 2), v(GQ + 3)))
    a('v_lshlrev_b32 %s, 3, %s' % (v(T[10]), v(vL)))
    a('ds_write_b64 %s, %s offset:%d' % (v(T[10]), v(GQ, 2), QB))
    a('v_mov_b32 %s, 0' % v(T[0])); a('v_mov_b32 %s, 1' % v(T[1]))
    a('s_waitcnt lgkmcnt(0)')
    a('ds_write_b32 %s, %s offset:%d' % (v(T[0]), v(T[1]), FQ))
    stamp(9)
    a('s_branch L_mid')
    newpath('L_h1')
    a('v_mul_u32_u24 %s, 21, %s' % (v(T[0]), v(vG)))
    a('v_mul_u32_u24 %s, 0x2400, %s' % (v(T[1]), v(T[0])))
    a('v_lshl_add_u32 %s, %s, 4, %s' % (v(T[1]), v(vN), v(T[1])))
    a('s_cmp_lt_u32 %s, %d' % (s(sCB), 0 if P.no_w1 else 36))
    a('s_cselect_b32 %s, 0, 0x%x' % (s(sT1), OOB))
    a('v_or_b32 %s, %s, %s' % (v(T[1]), s(sT1), v(T[1])))
    a('s_mul_i32 %s, %s, 84' % (s(sT2), s(sRB)))
    a('v_add_u32 %s, %s, %s' % (v(T[8]), s(sT2), v(T[0])))
    a('v_mul_u32_u24 %s, %d, %s' % (v(T[2]), YP, v(vBB)))
    a('v_lshl_add_u32 %s, %s, 2, %s' % (v(T[8]), v(T[8]), v(T[2])))
    a('s_mul_i32 %s, %s, 9216' % (s(sT0), s(sT2)))
    a('s_lshl_b32 %s, %s, 8' % (s(sT1), s(sCB)))
    a('s_add_u32 %s, %s, %s' % (s(sT0), s(sT0), s(sT1)))
    a('s_waitcnt lgkmcnt(0)')
    stamp(0)
    stat_loads()
    srd(rWA, pW1, 576 * 9216)
    for i in range(21):
        a('buffer_load_dwordx4 %s, %s, %s, %s offen%s' % (v(BIG + 4 * i, 4), v(T[1]), s(rWA, 4), s(sT0), wnt), tag='w1_%d' % i)
        if i < 20:
            a('s_add_u32 %s, %s, 0x2400' % (s(sT0), s(sT0)))
    vYW = T[3]
    a('v_lshrrev_b32 %s, 5, %s' % (v(vYW), v(vL)))
    a('v_mul_u32_u24 %s, %d, %s' % (v(vYW), YP, v(vYW)))
    a('v_lshl_add_u32 %s, %s, 1, %s' % (v(vYW), v(vGw), v(vYW)))
    common_setup()
    a.wait_vm('st')
    stats(True)
    a('v_mul_f32 %s, 0x%x, %s' % (v(S1), f2u(1.0 / 576), v(S1)))
    S2 = GD
    a('v_mov_b32 %s, 0' % v(S2))
    for k in range(9):
        a('v_lshlrev_b32 %s, 16, %s' % (v(XQ + 2 * k), v(XS + k)))
        a('v_and_b32 %s, %s, %s' % (v(XQ + 2 * k + 1), s(sHI), v(XS + k)))
        a('v_sub_f32 %s, %s, %s' % (v(XQ + 2 * k), v(XQ + 2 * k), v(S1)))
        a('v_sub_f32 %s, %s, %s' % (v(XQ + 2 * k + 1), v(XQ + 2 * k + 1), v(S1)))
        a('v_fmac_f32 %s, %s, %s' % (v(S2), v(XQ + 2 * k), v(XQ + 2 * k)))
        a('v_fmac_f32 %s, %s, %s' % (v(S2), v(XQ + 2 * k + 1), v(XQ + 2 * k + 1)))
    red32([S2], [t0], 'v_add_f32')
    a('v_mov_b32 %s, 0x%x' % (v(t0), f2u(1e-5)))
    a('v_fmac_f32 %s, 0x%x, %s' % (v(t0), f2u(1.0 / 576), v(S2)))
    a('v_rsq_f32 %s, %s' % (v(S2), v(t0)))
    for k in range(18):
        a('v_mul_f32 %s, %s, %s' % (v(XQ + k), v(XQ + k), v(S2)))
    for k in range(18):
        a('v_cvt_pk_bf16_f32 %s, %s, %s' % (v(XQ + k), v(XQ + k), v(XQ + k)))
    for k in range(9):
        a('ds_write_b64 %s, %s offset:%d' % (v(vYW), v(XQ + 2 * k, 2), YT + 8 * k))
    a('s_waitcnt lgkmcnt(0)')
    a('v_add_u32 %s, %d, %s' % (v(T[8]), YT, v(T[8])))
    YR = 30
    for k in range(11):
        a('ds_read2_b32 %s, %s offset0:%d offset1:%d' % (v(YR + 2 * k, 2), v(T[8]), 2 * k, 2 * k + 1))
    a('s_lshl_b32 %s, %s, 10' % (s(sT0), s(sLID)))
    a('s_add_u32 %s, %s, 0x%x' % (s(sT0), s(sT0), HX))
    a('s_waitcnt lgkmcnt(0)')
    for i in range(21):
        A = AF[i & 1]
        delta(A, YR + i)
        a.wait_vm('w1_%d' % i)
        mfma(QA, A, BIG + 4 * i, None if i == 0 else 1)
    encode(QA, QA, vHM)
    a('buffer_store_dwordx4 %s, %s, %s, %s offen sc1' % (v(QA, 4), v(T[10]), s(rWS, 4), s(sT0)))
    stamp(10)
    a('s_branch L_mid')
    newpath('L_h23')
    a('v_mov_b32 %s, 0' % v(T[0]))
    a('v_lshlrev_b32 %s, 2, %s' % (v(T[1]), v(vL)))
    a('ds_write_b32 %s, %s offset:%d' % (v(T[1]), v(T[0]), LS))
    a('v_lshlrev_b32 %s, 2, %s' % (v(T[1]), v(vN)))
    a('ds_write_b32 %s, %s offset:%d' % (v(T[1]), v(T[0]), YT + 576 * 4))
    a('ds_write_b32 %s, %s offset:%d' % (v(T[1]), v(T[0]), YT + YP + 576 * 4))
    a('s_waitcnt lgkmcnt(0)')
    stamp(0)
    stat_loads()
    common_setup()
    a.wait_vm0()
    stats(False)
    newpath('L_mid')
    a('v_and_b32 %s, 7, %s' % (v(T[1]), v(vL)))
    a('v_lshlrev_b32 %s, 4, %s' % (v(T[1]), v(T[1])))
    XG = 144
    a('s_lshl_b32 %s, %s, 5' % (s(sT2), s(sHG)))
    a('s_add_u32 %s, %s, 0x%x' % (s(sT2), s(sT2), MLX))
    poll('ls2', lambda: a('ds_read_b128 %s, %s offset:%d' % (v(XG, 4), v(T[1]), LS)), lambda: ls_check(XG, T[0]), lds=True, sleep=8)
    a('s_cmp_lg_u32 %s, 1' % s(sW)); a('s_cbranch_scc1 L_mlpub')
    a('v_mov_b32 %s, %s' % (v(XG + 4), v(XG + 2))); a('v_mov_b32 %s, %s' % (v(XG + 5), v(XG + 3)))
    red8([XG + 4, XG + 5], 'v_max_f32')
    for b in range(2):
        a('v_sub_f32 %s, %s, %s' % (v(XG + 2 + b), v(XG + 2 + b), v(XG + 4 + b)))
    for b in range(2):
        a('v_exp_f32 %s, %s' % (v(XG + 2 + b), v(XG + 2 + b)))
    for b in range(2):
        a('v_mul_f32 %s, %s, %s' % (v(XG + b), v(XG + b), v(XG + 2 + b)))
    red8([XG, XG + 1], 'v_add_f32')
    a('v_cmp_eq_u32 vcc, 1, %s' % v(vL))
    a('v_cndmask_b32 %s, %s, %s, vcc' % (v(XG + 4), v(XG + 4), v(XG + 5)))
    a('v_cndmask_b32 %s, %s, %s, vcc' % (v(XG + 6), v(XG), v(XG + 1)))
    a('v_mov_b32 %s, %s' % (v(XG + 5), s(sTG0))); a('v_mov_b32 %s, %s' % (v(XG + 7), s(sTG1)))
    oob_unless(T[1], T[1], 'v_cmp_gt_u32 vcc, 2, %s' % v(vL))
    a('s_lshl_b32 %s, %s, 5' % (s(sT0), s(sS)))
    a('s_add_u32 %s, %s, %s' % (s(sT0), s(sT0), s(sT2)))
    a('buffer_store_dwordx4 %s, %s, %s, %s offen sc1' % (v(XG + 4, 4), v(T[1]), s(rWS, 4), s(sT0)))
    newpath('L_mlpub')
    a('s_lshl_b32 %s, %s, 4' % (s(sC0), s(sRB)))
    a('s_min_u32 %s, %s, 4' % (s(sT0), s(sRB)))
    a('s_lshl_b32 %s, %s, 2' % (s(sT0), s(sT0)))
    a('s_add_u32 %s, %s, %s' % (s(sC0), s(sC0), s(sT0)))
    vC8 = T[8]
    a('v_and_b32 %s, 1, %s' % (v(T[0]), v(vG)))
    a('v_lshlrev_b32 %s, 3, %s' % (v(T[0]), v(T[0])))
    a('v_lshl_add_u32 %s, %s, 4, %s' % (v(vC8), v(vN), v(T[0])))
    srd(rB2, pB2, 1152)
    vB2 = 30
    a('s_lshl_b32 %s, %s, 8' % (s(sT1), s(sW)))
    a('s_cmp_eq_u32 s2, 0')
    a('s_cselect_b32 %s, %s, 0x%x' % (s(sT1), s(sT1), OOB))
    a('v_add_u32 %s, %s, %s' % (v(T[1]), s(sT1), v(vC8)))
    a('buffer_load_dwordx2 %s, %s, %s, 0 offen' % (v(vB2, 2), v(T[1]), s(rB2, 4)))
    a('buffer_load_dwordx2 %s, %s, %s, 0 offen offset:256' % (v(vB2 + 2, 2), v(T[1]), s(rB2, 4)))
    HF = 48
    for k in range(20):
        a('v_mov_b32 %s, 0' % v(HF + k))
    a('s_cmp_ge_u32 %s, 36' % s(sCB)); a('s_cbranch_scc1 L_noh')
    srd(rB1, pB1, 9216)
    B1 = 34
    a('s_lshl_b32 %s, %s, 7' % (s(sT0), s(sCB)))
    a('s_add_u32 %s, %s, %s' % (s(sT0), s(sT0), s(sC0)))
    a('s_lshl_b32 %s, %s, 1' % (s(sT0), s(sT0)))
    a('v_lshlrev_b32 %s, 3, %s' % (v(T[0]), v(vG)))
    a('buffer_load_dwordx2 %s, %s, %s, %s offen' % (v(B1, 2), v(T[0]), s(rB1, 4), s(sT0)))
    a('v_lshlrev_b32 %s, 1, %s' % (v(T[0]), v(vG)))
    a('buffer_load_ushort %s, %s, %s, %s offen offset:32' % (v(B1 + 2), v(T[0]), s(rB1, 4), s(sT0)))
    a('v_and_b32 %s, 7, %s' % (v(T[2]), v(vL)))
    a('v_min_u32 %s, 6, %s' % (v(T[2]), v(T[2])))
    a('v_lshlrev_b32 %s, 10, %s' % (v(T[2]), v(T[2])))
    a('v_lshl_add_u32 %s, %s, 9, %s' % (v(T[2]), v(vBB), v(T[2])))
    a('v_lshl_add_u32 %s, %s, 4, %s' % (v(T[3]), v(vG), v(T[2])))
    a('s_mul_i32 %s, %s, %d' % (s(sT1), s(sCB), 7 * 1024))
    a('s_lshl_b32 %s, %s, 2' % (s(sT2), s(sC0)))
    a('s_add_u32 %s, %s, %s' % (s(sT1), s(sT1), s(sT2)))
    a('s_add_u32 %s, %s, 0x%x' % (s(sT1), s(sT1), HX))
    a('s_cmp_lt_u32 %s, 4' % s(sRB))
    a('s_cselect_b32 %s, 64, 0' % s(sT2))
    a('s_add_u32 %s, %s, %s' % (s(sT2), s(sT2), s(sT1)))
    HG = 72
    def h_load():
        a('buffer_load_dwordx4 %s, %s, %s, %s offen sc1' % (v(HG, 4), v(T[3]), s(rWS, 4), s(sT1)))
        a('buffer_load_dwordx4 %s, %s, %s, %s offen sc1' % (v(HG + 4, 4), v(T[2]), s(rWS, 4), s(sT2)))
    poll('h', h_load, lambda: decode([HG, HG + 4], T[0]), sleep=P.h_sleep)
    for k in range(1, 4):
        a('v_cmp_eq_u32 vcc, %d, %s' % (k, v(vG)))
        a('v_cndmask_b32 %s, %s, %s, vcc' % (v(HG + 4), v(HG + 4), v(HG + 4 + k)))
    smask(0x7f7f)
    HV = [HG + k for k in range(5)]
    for x in HV:
        a('v_cndmask_b32 %s, 0, %s, %s' % (v(x), v(x), s(sM, 2)))
    red8(HV, 'v_add_f32')
    Z = [80 + k for k in range(5)]
    for k in range(5):
        if k == 4:
            a('v_lshlrev_b32 %s, 16, %s' % (v(Z[k]), v(B1 + 2)))
        elif k & 1:
            a('v_and_b32 %s, %s, %s' % (v(Z[k]), s(sHI), v(B1 + k // 2)))
        else:
            a('v_lshlrev_b32 %s, 16, %s' % (v(Z[k]), v(B1 + k // 2)))
        a('v_add_f32 %s, %s, %s' % (v(HV[k]), v(HV[k]), v(Z[k])))
    a('v_mov_b32 %s, %s' % (v(T[0]), s(sG0))); a('v_mov_b32 %s, %s' % (v(T[1]), s(sG1)))
    a('v_cndmask_b32 %s, %s, %s, %s' % (v(T[0]), v(T[0]), v(T[1]), s(sBB, 2)))
    a('v_sub_f32 %s, 1.0, %s' % (v(T[0]), v(T[0])))
    kz = -2.0 * math.sqrt(2.0 / math.pi) * math.log2(math.e)
    steps = [
        lambda x, z: a('v_mul_f32 %s, %s, %s' % (v(z), v(x), v(x))),
        lambda x, z: a('v_mul_f32 %s, 0x%x, %s' % (v(z), f2u(0.044715), v(z))),
        lambda x, z: a('v_add_f32 %s, 1.0, %s' % (v(z), v(z))),
        lambda x, z: a('v_mul_f32 %s, %s, %s' % (v(z), v(z), v(x))),
        lambda x, z: a('v_mul_f32 %s, 0x%x, %s' % (v(z), f2u(kz), v(z))),
        lambda x, z: a('v_exp_f32 %s, %s' % (v(z), v(z))),
        lambda x, z: a('v_add_f32 %s, 1.0, %s' % (v(z), v(z))),
        lambda x, z: a('v_rcp_f32 %s, %s' % (v(z), v(z))),
        lambda x, z: a('v_mul_f32 %s, %s, %s' % (v(x), v(x), v(T[0]))),
        lambda x, z: a('v_mul_f32 %s, %s, %s' % (v(x), v(x), v(z))),
        lambda x, z: a('v_cvt_pk_bf16_f32 %s, %s, %s' % (v(x), v(x), v(x))),
    ]
    for st in steps:
        for k in range(5):
            st(HV[k], Z[k])
    for k in range(4):
        delta(HF + 4 * k, HV[k])
    a('s_cmp_ge_u32 %s, 4' % s(sRB)); a('s_cbranch_scc1 L_noh')
    delta(HF + 16, HV[4])
    newpath('L_noh')
    a.wait_vm0()
    PA = [36, 40]
    for k in range(2):
        for r in range(4):
            if r & 1:
                a('v_and_b32 %s, %s, %s' % (v(PA[k] + r), s(sHI), v(vB2 + 2 * k + r // 2)))
            else:
                a('v_lshlrev_b32 %s, 16, %s' % (v(PA[k] + r), v(vB2 + 2 * k + r // 2)))
            a('v_mul_f32 %s, %s, %s' % (v(PA[k] + r), v(PA[k] + r), v(vOMG)))
    srd(rWO, pWO, 4096 * 1152)
    srd(rW2, pW2, 4608 * 1152)
    vW2o, vW2o2, vWoo, vW2h, vW2h2, vWoh, vYS, vYH, vXA, vXM, vWT = 30, 31, 32, 33, 34, 35, 44, 45, 46, 47, 68
    sW2, sW2b, sWO, sYS, sOG = 88, 89, 100, 101, 15
    a('v_mul_u32_u24 %s, 0x1200, %s' % (v(vWoo), v(vG)))
    a('v_lshl_add_u32 %s, %s, 4, %s' % (v(vWoo), v(vN), v(vWoo)))
    if P.no_def:
        a('v_mov_b32 %s, 0x%x' % (v(vWoo), OOB))
    a('s_cmp_lt_u32 %s, 36' % s(sCB))
    a('s_cselect_b32 %s, 0, 0x%x' % (s(sT0), OOB))
    a('v_or_b32 %s, %s, %s' % (v(vW2o), s(sT0), v(vWoo)))
    a('s_cmp_lt_u32 %s, 4' % s(sRB))
    a('s_cselect_b32 %s, %s, 0x%x' % (s(sT0), s(sT0), OOB))
    a('v_mul_u32_u24 %s, 0x480, %s' % (v(vW2o2), v(vG)))
    a('v_lshl_add_u32 %s, %s, 4, %s' % (v(vW2o2), v(vN), v(vW2o2)))
    a('v_or_b32 %s, %s, %s' % (v(vW2o2), s(sT0), v(vW2o2)))
    a('v_lshrrev_b32 %s, 5, %s' % (v(T[1]), v(vL)))
    a('v_mul_u32_u24 %s, 0x900, %s' % (v(T[1]), v(T[1])))
    a('v_lshl_add_u32 %s, %s, 1, %s' % (v(vYS), v(vC8), v(T[1])))
    a('v_cmp_gt_u32 vcc, 8, %s' % v(vN))
    a('v_mov_b32 %s, 0x%x' % (v(tO), OOB))
    for d_, s_ in ((vW2h, vW2o), (vW2h2, vW2o2), (vWoh, vWoo), (vYH, vYS)):
        a('v_cndmask_b32 %s, %s, %s, vcc' % (v(d_), v(tO), v(s_)))
    a('s_lshl_b32 %s, %s, 8' % (s(sT1), s(sW)))
    a('s_min_u32 %s, %s, 35' % (s(sW2), s(sCB)))
    a('s_lshl_b32 %s, %s, 7' % (s(sW2), s(sW2)))
    a('s_add_u32 %s, %s, %s' % (s(sW2), s(sW2), s(sC0)))
    a('s_mul_i32 %s, %s, 0x480' % (s(sW2), s(sW2)))
    a('s_add_u32 %s, %s, %s' % (s(sW2), s(sW2), s(sT1)))
    a('s_cmp_lt_u32 %s, 4' % s(sRB))
    a('s_cselect_b32 %s, %d, 0' % (s(sW2b), 16 * 1152))
    a('s_add_u32 %s, %s, %s' % (s(sW2b), s(sW2b), s(sW2)))
    a('s_mul_i32 %s, %s, %d' % (s(sWO), s(sLID), 16 * 1152))
    a('s_add_u32 %s, %s, %s' % (s(sWO), s(sWO), s(sT1)))
    a('s_mul_i32 %s, s2, 4608' % s(sYS))
    a('s_lshl_b32 %s, %s, 9' % (s(sT1), s(sW)))
    a('s_add_u32 %s, %s, %s' % (s(sYS), s(sYS), s(sT1)))
    a('s_lshl_b32 %s, %s, 10' % (s(sOG), s(sHG)))
    a('s_add_u32 %s, %s, 0x%x' % (s(sOG), s(sOG), OX))
    a('v_and_b32 %s, 7, %s' % (v(T[1]), v(vL)))
    a('v_lshlrev_b32 %s, 5, %s' % (v(vXM), v(T[1])))
    a('v_lshl_add_u32 %s, %s, 4, %s' % (v(vXM), v(vBB), v(vXM)))
    a('v_lshlrev_b32 %s, 10, %s' % (v(vXA), v(T[1])))
    a('v_lshl_add_u32 %s, %s, 9, %s' % (v(vXA), v(vBB), v(vXA)))
    a('v_lshl_add_u32 %s, %s, 4, %s' % (v(vXA), v(vG), v(vXA)))
    a('s_lshl_b32 %s, %s, 6' % (s(sT1), s(sS)))
    a('v_add_u32 %s, %s, %s' % (v(vXA), s(sT1), v(vXA)))
    stamp(11)
    a('s_lshl_b32 s7, %s, 5' % s(sHG))
    a('s_add_u32 s7, s7, 0x%x' % MLX)
    def ml_load():
        a('buffer_load_dwordx4 %s, %s, %s, %s offen sc1' % (v(XG, 4), v(vXM), s(rWS, 4), 's7'))
    def ml_check():
        a('v_xor_b32 %s, %s, %s' % (v(T[2]), s(sTG0), v(XG + 1)))
        a('v_xor_b32 %s, %s, %s' % (v(T[3]), s(sTG1), v(XG + 3)))
        a('v_or_b32 %s, %s, %s' % (v(T[2]), v(T[2]), v(T[3])))
        a('v_cmp_ne_u32 vcc, 0, %s' % v(T[2]))
    lds_wait('fd', FD, P.defer_n, T[0], T[4], 2)
    stamp(7)
    ml_load()
    WD = 72
    WH = 108
    def wloads(dst, o2, o2b, oo, extra):
        for i in range(4):
            a('buffer_load_dwordx4 %s, %s, %s, %s offen offset:%d%s' % (v(dst + 4 * i, 4), v(o2), s(rW2, 4), s(sW2), 1152 * i + extra, wnt))
        a('buffer_load_dwordx4 %s, %s, %s, %s offen offset:%d%s' % (v(dst + 16, 4), v(o2b), s(rW2, 4), s(sW2b), extra, wnt))
        for i in range(4):
            a('buffer_load_dwordx4 %s, %s, %s, %s offen offset:%d%s' % (v(dst + 20 + 4 * i, 4), v(oo), s(rWO, 4), s(sWO), 1152 * i + extra, wnt))
    wloads(WD, vW2o, vW2o2, vWoo, 0)
    a('s_cmp_lg_u32 %s, 3' % s(sW)); a('s_cbranch_scc1 L_now')
    wloads(WH, vW2h, vW2h2, vWoh, 256)
    newpath('L_now')
    a('s_barrier')
    a.wait_vm0()
    stamp(12)
    for i in range(5):
        mfma(PA[0], HF + 4 * i, WD + 4 * i, 1)
    a('s_cmp_lg_u32 %s, 3' % s(sW)); a('s_cbranch_scc1 L_now2')
    for i in range(5):
        mfma(PA[1], HF + 4 * i, WH + 4 * i, 1)
    a.label('L_now2')
    XO = 148
    o_load = lambda: a('buffer_load_dwordx4 %s, %s, %s, %s offen sc1' % (v(XO, 4), v(vXA), s(rWS, 4), s(sOG)))
    o_load()
    poll('ml', ml_load, ml_check, sleep=4, first_done=True)
    a('v_mov_b32 %s, %s' % (v(vWT), v(XG)))
    red8([vWT], 'v_max_f32')
    a('v_sub_f32 %s, %s, %s' % (v(vWT), v(XG), v(vWT)))
    a('v_exp_f32 %s, %s' % (v(vWT), v(vWT)))
    a('v_mul_f32 %s, %s, %s' % (v(XG + 2), v(XG + 2), v(vWT)))
    red8([XG + 2], 'v_add_f32')
    a('v_rcp_f32 %s, %s' % (v(XG + 2), v(XG + 2)))
    a('v_mov_b32 %s, %s' % (v(T[0]), s(sG0))); a('v_mov_b32 %s, %s' % (v(T[1]), s(sG1)))
    a('v_cndmask_b32 %s, %s, %s, %s' % (v(T[0]), v(T[0]), v(T[1]), s(sBB, 2)))
    a('v_mul_f32 %s, %s, %s' % (v(vWT), v(vWT), v(XG + 2)))
    a('v_mul_f32 %s, %s, %s' % (v(vWT), v(vWT), v(T[0])))
    a.wait_vm0()
    poll('o', o_load, lambda: decode([XO], T[0]), masked=True, first_done=True)
    stamp(13)
    U = [XO + i for i in range(4)]
    for x in U:
        a('v_mul_f32 %s, %s, %s' % (v(x), v(x), v(vWT)))
    red8(U, 'v_add_f32')
    AQ = 48
    for i in range(4):
        a('v_cvt_pk_bf16_f32 %s, %s, %s' % (v(U[i]), v(U[i]), v(U[i])))
    for i in range(4):
        delta(AQ + 4 * i, U[i])
    for i in range(4):
        mfma(PA[0], AQ + 4 * i, WD + 20 + 4 * i, 1)
    a('s_cmp_lg_u32 %s, 3' % s(sW)); a('s_cbranch_scc1 L_now3')
    for i in range(4):
        mfma(PA[1], AQ + 4 * i, WH + 20 + 4 * i, 1)
    encode(PA[1], PA[1], vHM)
    a('buffer_store_dwordx4 %s, %s, %s, %s offen offset:512 sc1' % (v(PA[1], 4), v(vYH), s(rWS, 4), s(sYS)))
    a.label('L_now3')
    a('s_nop 5')
    encode(PA[0], PA[0], vHM)
    a('buffer_store_dwordx4 %s, %s, %s, %s offen sc1' % (v(PA[0], 4), v(vYS), s(rWS, 4), s(sYS)))
    stamp(14)
    stamp_flush()
    a.label('L_end')
    a('s_endpgm')
    a.raw('.section .rodata,"a"')
    a.raw('.p2align 6')
    a.raw('.amdhsa_kernel ' + K1)
    a.raw('  .amdhsa_next_free_vgpr %d' % NV)
    a.raw('  .amdhsa_next_free_sgpr 102')
    a.raw('  .amdhsa_accum_offset %d' % NV)
    a.raw('  .amdhsa_group_segment_fixed_size 0')
    a.raw('  .amdhsa_kernarg_size 112')
    a.raw('  .amdhsa_user_sgpr_count 2')
    a.raw('  .amdhsa_user_sgpr_kernarg_segment_ptr 1')
    a.raw('  .amdhsa_system_sgpr_workgroup_id_x 1')
    a.raw('  .amdhsa_float_denorm_mode_32 3')
    a.raw('.end_amdhsa_kernel')
    launch = '; @launch grid=(256,1,1) block=(768,1,1) lds=%d\n' % LDS_BYTES
    return HEADER + launch + a.text()

def parse(argv=None):
    ap = argparse.ArgumentParser()
    ap.add_argument('-o', default=None)
    for k, d in (('depth', 4), ('batch', 2), ('pre', 22), ('dmid', 6), ('kick', 0), ('kfl', 1), ('vfl', 1), ('wfl', 1),
                 ('diag', 0), ('xprobe', 0), ('no_w1', 0), ('no_wq', 0), ('no_def', 0), ('defer_at', 61), ('defer_n', 8), ('q_sleep', 8), ('h_sleep', 16), ('prog_at', 14), ('prog_n', 4), ('w_sleep', 4), ('y_delay', 16)):
        ap.add_argument('--' + k, type=int, default=d)
    ap.add_argument('--spin', type=lambda x: int(x, 0), default=0x40000)
    return ap.parse_args(argv)

if __name__ == '__main__':
    P = parse()
    txt = gen(P)
    out = P.o or os.path.join(os.path.dirname(os.path.abspath(__file__)), '..', 'cdna_kernels', NAME + '.s')
    open(out, 'w').write(txt)
    print('wrote', out, len(txt), 'bytes; lds', LDS_BYTES)
```

```python
import sys, os, math, struct, argparse
sys.path.insert(0, os.path.dirname(os.path.abspath(__file__)))
from asmlib import Asm

NAME = 'gated_mix__mha_block_cached__mixer_channel_mlp__decode'
def f2u(x):
    return struct.unpack('<I', struct.pack('<f', x))[0]
HEADER = open(os.path.join(os.path.dirname(os.path.abspath(__file__)), '..', 'cdna_kernels', NAME + '.s.ref')).read().split('; Override launch')[0]

LS, FQ, FD, FP, QB, YT = 0, 128, 132, 136, 256, 768
YP = 592 * 4
OBUF = YT + 2 * YP
RED = OBUF + 8 * 1024
LDS_BYTES = RED + 1024
QX = 256 * 4608
HX = QX + 256 * 1024
OX = HX + 256 * 1024
MLX = OX + 256 * 1024
EP = MLX + 256 * 32
WS_BYTES = EP + 128
DIAG = 0x400000
OOB = 0x80000000
NV = 168

def gen(P):
    a = Asm()
    FL = {0: '', 1: ' nt', 2: ' sc1', 3: ' sc0 sc1', 4: ' sc1 nt', 5: ' sc0 sc1 nt'}
    wnt = FL[P.wfl]
    D = P.depth
    vL = 1; MASK = 4; AF = [8, 12]
    sW, sH, sS, sHG, sKV, sT0, sT1, sT2, sG, sSPIN = 3, 4, 5, 6, 8, 9, 10, 11, 12, 13
    pX, pK, pV, pWQ, pWO, pW1, pB1, pW2, pB2, pGW, pOUT, pDBG, pWS = 16, 18, 20, 22, 24, 28, 30, 32, 34, 36, 38, 40, 42
    rK, rV, rWA, rWO, rW2, rWS, rB1, rB2 = 44, 48, 52, 56, 64, 68, 76, 96
    sG0, sG1, sTG0, sTG1 = 84, 85, 86, 87
    sTK = 72
    sHI, sC, sBB, sM = 90, 91, 92, 94
    sST = 26
    def v(n, k=1):
        assert n + k <= NV, n
        return 'v%d' % n if k == 1 else 'v[%d:%d]' % (n, n + k - 1)
    def s(n, k=1):
        return 's%d' % n if k == 1 else 's[%d:%d]' % (n, n + k - 1)
    def srd(r, p, nbytes):
        a('s_mov_b32 %s, %s' % (s(r), s(p)))
        a('s_mov_b32 %s, %s' % (s(r + 1), s(p + 1)))
        a('s_mov_b32 %s, 0x%x' % (s(r + 2), nbytes))
        a('s_mov_b32 %s, 0x20000' % s(r + 3))
    def smask(val16):
        w = val16 | (val16 << 16)
        a('s_mov_b32 %s, 0x%x' % (s(sM), w)); a('s_mov_b32 %s, 0x%x' % (s(sM + 1), w))
    DPP = ' row_mask:0xf bank_mask:0xf'
    VS = 71
    def stamp(n):
        if not P.diag:
            return
        a('s_memrealtime %s' % s(sST, 2))
        a('s_waitcnt lgkmcnt(0)')
        a('v_writelane_b32 v%d, %s, %d' % (VS, s(sST), n))
    def stamp_flush():
        if not P.diag:
            return
        a('s_mov_b64 exec, -1')
        a('s_mul_i32 s100, s2, 12'); a('s_add_u32 s100, s100, %s' % s(sW)); a('s_lshl_b32 s100, s100, 7')
        a('s_add_u32 s100, s100, 0x%x' % DIAG)
        a('v_lshlrev_b32 v70, 2, %s' % v(vL))
        a('s_mov_b32 exec_hi, 0')
        a('buffer_store_dword v%d, v70, %s, s100 offen' % (VS, s(rWS, 4)))
    def red32(xs, ts, op):
        for d in ('quad_perm:[1,0,3,2]', 'quad_perm:[2,3,0,1]', 'row_ror:4', 'row_ror:8'):
            for x in xs:
                a('%s_dpp %s, %s, %s %s%s' % (op, v(x), v(x), v(x), d, DPP))
        for x, t in zip(xs, ts):
            a('v_mov_b32 %s, %s' % (v(t), v(x)))
        for x, t in zip(xs, ts):
            a('v_permlane16_swap_b32 %s, %s' % (v(x), v(t)))
        for x, t in zip(xs, ts):
            a('%s %s, %s, %s' % (op, v(x), v(x), v(t)))
    def redquads64(xs, ts, op):
        for d in ('row_ror:4', 'row_ror:8'):
            for x in xs:
                a('%s_dpp %s, %s, %s %s%s' % (op, v(x), v(x), v(x), d, DPP))
        for sw in ('v_permlane16_swap_b32', 'v_permlane32_swap_b32'):
            for x, t in zip(xs, ts):
                a('v_mov_b32 %s, %s' % (v(t), v(x)))
            for x, t in zip(xs, ts):
                a('%s %s, %s' % (sw, v(x), v(t)))
            for x, t in zip(xs, ts):
                a('%s %s, %s, %s' % (op, v(x), v(x), v(t)))
    def red8(xs, op):
        for d in ('quad_perm:[1,0,3,2]', 'quad_perm:[2,3,0,1]', 'row_half_mirror'):
            for x in xs:
                a('%s_dpp %s, %s, %s %s%s' % (op, v(x), v(x), v(x), d, DPP))
    def delta(dst, src):
        for d in range(4):
            a('v_and_b32 %s, %s, %s' % (v(dst + d), v(src), v(MASK + d)))
    def mfma(d, A, B, c=None):
        a('v_mfma_f32_16x16x32_bf16 %s, %s, %s, %s' % (v(d, 4), v(A, 4), v(B, 4), '0' if c is None else v(d, 4)))
    def masks(t0, t1):
        a('v_and_b32 %s, 1, %s' % (v(t0), v(vL)))
        a('v_lshlrev_b32 %s, 4, %s' % (v(t0), v(t0)))
        a('v_mov_b32 %s, 0xffff' % v(t1))
        a('v_lshlrev_b32 %s, %s, %s' % (v(t0), v(t0), v(t1)))
        for d in range(4):
            smask(0x0303 << (2 * d))
            a('v_cndmask_b32 %s, 0, %s, %s' % (v(MASK + d), v(t0), s(sM, 2)))
    def epoch_load():
        a('s_add_u32 s72, %s, 0x%x' % (s(pWS), EP)); a('s_addc_u32 s73, %s, 0' % s(pWS + 1))
        a('s_load_dwordx2 %s, s[72:73], 0' % s(sTG0, 2))
    def epoch_tags():
        a('s_add_u32 %s, %s, 1' % (s(sTG0), s(sTG0)))
        a('s_add_u32 %s, %s, 0x9e3779b9' % (s(sTG1), s(sTG1)))
        a('s_and_b32 s72, %s, 0xfff' % s(sTG0))
        a('s_and_b32 s73, %s, 0xfff' % s(sTG1))
        a('s_bfe_u32 s74, %s, 0xc000c' % s(sTG1))
        a('s_lshr_b32 s75, %s, 20' % s(sTG1))
    def encode(dst, src, vm):
        for r in range(4):
            a('v_add_u32 %s, 0x800, %s' % (v(dst + r), v(src + r)))
        for r in range(4):
            a('v_and_or_b32 %s, %s, %s, %s' % (v(dst + r), v(dst + r), v(vm), s(sTK + r)))
    def decode(regs, t):
        for g in regs:
            for r in range(4):
                a('v_xor_b32 %s, %s, %s' % (v(g + r), s(sTK + r), v(g + r)))
        flat = [g + r for g in regs for r in range(4)]
        a('v_or3_b32 %s, %s, %s, %s' % (v(t), v(flat[0]), v(flat[1]), v(flat[2])))
        k = 3
        while k + 1 < len(flat):
            a('v_or3_b32 %s, %s, %s, %s' % (v(t), v(t), v(flat[k]), v(flat[k + 1]))); k += 2
        if k < len(flat):
            a('v_or_b32 %s, %s, %s' % (v(t), v(t), v(flat[k])))
        a('v_and_b32 %s, 0xfff, %s' % (v(t), v(t)))
        a('v_cmp_ne_u32 vcc, 0, %s' % v(t))
    def poll(name, load, check, lds=False, sleep=0, masked=False, first_done=False):
        a('s_mov_b32 %s, 0x%x' % (s(sSPIN), P.spin))
        if first_done:
            a('s_branch L_%s_chk' % name)
        elif sleep or masked:
            a('s_branch L_%s_go' % name)
        a.label('L_%s_spin' % name)
        if masked:
            a('s_mov_b64 exec, vcc')
        if sleep:
            a('s_sleep %d' % sleep)
        a.label('L_%s_go' % name)
        load()
        if lds:
            a('s_waitcnt lgkmcnt(0)')
        else:
            a.wait_vm0()
        a.label('L_%s_chk' % name)
        check()
        a('s_sub_u32 %s, %s, 1' % (s(sSPIN), s(sSPIN)))
        a('s_cbranch_scc1 L_%s_ok' % name)
        a('s_cbranch_vccnz L_%s_spin' % name)
        a.label('L_%s_ok' % name)
        if masked:
            a('s_mov_b64 exec, -1')
    def lds_count(flag, t0, t1):
        a('v_mov_b32 %s, 0' % v(t0)); a('v_mov_b32 %s, 1' % v(t1))
        a('s_mov_b64 exec, 1')
        a('ds_add_u32 %s, %s offset:%d' % (v(t0), v(t1), flag))
        a('s_mov_b64 exec, -1')
    def lds_wait(name, flag, n, t0, tz, sleep):
        a('v_mov_b32 %s, 0' % v(tz))
        poll(name, lambda: a('ds_read_b32 %s, %s offset:%d' % (v(t0), v(tz), flag)), lambda: a('v_cmp_gt_u32 vcc, %d, %s' % (n, v(t0))), lds=True, sleep=sleep)
    def newpath(name):
        a.label(name); a.hist = []; a.vm = []
    WSB = (DIAG + 0x80000) if P.diag else WS_BYTES

    K1 = NAME + '_kernel'
    a.raw('.amdgcn_target "amdgcn-amd-amdhsa--gfx950"')
    a.raw('.text'); a.raw('.globl ' + K1); a.raw('.p2align 8'); a.raw('.type %s,@function' % K1)
    a.label(K1)
    a('s_cmp_ge_u32 s2, 256'); a('s_cbranch_scc1 L_end')
    if P.until:
        a('s_memrealtime s[78:79]')
    a('s_load_dwordx16 s[16:31], s[0:1], 0')
    a('s_load_dwordx8 s[32:39], s[0:1], 64')
    a('s_load_dwordx4 s[40:43], s[0:1], 96')
    a('v_lshrrev_b32 v2, 6, v0')
    a('v_and_b32 %s, 63, v0' % v(vL))
    a('v_readfirstlane_b32 %s, v2' % s(sW))
    a('s_and_b32 %s, s2, 7' % s(sT0))
    a('s_lshr_b32 %s, s2, 3' % s(sT1))
    a('s_and_b32 %s, %s, 3' % (s(sH), s(sT1)))
    a('s_lshl_b32 %s, %s, 2' % (s(sT2), s(sT0)))
    a('s_add_u32 %s, %s, %s' % (s(sH), s(sH), s(sT2)))
    a('s_lshr_b32 %s, %s, 2' % (s(sS), s(sT1)))
    a('s_lshl_b32 %s, %s, 3' % (s(sHG), s(sH)))
    if P.diag:
        a('v_mov_b32 v%d, 0' % VS)
    a('s_cmp_lt_u32 %s, 4' % s(sW)); a('s_cbranch_scc1 L_helper')

    vKo, vVo = 2, 3
    BQ = 16; QV = 32; SC = 40; SACC = [48, 52]; OA = [56, 60]; T = list(range(64, 70))
    RB = 72; RN = (NV - RB) // 4
    sSW = 14
    a('s_sub_u32 %s, %s, 4' % (s(sSW), s(sW)))
    a('s_lshl_b32 %s, %s, 20' % (s(sKV), s(sH)))
    a('s_lshl_b32 %s, %s, 17' % (s(sT2), s(sS))); a('s_add_u32 %s, %s, %s' % (s(sKV), s(sKV), s(sT2)))
    a('s_lshl_b32 %s, %s, 12' % (s(sT2), s(sSW))); a('s_add_u32 %s, %s, %s' % (s(sKV), s(sKV), s(sT2)))
    a('v_lshrrev_b32 %s, 4, %s' % (v(T[1]), v(vL)))
    a('v_lshlrev_b32 %s, 4, %s' % (v(vVo), v(vL)))
    a('v_bfe_u32 %s, %s, 2, 2' % (v(T[0]), v(vL)))
    a('v_lshlrev_b32 %s, 8, %s' % (v(vKo), v(T[0])))
    a('v_lshl_add_u32 %s, %s, 6, %s' % (v(vKo), v(T[1]), v(vKo)))
    a('v_and_b32 %s, 3, %s' % (v(T[0]), v(vL)))
    a('v_lshl_add_u32 %s, %s, 4, %s' % (v(vKo), v(T[0]), v(vKo)))
    a('s_waitcnt lgkmcnt(0)')
    srd(rK, pK, 1 << 26)
    stamp(0)
    ip = [0]; cp = [0]
    def issue_one():
        j = ip[0]; ip[0] += 1
        assert j - RN < cp[0]
        n, i = j >> 2, j & 3
        if i == 0:
            g = n & 7
            a('s_add_u32 %s, %s, 0x%x' % (s(sG), s(sKV), ((g >> 2) << 25) + ((g & 3) << 15)))
        a('buffer_load_dwordx4 %s, %s, %s, %s offen offset:%d%s' % (
            v(RB + 4 * (j % RN), 4), v(vKo if j < 32 else vVo), s(rK if j < 32 else rV, 4), s(sG), 1024 * i, FL[P.kfl if j < 32 else P.vfl]), tag='L%d' % j)
    B = P.batch
    for _ in range(D):
        issue_one()
    epoch_load()
    srd(rV, pV, 1 << 26)
    srd(rWS, pWS, WSB)
    a('s_mov_b32 %s, 0x%x' % (s(sC), f2u(math.log2(math.e) / math.sqrt(128.0))))
    a('v_lshl_add_u32 %s, %s, 2, %s' % (v(T[2]), v(T[1]), v(T[0])))
    a('v_lshlrev_b32 %s, 4, %s' % (v(T[2]), v(T[2])))
    a('v_mov_b32 %s, 0' % v(T[3]))
    masks(T[0], T[1])
    a('s_barrier')
    assert P.pre <= RN
    while ip[0] < P.pre:
        a.wait_vm('L%d' % (ip[0] - D + B - 1))
        for _ in range(B):
            issue_one()
        if ip[0] - B < P.prog_at <= ip[0]:
            lds_count(FP, T[0], T[1])
    stamp(1)
    poll('fq', lambda: a('ds_read_b32 %s, %s offset:%d' % (v(T[0]), v(T[3]), FQ)), lambda: a('v_cmp_eq_u32 vcc, 0, %s' % v(T[0])), lds=True, sleep=1)
    a('ds_read_b128 %s, %s offset:%d' % (v(QV, 4), v(T[2]), QB))
    a('ds_read_b128 %s, %s offset:%d' % (v(QV + 4, 4), v(T[2]), QB + 256))
    epoch_tags()
    a('s_waitcnt lgkmcnt(0)')
    def qfrag(b):
        for i in range(4):
            smask(0xf << (4 * i))
            for d in range(4):
                a('v_cndmask_b32 %s, 0, %s, %s' % (v(BQ + 4 * i + d), v(QV + 4 * b + d), s(sM, 2)))
    stamp(2)
    def score(n):
        acc = SACC[n & 1]
        a('v_mov_b32_dpp %s, %s quad_perm:[0,0,0,0]%s' % (v(SC + n), v(acc), DPP))
        for c in range(1, 4):
            a('v_add_f32_dpp %s, %s, %s quad_perm:[%d,%d,%d,%d]%s' % (v(SC + n), v(acc + c), v(SC + n), c, c, c, c, DPP))
    def refill(j, depth=None):
        cp[0] = j + 1
        if (j + 1) % B == 0:
            while ip[0] < min(64, j + 1 + (depth or D)):
                issue_one()
    for n in range(8):
        if n % 4 == 0:
            qfrag(n >> 2)
        for i in range(4):
            j = 4 * n + i
            a.wait_vm('L%d' % j)
            mfma(SACC[n & 1], RB + 4 * (j % RN), BQ + 4 * i, None if i == 0 else 1)
            if n == 0 and i < P.kick:
                cp[0] = j + 1
                issue_one()
            refill(j, P.dmid if j == 31 else None)
        if n > 0:
            score(n - 1)
    score(7)
    stamp(3)
    ML = 16; vMC = 18; vHM = 24; vOW = 28; vSCL = 29; vRO = 31; QR = 72; LSR = 20; vRW, vRR, vOO = 25, 26, 27
    for b in range(2):
        a('v_max3_f32 %s, %s, %s, %s' % (v(vMC + b), v(SC + 4 * b), v(SC + 4 * b + 1), v(SC + 4 * b + 2)))
        a('v_max_f32 %s, %s, %s' % (v(vMC + b), v(vMC + b), v(SC + 4 * b + 3)))
    redquads64([vMC, vMC + 1], [T[0], T[1]], 'v_max_f32')
    for b in range(2):
        a('v_mul_f32 %s, %s, %s' % (v(vMC + b), s(sC), v(vMC + b)))
    for n in range(8):
        a('v_fma_f32 %s, %s, %s, -%s' % (v(SC + n), v(SC + n), s(sC), v(vMC + (n >> 2))))
    for n in range(8):
        a('v_exp_f32 %s, %s' % (v(SC + n), v(SC + n)))
    for b in range(2):
        L_ = ML + b
        a('v_add_f32 %s, %s, %s' % (v(L_), v(SC + 4 * b), v(SC + 4 * b + 1)))
        a('v_add_f32 %s, %s, %s' % (v(L_), v(L_), v(SC + 4 * b + 2)))
        a('v_add_f32 %s, %s, %s' % (v(L_), v(L_), v(SC + 4 * b + 3)))
    for n in range(8):
        a('v_cvt_pk_bf16_f32 %s, %s, %s' % (v(SC + n), v(SC + n), v(SC + n)))
    sOP = 88
    def tail_prep():
        redquads64([ML, ML + 1], [T[0], T[1]], 'v_add_f32')
        a('s_lshl_b32 %s, %s, 4' % (s(sT0), s(sSW)))
        a('v_mov_b32 %s, %s' % (v(T[0]), s(sT0)))
        a('ds_write_b128 %s, %s offset:%d' % (v(T[0]), v(ML, 4), LS))
        a('v_subrev_u32 v0, 256, v0')
        a('v_lshrrev_b32 %s, 5, v0' % v(T[1]))
        a('v_and_b32 %s, 15, %s' % (v(T[2]), v(vL)))
        a('v_lshlrev_b32 %s, 5, %s' % (v(T[2]), v(T[2])))
        a('v_and_b32 %s, 16, %s' % (v(T[3]), v(vL)))
        a('v_add_u32 %s, %s, %s' % (v(T[2]), v(T[2]), v(T[3])))
        a('v_lshl_add_u32 %s, %s, 9, %s' % (v(vOW), v(T[1]), v(T[2])))
        a('s_add_u32 %s, %s, %s' % (s(sOP), s(sHG), s(sS)))
        a('s_lshl_b32 %s, %s, 10' % (s(sOP), s(sOP)))
        a('s_add_u32 %s, %s, 0x%x' % (s(sOP), s(sOP), OX))
        a('v_mov_b32 %s, 0xfffff000' % v(vHM))
        a('v_lshrrev_b32 %s, 3, %s' % (v(vRO), v(vL)))
        a('v_lshl_add_u32 %s, %s, 3, %s' % (v(vRO), v(vRO), s(sSW)))
        a('v_mul_u32_u24 %s, 0x1200, %s' % (v(vRO), v(vRO)))
        a('s_and_b32 s89, %s, 3' % s(sH))
        a('s_lshl_b32 %s, %s, 2' % (s(sT0), s(sSW)))
        a('s_add_u32 s89, s89, %s' % s(sT0))
        a('s_lshl_b32 s89, s89, 3')
        a('s_add_u32 s89, s89, %s' % s(sS))
        a('s_lshl_b32 s89, s89, 10')
        a('s_and_b32 %s, s2, 7' % s(sT0))
        a('s_lshl_b32 %s, %s, 7' % (s(sT0), s(sT0)))
        a('s_add_u32 s89, s89, %s' % s(sT0))
        a('s_add_u32 s89, s89, 0x%x' % OX)
        a('v_and_b32 %s, 7, v0' % v(T[0]))
        a('v_lshl_add_u32 %s, %s, 4, %s' % (v(vRO), v(T[0]), v(vRO)))
        a('s_lshl_b32 s96, s2, 7')
        for k in range(1, 4):
            a('s_add_u32 s%d, s96, %d' % (96 + k, k * 64 * 4608))
        a('v_lshlrev_b32 %s, 4, %s' % (v(vRW), v(T[0])))
        a('s_lshl_b32 %s, %s, 7' % (s(sT0), s(sSW)))
        a('v_add_u32 %s, %s, %s' % (v(vRW), s(sT0), v(vRW)))
        a('v_and_b32 %s, 31, %s' % (v(vRR), v(vL)))
        a('v_lshlrev_b32 %s, 1, %s' % (v(vOO), v(vRR)))
        a('s_lshl_b32 %s, s2, 6' % s(sT0))
        a('v_add_u32 %s, %s, %s' % (v(vOO), s(sT0), v(vOO)))
        a('v_lshlrev_b32 %s, 2, %s' % (v(vRR), v(vRR)))
        a('v_lshrrev_b32 %s, 5, %s' % (v(T[0]), v(vL)))
        a('v_lshl_add_u32 %s, %s, 9, %s' % (v(vRR), v(T[0]), v(vRR)))
        a('v_add_u32 %s, %d, %s' % (v(vRR), RED, v(vRR)))
    def ls_check(r, t):
        a('v_min_u32 %s, %s, %s' % (v(t), v(r), v(r + 1)))
        a('v_cmp_eq_u32 vcc, 0, %s' % v(t))
    def scale_prep():
        a('v_and_b32 %s, 7, %s' % (v(T[1]), v(vL)))
        a('v_lshlrev_b32 %s, 4, %s' % (v(T[1]), v(T[1])))
        poll('ls', lambda: a('ds_read_b128 %s, %s offset:%d' % (v(LSR, 4), v(T[1]), LS)), lambda: ls_check(LSR, T[0]), lds=True, sleep=1)
        red8([LSR + 2, LSR + 3], 'v_max_f32')
        for b in range(2):
            a('v_sub_f32 %s, %s, %s' % (v(LSR + 2 + b), v(vMC + b), v(LSR + 2 + b)))
        a('v_exp_f32 %s, %s' % (v(LSR + 2), v(LSR + 2)))
        a('v_exp_f32 %s, %s' % (v(vSCL), v(LSR + 3)))
        for r in range(4):
            a('v_mul_f32 %s, %s, %s' % (v(OA[0] + r), v(OA[0] + r), v(LSR + 2)))
    for n in range(8, 16):
        for r in range(4):
            j = 4 * n + r
            A = AF[r & 1]
            for d in range(4):
                a('v_and_b32_dpp %s, %s, %s row_newbcast:%d%s' % (v(A + d), v(SC + n - 8), v(MASK + d), 4 * r, DPP))
            a.wait_vm('L%d' % j)
            mfma(OA[(n - 8) >> 2], A, RB + 4 * (j % RN), None if (n & 3) == 0 and r == 0 else 1)
            refill(j)
            if j == P.defer_at:
                lds_count(FD, T[0], T[1])
        if n == 8:
            tail_prep()
        if n == 13:
            scale_prep()
    stamp(4)
    a('s_mov_b32 exec_lo, 0')
    for r in range(4):
        a('v_mul_f32 %s, %s, %s' % (v(OA[0] + r), v(OA[1] + r), v(vSCL)))
    a('s_mov_b32 exec_lo, -1')
    a('ds_write_b128 %s, %s offset:%d' % (v(vOW), v(OA[0], 4), OBUF))
    a('s_waitcnt lgkmcnt(0)')
    a('s_barrier')
    a('s_cmp_lg_u32 %s, 0' % s(sSW)); a('s_cbranch_scc1 L_pubbed')
    for w in range(8):
        a('ds_read_b128 %s, %s offset:%d' % (v(QR + 4 * w, 4), v(vVo), OBUF + 1024 * w))
    for w in range(0, 8, 2):
        a('s_waitcnt lgkmcnt(%d)' % (6 - w))
        for r in (0, 2):
            a('v_pk_add_f32 %s, %s, %s' % (v(QR + 4 * w + r, 2), v(QR + 4 * w + r, 2), v(QR + 4 * w + 4 + r, 2)))
    for st in (2, 4):
        for w in range(0, 8, 2 * st):
            for r in (0, 2):
                a('v_pk_add_f32 %s, %s, %s' % (v(QR + 4 * w + r, 2), v(QR + 4 * w + r, 2), v(QR + 4 * (w + st) + r, 2)))
    encode(QR, QR, vHM)
    a('buffer_store_dwordx4 %s, %s, %s, %s offen sc1' % (v(QR, 4), v(vVo), s(rWS, 4), s(sOP)))
    newpath('L_pubbed')
    stamp(5)
    if P.xprobe:
        a('s_cmp_lg_u32 s2, %d' % P.xprobe); a('s_cbranch_scc1 L_xp')
        a('s_getreg_b32 s99, hwreg(HW_REG_XCC_ID)'); a('s_and_b32 s99, s99, 15'); a('s_add_u32 s99, s99, 1')
        a('v_mov_b32 v14, s99'); a('v_mov_b32 v12, 0')
        a('global_store_dword v12, v14, %s sc1' % s(pDBG, 2))
        a('s_waitcnt vmcnt(0)')
        a('s_lshl_b32 s99, s2, 7'); a('s_add_u32 s99, s99, %d' % (3 * 64 * 4608))
        a.label('L_xp')
    a('s_cmp_ge_u32 s2, 36'); a('s_cbranch_scc1 L_fin')
    R, t_ = 104, 13
    a('s_mov_b64 exec, 1')
    poll('w', lambda: a('buffer_load_dwordx4 %s, %s, %s, s89 offen sc1' % (v(R, 4), v(vVo), s(rWS, 4))), lambda: decode([R], t_), sleep=P.w_sleep)
    a('s_mov_b64 exec, -1')
    if P.y_delay:
        a('s_sleep %d' % P.y_delay)
    def y_load():
        for k in range(4):
            a('buffer_load_dwordx4 %s, %s, %s, s%d offen sc1' % (v(R + 4 * k, 4), v(vRO), s(rWS, 4), 96 + k))
    poll('y', y_load, lambda: decode([R + 4 * k for k in range(4)], t_), masked=True)
    for (x, y) in ((0, 4), (8, 12), (0, 8)):
        for r in (0, 2):
            a('v_pk_add_f32 %s, %s, %s' % (v(R + x + r, 2), v(R + x + r, 2), v(R + y + r, 2)))
    for r in range(4):
        a('v_add_f32_dpp %s, %s, %s row_ror:8%s' % (v(R + r), v(R + r), v(R + r), DPP))
    a('v_permlane16_swap_b32 %s, %s' % (v(R), v(R + 1)))
    a('v_permlane16_swap_b32 %s, %s' % (v(R + 2), v(R + 3)))
    a('v_add_f32 %s, %s, %s' % (v(R), v(R), v(R + 1)))
    a('v_add_f32 %s, %s, %s' % (v(R + 2), v(R + 2), v(R + 3)))
    a('v_permlane32_swap_b32 %s, %s' % (v(R), v(R + 2)))
    a('v_add_f32 %s, %s, %s' % (v(R), v(R), v(R + 2)))
    a('v_lshrrev_b32 %s, 4, %s' % (v(t_), v(vL)))
    a('v_lshl_add_u32 %s, %s, 2, %s' % (v(t_), v(t_), v(vRW)))
    a('ds_write_b32 %s, %s offset:%d' % (v(t_), v(R), RED))
    a('s_waitcnt lgkmcnt(0)')
    a('s_barrier')
    a('s_cmp_lg_u32 %s, 0' % s(sSW)); a('s_cbranch_scc1 L_fin')
    a('ds_read2_b32 %s, %s offset0:0 offset1:32' % (v(R, 2), v(vRR)))
    a('ds_read2_b32 %s, %s offset0:64 offset1:96' % (v(R + 2, 2), v(vRR)))
    a('s_waitcnt lgkmcnt(0)')
    a('v_add_f32 %s, %s, %s' % (v(R), v(R), v(R + 1)))
    a('v_add_f32 %s, %s, %s' % (v(R + 2), v(R + 2), v(R + 3)))
    a('v_add_f32 %s, %s, %s' % (v(R), v(R), v(R + 2)))
    a('v_mov_b32 %s, %s' % (v(R + 1), v(R)))
    a('v_permlane32_swap_b32 %s, %s' % (v(R), v(R + 1)))
    a('v_add_f32 %s, %s, %s' % (v(R), v(R), v(R + 1)))
    a('v_cvt_pk_bf16_f32 %s, %s, %s' % (v(R), v(R), v(R)))
    a('s_mov_b32 exec_hi, 0')
    a('global_store_short %s, %s, %s' % (v(vOO), v(R), s(pOUT, 2)))
    a('s_cmp_lg_u32 s2, 0'); a('s_cbranch_scc1 L_fin')
    a('s_mov_b64 exec, 1')
    a('v_mov_b32 v14, %s' % s(sTG0)); a('v_mov_b32 v15, %s' % s(sTG1))
    a('v_mov_b32 v12, 0x%x' % EP)
    a('global_store_dwordx2 v12, v[14:15], %s sc1' % s(pWS, 2))
    if P.endspin:
        a('s_memrealtime s[26:27]'); a('s_waitcnt lgkmcnt(0)'); a('s_mov_b32 s97, s26')
        a.label('L_espin')
        a('s_memrealtime s[26:27]'); a('s_waitcnt lgkmcnt(0)')
        a('s_sub_u32 s96, s26, s97'); a('s_cmp_lt_u32 s96, %d' % P.endspin); a('s_cbranch_scc1 L_espin')
    if P.until:
        a.label('L_uspin')
        a('s_memrealtime s[26:27]'); a('s_waitcnt lgkmcnt(0)')
        a('s_sub_u32 s96, s26, s78'); a('s_cmp_lt_u32 s96, %d' % P.until); a('s_cbranch_scc1 L_uspin')
    if P.xprobe:
        a('s_sleep 64')
        a('v_mov_b32 v12, 0')
        a('global_load_dword v14, v12, %s sc1' % s(pDBG, 2))
        a('s_waitcnt vmcnt(0)')
        a('v_readfirstlane_b32 s98, v14')
        a('s_getreg_b32 s99, hwreg(HW_REG_XCC_ID)'); a('s_and_b32 s99, s99, 15'); a('s_add_u32 s99, s99, 1')
        a('s_cmp_eq_u32 s98, s99'); a('s_cbranch_scc1 L_fin')
        a('s_memrealtime s[26:27]'); a('s_waitcnt lgkmcnt(0)'); a('s_mov_b32 s97, s26')
        a.label('L_xspin')
        a('s_memrealtime s[26:27]'); a('s_waitcnt lgkmcnt(0)')
        a('s_sub_u32 s96, s26, s97'); a('s_cmp_lt_u32 s96, 3000'); a('s_cbranch_scc1 L_xspin')
    a.label('L_fin'); a.hist = []
    stamp(6)
    stamp_flush()
    a('s_endpgm')

    newpath('L_helper')
    vG, vN, vBB = 2, 3, 16
    T = list(range(17, 29))
    tO = T[11]
    vHM = 29
    XS, GW = 30, 40
    XQ = 50
    QA = 72; BIG = 76
    sCB, sRB, sLID, sC0 = 60, 61, 62, 63
    def oob_unless(dst, src, cmp):
        a(cmp)
        a('v_mov_b32 %s, 0x%x' % (v(tO), OOB))
        a('v_cndmask_b32 %s, %s, %s, vcc' % (v(dst), v(tO), v(src)))
    a('v_lshrrev_b32 %s, 4, %s' % (v(vG), v(vL)))
    a('v_and_b32 %s, 15, %s' % (v(vN), v(vL)))
    a('v_bfe_u32 %s, %s, 3, 1' % (v(vBB), v(vL)))
    a('s_add_u32 %s, %s, %s' % (s(sLID), s(sHG), s(sS)))
    a('s_mul_i32 %s, %s, 9363' % (s(sCB), s(sLID)))
    a('s_lshr_b32 %s, %s, 16' % (s(sCB), s(sCB)))
    a('s_mul_i32 %s, %s, 7' % (s(sT0), s(sCB)))
    a('s_sub_u32 %s, %s, %s' % (s(sRB), s(sLID), s(sT0)))
    vXs, vGw = T[5], T[6]
    a('v_and_b32 %s, 31, %s' % (v(vGw), v(vL)))
    a('v_mul_u32_u24 %s, 36, %s' % (v(vGw), v(vGw)))
    a('v_lshrrev_b32 %s, 5, %s' % (v(vXs), v(vL)))
    a('v_mul_u32_u24 %s, 0x480, %s' % (v(vXs), v(vXs)))
    a('v_add_u32 %s, %s, %s' % (v(vXs), v(vXs), v(vGw)))
    def stat_loads():
        for (dst, off, base) in ((XS, vXs, pX), (GW, vGw, pGW)):
            a('global_load_dwordx4 %s, %s, %s' % (v(dst, 4), v(off), s(base, 2)), tag='st')
            a('global_load_dwordx4 %s, %s, %s offset:16' % (v(dst + 4, 4), v(off), s(base, 2)), tag='st')
            a('global_load_dword %s, %s, %s offset:32' % (v(dst + 8), v(off), s(base, 2)), tag='st')
    def common_setup():
        epoch_load()
        a('s_barrier')
        srd(rWS, pWS, WSB)
        masks(T[0], T[1])
        a('v_mov_b32 %s, 0xfffff000' % v(vHM))
        a('s_mov_b32 %s, 0xffff0000' % s(sHI))
        a('s_mov_b32 %s, 0xff00ff00' % s(sBB)); a('s_mov_b32 %s, 0xff00ff00' % s(sBB + 1))
        a('v_lshrrev_b32 %s, 5, %s' % (v(T[0]), v(vL)))
        a('v_lshlrev_b32 %s, 9, %s' % (v(T[0]), v(T[0])))
        a('v_lshl_add_u32 %s, %s, 5, %s' % (v(T[0]), v(vN), v(T[0])))
        a('v_and_b32 %s, 16, %s' % (v(T[1]), v(vL)))
        a('v_add_u32 %s, %s, %s' % (v(T[10]), v(T[1]), v(T[0])))
        a('s_waitcnt lgkmcnt(0)')
        epoch_tags()
    S1, GD, t0, t1, t2, t3 = T[4], T[5], T[6], T[7], T[0], T[1]
    vOMG = T[9]
    def stats(full):
        a('v_mov_b32 %s, 0' % v(GD))
        if full:
            a('v_mov_b32 %s, 0' % v(S1))
        for k in range(9):
            a('v_lshlrev_b32 %s, 16, %s' % (v(t0), v(XS + k)))
            a('v_and_b32 %s, %s, %s' % (v(t1), s(sHI), v(XS + k)))
            a('v_lshlrev_b32 %s, 16, %s' % (v(t2), v(GW + k)))
            a('v_and_b32 %s, %s, %s' % (v(t3), s(sHI), v(GW + k)))
            a('v_fmac_f32 %s, %s, %s' % (v(GD), v(t0), v(t2)))
            if full:
                a('v_add_f32 %s, %s, %s' % (v(S1), v(S1), v(t0)))
            a('v_fmac_f32 %s, %s, %s' % (v(GD), v(t1), v(t3)))
            if full:
                a('v_add_f32 %s, %s, %s' % (v(S1), v(S1), v(t1)))
        red32([GD, S1] if full else [GD], [t0, t1], 'v_add_f32')
        a('v_mul_f32 %s, 0x%x, %s' % (v(GD), f2u(-math.log2(math.e)), v(GD)))
        a('v_exp_f32 %s, %s' % (v(GD), v(GD)))
        a('v_add_f32 %s, 1.0, %s' % (v(GD), v(GD)))
        a('v_rcp_f32 %s, %s' % (v(GD), v(GD)))
        a('v_sub_f32 %s, 1.0, %s' % (v(vOMG), v(GD)))
        a('v_readlane_b32 %s, %s, 0' % (s(sG0), v(GD))); a('v_readlane_b32 %s, %s, 32' % (s(sG1), v(GD)))
    a('s_cmp_eq_u32 %s, 1' % s(sW)); a('s_cbranch_scc1 L_h1')
    a('s_cmp_lg_u32 %s, 0' % s(sW)); a('s_cbranch_scc1 L_h23')
    a('v_mul_u32_u24 %s, 18, %s' % (v(T[0]), v(vG)))
    a('v_lshlrev_b32 %s, 13, %s' % (v(T[1]), v(T[0])))
    a('v_lshl_add_u32 %s, %s, 4, %s' % (v(T[1]), v(vN), v(T[1])))
    if P.no_wq:
        a('v_mov_b32 %s, 0x%x' % (v(T[1]), OOB))
    a('v_mul_u32_u24 %s, 0x480, %s' % (v(T[2]), v(vBB)))
    a('v_lshl_add_u32 %s, %s, 1, %s' % (v(T[2]), v(T[0]), v(T[2])))
    a('s_mul_i32 %s, %s, 144' % (s(sT0), s(sS)))
    a('v_add_u32 %s, %s, %s' % (v(T[2]), s(sT0), v(T[2])))
    a('s_mul_i32 %s, %s, %d' % (s(sT0), s(sS), 72 * 8192))
    a('s_lshl_b32 %s, %s, 8' % (s(sT1), s(sH)))
    a('s_add_u32 %s, %s, %s' % (s(sT0), s(sT0), s(sT1)))
    a('s_waitcnt lgkmcnt(0)')
    stamp(0)
    srd(rWA, pWQ, 576 * 8192)
    a('global_load_dwordx4 %s, %s, %s' % (v(XQ, 4), v(T[2]), s(pX, 2)), tag='xq')
    a('global_load_dwordx4 %s, %s, %s offset:16' % (v(XQ + 4, 4), v(T[2]), s(pX, 2)), tag='xq')
    a('global_load_dword %s, %s, %s offset:32' % (v(XQ + 8), v(T[2]), s(pX, 2)), tag='xq')
    for i in range(18):
        a('buffer_load_dwordx4 %s, %s, %s, %s offen%s' % (v(BIG + 4 * i, 4), v(T[1]), s(rWA, 4), s(sT0), wnt), tag='wq%d' % i)
        if i < 17:
            a('s_add_u32 %s, %s, 0x2000' % (s(sT0), s(sT0)))
    stat_loads()
    common_setup()
    a('s_mov_b32 s88, 0x01000100'); a('s_mov_b32 s89, 0x03020302')
    a('s_lshl_b32 %s, %s, 10' % (s(sT0), s(sLID)))
    a('s_add_u32 %s, %s, 0x%x' % (s(sT0), s(sT0), QX))
    a.wait_vm('xq')
    for i in range(18):
        A = AF[i & 1]
        a('v_perm_b32 %s, %s, %s, %s' % (v(T[0]), v(XQ + i // 2), v(XQ + i // 2), 's89' if i & 1 else 's88'))
        delta(A, T[0])
        a.wait_vm('wq%d' % i)
        mfma(QA, A, BIG + 4 * i, None if i == 0 else 1)
    encode(QA, QA, vHM)
    a('buffer_store_dwordx4 %s, %s, %s, %s offen sc1' % (v(QA, 4), v(T[10]), s(rWS, 4), s(sT0)))
    stamp(8)
    a.wait_vm0()
    stats(False)
    lds_wait('fp', FP, P.prog_n, T[0], T[1], 2)
    GQ = BIG
    a('v_lshlrev_b32 %s, 4, %s' % (v(T[10]), v(vL)))
    a('s_lshl_b32 s88, %s, 10' % s(sHG))
    a('s_add_u32 s88, s88, 0x%x' % QX)
    a('s_add_u32 s89, s88, 4096')
    def q_load():
        for k in range(8):
            a('buffer_load_dwordx4 %s, %s, %s, %s offen offset:%d sc1' % (v(GQ + 4 * k, 4), v(T[10]), s(rWS, 4), 's88' if k < 4 else 's89', 1024 * (k % 4)))
    poll('q', q_load, lambda: decode([GQ + 4 * k for k in range(8)], T[0]), sleep=P.q_sleep)
    for st in (1, 2, 4):
        for w in range(0, 8, 2 * st):
            for r in (0, 2):
                a('v_pk_add_f32 %s, %s, %s' % (v(GQ + 4 * w + r, 2), v(GQ + 4 * w + r, 2), v(GQ + 4 * (w + st) + r, 2)))
    a('v_cvt_pk_bf16_f32 %s, %s, %s' % (v(GQ), v(GQ), v(GQ + 1)))
    a('v_cvt_pk_bf16_f32 %s, %s, %s' % (v(GQ + 1), v(GQ + 2), v(GQ + 3)))
    a('v_lshlrev_b32 %s, 3, %s' % (v(T[10]), v(vL)))
    a('ds_write_b64 %s, %s offset:%d' % (v(T[10]), v(GQ, 2), QB))
    a('v_mov_b32 %s, 0' % v(T[0])); a('v_mov_b32 %s, 1' % v(T[1]))
    a('s_waitcnt lgkmcnt(0)')
    a('ds_write_b32 %s, %s offset:%d' % (v(T[0]), v(T[1]), FQ))
    stamp(9)
    a('s_branch L_mid')
    newpath('L_h1')
    a('v_mul_u32_u24 %s, 21, %s' % (v(T[0]), v(vG)))
    a('v_mul_u32_u24 %s, 0x2400, %s' % (v(T[1]), v(T[0])))
    a('v_lshl_add_u32 %s, %s, 4, %s' % (v(T[1]), v(vN), v(T[1])))
    a('s_cmp_lt_u32 %s, %d' % (s(sCB), 0 if P.no_w1 else 36))
    a('s_cselect_b32 %s, 0, 0x%x' % (s(sT1), OOB))
    a('v_or_b32 %s, %s, %s' % (v(T[1]), s(sT1), v(T[1])))
    a('s_mul_i32 %s, %s, 84' % (s(sT2), s(sRB)))
    a('v_add_u32 %s, %s, %s' % (v(T[8]), s(sT2), v(T[0])))
    a('v_mul_u32_u24 %s, %d, %s' % (v(T[2]), YP, v(vBB)))
    a('v_lshl_add_u32 %s, %s, 2, %s' % (v(T[8]), v(T[8]), v(T[2])))
    a('s_mul_i32 %s, %s, 9216' % (s(sT0), s(sT2)))
    a('s_lshl_b32 %s, %s, 8' % (s(sT1), s(sCB)))
    a('s_add_u32 %s, %s, %s' % (s(sT0), s(sT0), s(sT1)))
    a('s_waitcnt lgkmcnt(0)')
    stamp(0)
    stat_loads()
    srd(rWA, pW1, 576 * 9216)
    for i in range(21):
        a('buffer_load_dwordx4 %s, %s, %s, %s offen%s' % (v(BIG + 4 * i, 4), v(T[1]), s(rWA, 4), s(sT0), wnt), tag='w1_%d' % i)
        if i < 20:
            a('s_add_u32 %s, %s, 0x2400' % (s(sT0), s(sT0)))
    vYW = T[3]
    a('v_lshrrev_b32 %s, 5, %s' % (v(vYW), v(vL)))
    a('v_mul_u32_u24 %s, %d, %s' % (v(vYW), YP, v(vYW)))
    a('v_lshl_add_u32 %s, %s, 1, %s' % (v(vYW), v(vGw), v(vYW)))
    common_setup()
    a.wait_vm('st')
    stats(True)
    a('v_mul_f32 %s, 0x%x, %s' % (v(S1), f2u(1.0 / 576), v(S1)))
    S2 = GD
    a('v_mov_b32 %s, 0' % v(S2))
    for k in range(9):
        a('v_lshlrev_b32 %s, 16, %s' % (v(XQ + 2 * k), v(XS + k)))
        a('v_and_b32 %s, %s, %s' % (v(XQ + 2 * k + 1), s(sHI), v(XS + k)))
        a('v_sub_f32 %s, %s, %s' % (v(XQ + 2 * k), v(XQ + 2 * k), v(S1)))
        a('v_sub_f32 %s, %s, %s' % (v(XQ + 2 * k + 1), v(XQ + 2 * k + 1), v(S1)))
        a('v_fmac_f32 %s, %s, %s' % (v(S2), v(XQ + 2 * k), v(XQ + 2 * k)))
        a('v_fmac_f32 %s, %s, %s' % (v(S2), v(XQ + 2 * k + 1), v(XQ + 2 * k + 1)))
    red32([S2], [t0], 'v_add_f32')
    a('v_mov_b32 %s, 0x%x' % (v(t0), f2u(1e-5)))
    a('v_fmac_f32 %s, 0x%x, %s' % (v(t0), f2u(1.0 / 576), v(S2)))
    a('v_rsq_f32 %s, %s' % (v(S2), v(t0)))
    for k in range(18):
        a('v_mul_f32 %s, %s, %s' % (v(XQ + k), v(XQ + k), v(S2)))
    for k in range(18):
        a('v_cvt_pk_bf16_f32 %s, %s, %s' % (v(XQ + k), v(XQ + k), v(XQ + k)))
    for k in range(9):
        a('ds_write_b64 %s, %s offset:%d' % (v(vYW), v(XQ + 2 * k, 2), YT + 8 * k))
    a('s_waitcnt lgkmcnt(0)')
    a('v_add_u32 %s, %d, %s' % (v(T[8]), YT, v(T[8])))
    YR = 30
    for k in range(11):
        a('ds_read2_b32 %s, %s offset0:%d offset1:%d' % (v(YR + 2 * k, 2), v(T[8]), 2 * k, 2 * k + 1))
    a('s_lshl_b32 %s, %s, 10' % (s(sT0), s(sLID)))
    a('s_add_u32 %s, %s, 0x%x' % (s(sT0), s(sT0), HX))
    a('s_waitcnt lgkmcnt(0)')
    for i in range(21):
        A = AF[i & 1]
        delta(A, YR + i)
        a.wait_vm('w1_%d' % i)
        mfma(QA, A, BIG + 4 * i, None if i == 0 else 1)
    encode(QA, QA, vHM)
    a('buffer_store_dwordx4 %s, %s, %s, %s offen sc1' % (v(QA, 4), v(T[10]), s(rWS, 4), s(sT0)))
    stamp(10)
    a('s_branch L_mid')
    newpath('L_h23')
    a('v_mov_b32 %s, 0' % v(T[0]))
    a('v_lshlrev_b32 %s, 2, %s' % (v(T[1]), v(vL)))
    a('ds_write_b32 %s, %s offset:%d' % (v(T[1]), v(T[0]), LS))
    a('v_lshlrev_b32 %s, 2, %s' % (v(T[1]), v(vN)))
    a('ds_write_b32 %s, %s offset:%d' % (v(T[1]), v(T[0]), YT + 576 * 4))
    a('ds_write_b32 %s, %s offset:%d' % (v(T[1]), v(T[0]), YT + YP + 576 * 4))
    a('s_waitcnt lgkmcnt(0)')
    stamp(0)
    stat_loads()
    common_setup()
    a.wait_vm0()
    stats(False)
    newpath('L_mid')
    a('v_and_b32 %s, 7, %s' % (v(T[1]), v(vL)))
    a('v_lshlrev_b32 %s, 4, %s' % (v(T[1]), v(T[1])))
    XG = 144
    a('s_lshl_b32 %s, %s, 5' % (s(sT2), s(sHG)))
    a('s_add_u32 %s, %s, 0x%x' % (s(sT2), s(sT2), MLX))
    poll('ls2', lambda: a('ds_read_b128 %s, %s offset:%d' % (v(XG, 4), v(T[1]), LS)), lambda: ls_check(XG, T[0]), lds=True, sleep=8)
    a('s_cmp_lg_u32 %s, 1' % s(sW)); a('s_cbranch_scc1 L_mlpub')
    a('v_mov_b32 %s, %s' % (v(XG + 4), v(XG + 2))); a('v_mov_b32 %s, %s' % (v(XG + 5), v(XG + 3)))
    red8([XG + 4, XG + 5], 'v_max_f32')
    for b in range(2):
        a('v_sub_f32 %s, %s, %s' % (v(XG + 2 + b), v(XG + 2 + b), v(XG + 4 + b)))
    for b in range(2):
        a('v_exp_f32 %s, %s' % (v(XG + 2 + b), v(XG + 2 + b)))
    for b in range(2):
        a('v_mul_f32 %s, %s, %s' % (v(XG + b), v(XG + b), v(XG + 2 + b)))
    red8([XG, XG + 1], 'v_add_f32')
    a('v_cmp_eq_u32 vcc, 1, %s' % v(vL))
    a('v_cndmask_b32 %s, %s, %s, vcc' % (v(XG + 4), v(XG + 4), v(XG + 5)))
    a('v_cndmask_b32 %s, %s, %s, vcc' % (v(XG + 6), v(XG), v(XG + 1)))
    a('v_mov_b32 %s, %s' % (v(XG + 5), s(sTG0))); a('v_mov_b32 %s, %s' % (v(XG + 7), s(sTG1)))
    oob_unless(T[1], T[1], 'v_cmp_gt_u32 vcc, 2, %s' % v(vL))
    a('s_lshl_b32 %s, %s, 5' % (s(sT0), s(sS)))
    a('s_add_u32 %s, %s, %s' % (s(sT0), s(sT0), s(sT2)))
    a('buffer_store_dwordx4 %s, %s, %s, %s offen sc1' % (v(XG + 4, 4), v(T[1]), s(rWS, 4), s(sT0)))
    newpath('L_mlpub')
    a('s_lshl_b32 %s, %s, 4' % (s(sC0), s(sRB)))
    a('s_min_u32 %s, %s, 4' % (s(sT0), s(sRB)))
    a('s_lshl_b32 %s, %s, 2' % (s(sT0), s(sT0)))
    a('s_add_u32 %s, %s, %s' % (s(sC0), s(sC0), s(sT0)))
    vC8 = T[8]
    a('v_and_b32 %s, 1, %s' % (v(T[0]), v(vG)))
    a('v_lshlrev_b32 %s, 3, %s' % (v(T[0]), v(T[0])))
    a('v_lshl_add_u32 %s, %s, 4, %s' % (v(vC8), v(vN), v(T[0])))
    srd(rB2, pB2, 1152)
    vB2 = 30
    a('s_lshl_b32 %s, %s, 8' % (s(sT1), s(sW)))
    a('s_cmp_eq_u32 s2, 0')
    a('s_cselect_b32 %s, %s, 0x%x' % (s(sT1), s(sT1), OOB))
    a('v_add_u32 %s, %s, %s' % (v(T[1]), s(sT1), v(vC8)))
    a('buffer_load_dwordx2 %s, %s, %s, 0 offen' % (v(vB2, 2), v(T[1]), s(rB2, 4)))
    a('buffer_load_dwordx2 %s, %s, %s, 0 offen offset:256' % (v(vB2 + 2, 2), v(T[1]), s(rB2, 4)))
    HF = 48
    for k in range(20):
        a('v_mov_b32 %s, 0' % v(HF + k))
    a('s_cmp_ge_u32 %s, 36' % s(sCB)); a('s_cbranch_scc1 L_noh')
    srd(rB1, pB1, 9216)
    B1 = 34
    a('s_lshl_b32 %s, %s, 7' % (s(sT0), s(sCB)))
    a('s_add_u32 %s, %s, %s' % (s(sT0), s(sT0), s(sC0)))
    a('s_lshl_b32 %s, %s, 1' % (s(sT0), s(sT0)))
    a('v_lshlrev_b32 %s, 3, %s' % (v(T[0]), v(vG)))
    a('buffer_load_dwordx2 %s, %s, %s, %s offen' % (v(B1, 2), v(T[0]), s(rB1, 4), s(sT0)))
    a('v_lshlrev_b32 %s, 1, %s' % (v(T[0]), v(vG)))
    a('buffer_load_ushort %s, %s, %s, %s offen offset:32' % (v(B1 + 2), v(T[0]), s(rB1, 4), s(sT0)))
    a('v_and_b32 %s, 7, %s' % (v(T[2]), v(vL)))
    a('v_min_u32 %s, 6, %s' % (v(T[2]), v(T[2])))
    a('v_lshlrev_b32 %s, 10, %s' % (v(T[2]), v(T[2])))
    a('v_lshl_add_u32 %s, %s, 9, %s' % (v(T[2]), v(vBB), v(T[2])))
    a('v_lshl_add_u32 %s, %s, 4, %s' % (v(T[3]), v(vG), v(T[2])))
    a('s_mul_i32 %s, %s, %d' % (s(sT1), s(sCB), 7 * 1024))
    a('s_lshl_b32 %s, %s, 2' % (s(sT2), s(sC0)))
    a('s_add_u32 %s, %s, %s' % (s(sT1), s(sT1), s(sT2)))
    a('s_add_u32 %s, %s, 0x%x' % (s(sT1), s(sT1), HX))
    a('s_cmp_lt_u32 %s, 4' % s(sRB))
    a('s_cselect_b32 %s, 64, 0' % s(sT2))
    a('s_add_u32 %s, %s, %s' % (s(sT2), s(sT2), s(sT1)))
    HG = 72
    def h_load():
        a('buffer_load_dwordx4 %s, %s, %s, %s offen sc1' % (v(HG, 4), v(T[3]), s(rWS, 4), s(sT1)))
        a('buffer_load_dwordx4 %s, %s, %s, %s offen sc1' % (v(HG + 4, 4), v(T[2]), s(rWS, 4), s(sT2)))
    poll('h', h_load, lambda: decode([HG, HG + 4], T[0]), sleep=P.h_sleep)
    for k in range(1, 4):
        a('v_cmp_eq_u32 vcc, %d, %s' % (k, v(vG)))
        a('v_cndmask_b32 %s, %s, %s, vcc' % (v(HG + 4), v(HG + 4), v(HG + 4 + k)))
    smask(0x7f7f)
    HV = [HG + k for k in range(5)]
    for x in HV:
        a('v_cndmask_b32 %s, 0, %s, %s' % (v(x), v(x), s(sM, 2)))
    red8(HV, 'v_add_f32')
    Z = [80 + k for k in range(5)]
    for k in range(5):
        if k == 4:
            a('v_lshlrev_b32 %s, 16, %s' % (v(Z[k]), v(B1 + 2)))
        elif k & 1:
            a('v_and_b32 %s, %s, %s' % (v(Z[k]), s(sHI), v(B1 + k // 2)))
        else:
            a('v_lshlrev_b32 %s, 16, %s' % (v(Z[k]), v(B1 + k // 2)))
        a('v_add_f32 %s, %s, %s' % (v(HV[k]), v(HV[k]), v(Z[k])))
    a('v_mov_b32 %s, %s' % (v(T[0]), s(sG0))); a('v_mov_b32 %s, %s' % (v(T[1]), s(sG1)))
    a('v_cndmask_b32 %s, %s, %s, %s' % (v(T[0]), v(T[0]), v(T[1]), s(sBB, 2)))
    a('v_sub_f32 %s, 1.0, %s' % (v(T[0]), v(T[0])))
    kz = -2.0 * math.sqrt(2.0 / math.pi) * math.log2(math.e)
    steps = [
        lambda x, z: a('v_mul_f32 %s, %s, %s' % (v(z), v(x), v(x))),
        lambda x, z: a('v_mul_f32 %s, 0x%x, %s' % (v(z), f2u(0.044715), v(z))),
        lambda x, z: a('v_add_f32 %s, 1.0, %s' % (v(z), v(z))),
        lambda x, z: a('v_mul_f32 %s, %s, %s' % (v(z), v(z), v(x))),
        lambda x, z: a('v_mul_f32 %s, 0x%x, %s' % (v(z), f2u(kz), v(z))),
        lambda x, z: a('v_exp_f32 %s, %s' % (v(z), v(z))),
        lambda x, z: a('v_add_f32 %s, 1.0, %s' % (v(z), v(z))),
        lambda x, z: a('v_rcp_f32 %s, %s' % (v(z), v(z))),
        lambda x, z: a('v_mul_f32 %s, %s, %s' % (v(x), v(x), v(T[0]))),
        lambda x, z: a('v_mul_f32 %s, %s, %s' % (v(x), v(x), v(z))),
        lambda x, z: a('v_cvt_pk_bf16_f32 %s, %s, %s' % (v(x), v(x), v(x))),
    ]
    for st in steps:
        for k in range(5):
            st(HV[k], Z[k])
    for k in range(4):
        delta(HF + 4 * k, HV[k])
    a('s_cmp_ge_u32 %s, 4' % s(sRB)); a('s_cbranch_scc1 L_noh')
    delta(HF + 16, HV[4])
    newpath('L_noh')
    a.wait_vm0()
    PA = [36, 40]
    for k in range(2):
        for r in range(4):
            if r & 1:
                a('v_and_b32 %s, %s, %s' % (v(PA[k] + r), s(sHI), v(vB2 + 2 * k + r // 2)))
            else:
                a('v_lshlrev_b32 %s, 16, %s' % (v(PA[k] + r), v(vB2 + 2 * k + r // 2)))
            a('v_mul_f32 %s, %s, %s' % (v(PA[k] + r), v(PA[k] + r), v(vOMG)))
    srd(rWO, pWO, 4096 * 1152)
    srd(rW2, pW2, 4608 * 1152)
    vW2o, vW2o2, vWoo, vW2h, vW2h2, vWoh, vYS, vYH, vXA, vXM, vWT = 30, 31, 32, 33, 34, 35, 44, 45, 46, 47, 68
    sW2, sW2b, sWO, sYS, sOG = 88, 89, 100, 101, 15
    a('v_mul_u32_u24 %s, 0x1200, %s' % (v(vWoo), v(vG)))
    a('v_lshl_add_u32 %s, %s, 4, %s' % (v(vWoo), v(vN), v(vWoo)))
    if P.no_def:
        a('v_mov_b32 %s, 0x%x' % (v(vWoo), OOB))
    a('s_cmp_lt_u32 %s, 36' % s(sCB))
    a('s_cselect_b32 %s, 0, 0x%x' % (s(sT0), OOB))
    a('v_or_b32 %s, %s, %s' % (v(vW2o), s(sT0), v(vWoo)))
    a('s_cmp_lt_u32 %s, 4' % s(sRB))
    a('s_cselect_b32 %s, %s, 0x%x' % (s(sT0), s(sT0), OOB))
    a('v_mul_u32_u24 %s, 0x480, %s' % (v(vW2o2), v(vG)))
    a('v_lshl_add_u32 %s, %s, 4, %s' % (v(vW2o2), v(vN), v(vW2o2)))
    a('v_or_b32 %s, %s, %s' % (v(vW2o2), s(sT0), v(vW2o2)))
    a('v_lshrrev_b32 %s, 5, %s' % (v(T[1]), v(vL)))
    a('v_mul_u32_u24 %s, 0x900, %s' % (v(T[1]), v(T[1])))
    a('v_lshl_add_u32 %s, %s, 1, %s' % (v(vYS), v(vC8), v(T[1])))
    a('v_cmp_gt_u32 vcc, 8, %s' % v(vN))
    a('v_mov_b32 %s, 0x%x' % (v(tO), OOB))
    for d_, s_ in ((vW2h, vW2o), (vW2h2, vW2o2), (vWoh, vWoo), (vYH, vYS)):
        a('v_cndmask_b32 %s, %s, %s, vcc' % (v(d_), v(tO), v(s_)))
    a('s_lshl_b32 %s, %s, 8' % (s(sT1), s(sW)))
    a('s_min_u32 %s, %s, 35' % (s(sW2), s(sCB)))
    a('s_lshl_b32 %s, %s, 7' % (s(sW2), s(sW2)))
    a('s_add_u32 %s, %s, %s' % (s(sW2), s(sW2), s(sC0)))
    a('s_mul_i32 %s, %s, 0x480' % (s(sW2), s(sW2)))
    a('s_add_u32 %s, %s, %s' % (s(sW2), s(sW2), s(sT1)))
    a('s_cmp_lt_u32 %s, 4' % s(sRB))
    a('s_cselect_b32 %s, %d, 0' % (s(sW2b), 16 * 1152))
    a('s_add_u32 %s, %s, %s' % (s(sW2b), s(sW2b), s(sW2)))
    a('s_mul_i32 %s, %s, %d' % (s(sWO), s(sLID), 16 * 1152))
    a('s_add_u32 %s, %s, %s' % (s(sWO), s(sWO), s(sT1)))
    a('s_mul_i32 %s, s2, 4608' % s(sYS))
    a('s_lshl_b32 %s, %s, 9' % (s(sT1), s(sW)))
    a('s_add_u32 %s, %s, %s' % (s(sYS), s(sYS), s(sT1)))
    a('s_lshl_b32 %s, %s, 10' % (s(sOG), s(sHG)))
    a('s_add_u32 %s, %s, 0x%x' % (s(sOG), s(sOG), OX))
    a('v_and_b32 %s, 7, %s' % (v(T[1]), v(vL)))
    a('v_lshlrev_b32 %s, 5, %s' % (v(vXM), v(T[1])))
    a('v_lshl_add_u32 %s, %s, 4, %s' % (v(vXM), v(vBB), v(vXM)))
    a('v_lshlrev_b32 %s, 10, %s' % (v(vXA), v(T[1])))
    a('v_lshl_add_u32 %s, %s, 9, %s' % (v(vXA), v(vBB), v(vXA)))
    a('v_lshl_add_u32 %s, %s, 4, %s' % (v(vXA), v(vG), v(vXA)))
    a('s_lshl_b32 %s, %s, 6' % (s(sT1), s(sS)))
    a('v_add_u32 %s, %s, %s' % (v(vXA), s(sT1), v(vXA)))
    stamp(11)
    a('s_lshl_b32 s7, %s, 5' % s(sHG))
    a('s_add_u32 s7, s7, 0x%x' % MLX)
    def ml_load():
        a('buffer_load_dwordx4 %s, %s, %s, %s offen sc1' % (v(XG, 4), v(vXM), s(rWS, 4), 's7'))
    def ml_check():
        a('v_xor_b32 %s, %s, %s' % (v(T[2]), s(sTG0), v(XG + 1)))
        a('v_xor_b32 %s, %s, %s' % (v(T[3]), s(sTG1), v(XG + 3)))
        a('v_or_b32 %s, %s, %s' % (v(T[2]), v(T[2]), v(T[3])))
        a('v_cmp_ne_u32 vcc, 0, %s' % v(T[2]))
    lds_wait('fd', FD, P.defer_n, T[0], T[4], 2)
    stamp(7)
    ml_load()
    WD = 72
    WH = 108
    def wloads(dst, o2, o2b, oo, extra):
        for i in range(4):
            a('buffer_load_dwordx4 %s, %s, %s, %s offen offset:%d%s' % (v(dst + 4 * i, 4), v(o2), s(rW2, 4), s(sW2), 1152 * i + extra, wnt))
        a('buffer_load_dwordx4 %s, %s, %s, %s offen offset:%d%s' % (v(dst + 16, 4), v(o2b), s(rW2, 4), s(sW2b), extra, wnt))
        for i in range(4):
            a('buffer_load_dwordx4 %s, %s, %s, %s offen offset:%d%s' % (v(dst + 20 + 4 * i, 4), v(oo), s(rWO, 4), s(sWO), 1152 * i + extra, wnt))
    wloads(WD, vW2o, vW2o2, vWoo, 0)
    a('s_cmp_lg_u32 %s, 3' % s(sW)); a('s_cbranch_scc1 L_now')
    wloads(WH, vW2h, vW2h2, vWoh, 256)
    newpath('L_now')
    a('s_barrier')
    a.wait_vm0()
    stamp(12)
    for i in range(5):
        mfma(PA[0], HF + 4 * i, WD + 4 * i, 1)
    a('s_cmp_lg_u32 %s, 3' % s(sW)); a('s_cbranch_scc1 L_now2')
    for i in range(5):
        mfma(PA[1], HF + 4 * i, WH + 4 * i, 1)
    a.label('L_now2')
    XO = 148
    o_load = lambda: a('buffer_load_dwordx4 %s, %s, %s, %s offen sc1' % (v(XO, 4), v(vXA), s(rWS, 4), s(sOG)))
    o_load()
    poll('ml', ml_load, ml_check, sleep=4, first_done=True)
    a('v_mov_b32 %s, %s' % (v(vWT), v(XG)))
    red8([vWT], 'v_max_f32')
    a('v_sub_f32 %s, %s, %s' % (v(vWT), v(XG), v(vWT)))
    a('v_exp_f32 %s, %s' % (v(vWT), v(vWT)))
    a('v_mul_f32 %s, %s, %s' % (v(XG + 2), v(XG + 2), v(vWT)))
    red8([XG + 2], 'v_add_f32')
    a('v_rcp_f32 %s, %s' % (v(XG + 2), v(XG + 2)))
    a('v_mov_b32 %s, %s' % (v(T[0]), s(sG0))); a('v_mov_b32 %s, %s' % (v(T[1]), s(sG1)))
    a('v_cndmask_b32 %s, %s, %s, %s' % (v(T[0]), v(T[0]), v(T[1]), s(sBB, 2)))
    a('v_mul_f32 %s, %s, %s' % (v(vWT), v(vWT), v(XG + 2)))
    a('v_mul_f32 %s, %s, %s' % (v(vWT), v(vWT), v(T[0])))
    a.wait_vm0()
    poll('o', o_load, lambda: decode([XO], T[0]), masked=True, first_done=True)
    stamp(13)
    U = [XO + i for i in range(4)]
    for x in U:
        a('v_mul_f32 %s, %s, %s' % (v(x), v(x), v(vWT)))
    red8(U, 'v_add_f32')
    AQ = 48
    for i in range(4):
        a('v_cvt_pk_bf16_f32 %s, %s, %s' % (v(U[i]), v(U[i]), v(U[i])))
    for i in range(4):
        delta(AQ + 4 * i, U[i])
    for i in range(4):
        mfma(PA[0], AQ + 4 * i, WD + 20 + 4 * i, 1)
    a('s_cmp_lg_u32 %s, 3' % s(sW)); a('s_cbranch_scc1 L_now3')
    for i in range(4):
        mfma(PA[1], AQ + 4 * i, WH + 20 + 4 * i, 1)
    encode(PA[1], PA[1], vHM)
    a('buffer_store_dwordx4 %s, %s, %s, %s offen offset:512 sc1' % (v(PA[1], 4), v(vYH), s(rWS, 4), s(sYS)))
    a.label('L_now3')
    a('s_nop 5')
    encode(PA[0], PA[0], vHM)
    a('buffer_store_dwordx4 %s, %s, %s, %s offen sc1' % (v(PA[0], 4), v(vYS), s(rWS, 4), s(sYS)))
    stamp(14)
    stamp_flush()
    a.label('L_end')
    a('s_endpgm')
    a.raw('.section .rodata,"a"')
    a.raw('.p2align 6')
    a.raw('.amdhsa_kernel ' + K1)
    a.raw('  .amdhsa_next_free_vgpr %d' % NV)
    a.raw('  .amdhsa_next_free_sgpr 102')
    a.raw('  .amdhsa_accum_offset %d' % NV)
    a.raw('  .amdhsa_group_segment_fixed_size 0')
    a.raw('  .amdhsa_kernarg_size 112')
    a.raw('  .amdhsa_user_sgpr_count 2')
    a.raw('  .amdhsa_user_sgpr_kernarg_segment_ptr 1')
    a.raw('  .amdhsa_system_sgpr_workgroup_id_x 1')
    a.raw('  .amdhsa_float_denorm_mode_32 3')
    a.raw('.end_amdhsa_kernel')
    launch = '; @launch grid=(256,1,1) block=(768,1,1) lds=%d\n' % LDS_BYTES
    return HEADER + launch + a.text()

def parse(argv=None):
    ap = argparse.ArgumentParser()
    ap.add_argument('-o', default=None)
    for k, d in (('depth', 4), ('batch', 2), ('pre', 22), ('dmid', 6), ('kick', 0), ('kfl', 1), ('vfl', 1), ('wfl', 1),
                 ('diag', 0), ('endspin', 0), ('until', 0), ('xprobe', 0), ('no_w1', 0), ('no_wq', 0), ('no_def', 0), ('defer_at', 61), ('defer_n', 8), ('q_sleep', 8), ('h_sleep', 16), ('prog_at', 14), ('prog_n', 4), ('w_sleep', 4), ('y_delay', 16)):
        ap.add_argument('--' + k, type=int, default=d)
    ap.add_argument('--spin', type=lambda x: int(x, 0), default=0x40000)
    return ap.parse_args(argv)

if __name__ == '__main__':
    P = parse()
    txt = gen(P)
    out = P.o or os.path.join(os.path.dirname(os.path.abspath(__file__)), '..', 'cdna_kernels', NAME + '.s')
    open(out, 'w').write(txt)
    print('wrote', out, len(txt), 'bytes; lds', LDS_BYTES)
```

```python
import sys, os, math, struct, argparse
sys.path.insert(0, os.path.dirname(os.path.abspath(__file__)))
from asmlib import Asm

NAME = 'gated_mix__mha_block_cached__mixer_channel_mlp__decode'
def f2u(x):
    return struct.unpack('<I', struct.pack('<f', x))[0]
HEADER = open(os.path.join(os.path.dirname(os.path.abspath(__file__)), '..', 'cdna_kernels', NAME + '.s.ref')).read().split('; Override launch')[0]

LS, FQ, FD, FP, QB, YT = 0, 128, 132, 136, 256, 768
YP = 592 * 4
OBUF = YT + 2 * YP
RED = OBUF + 8 * 1024
LDS_BYTES = RED + 1024
QX = 256 * 4608
HX = QX + 256 * 1024
OX = HX + 256 * 1024
MLX = OX + 256 * 1024
EP = MLX + 256 * 32
WS_BYTES = EP + 128
DIAG = 0x400000
OOB = 0x80000000
NV = 168

def gen(P):
    a = Asm()
    FL = {0: '', 1: ' nt', 2: ' sc1', 3: ' sc0 sc1', 4: ' sc1 nt', 5: ' sc0 sc1 nt'}
    wnt = FL[P.wfl]
    D = P.depth
    vL = 1; MASK = 4; AF = [8, 12]
    sW, sH, sS, sHG, sKV, sT0, sT1, sT2, sG, sSPIN = 3, 4, 5, 6, 8, 9, 10, 11, 12, 13
    pX, pK, pV, pWQ, pWO, pW1, pB1, pW2, pB2, pGW, pOUT, pDBG, pWS = 16, 18, 20, 22, 24, 28, 30, 32, 34, 36, 38, 40, 42
    rK, rV, rWA, rWO, rW2, rWS, rB1, rB2 = 44, 48, 52, 56, 64, 68, 76, 96
    sG0, sG1, sTG0, sTG1 = 84, 85, 86, 87
    sTK = 72
    sHI, sC, sBB, sM = 90, 91, 92, 94
    sST = 26
    def v(n, k=1):
        assert n + k <= NV, n
        return 'v%d' % n if k == 1 else 'v[%d:%d]' % (n, n + k - 1)
    def s(n, k=1):
        return 's%d' % n if k == 1 else 's[%d:%d]' % (n, n + k - 1)
    def srd(r, p, nbytes):
        a('s_mov_b32 %s, %s' % (s(r), s(p)))
        a('s_mov_b32 %s, %s' % (s(r + 1), s(p + 1)))
        a('s_mov_b32 %s, 0x%x' % (s(r + 2), nbytes))
        a('s_mov_b32 %s, 0x20000' % s(r + 3))
    def smask(val16):
        w = val16 | (val16 << 16)
        a('s_mov_b32 %s, 0x%x' % (s(sM), w)); a('s_mov_b32 %s, 0x%x' % (s(sM + 1), w))
    DPP = ' row_mask:0xf bank_mask:0xf'
    VS = 71
    def stamp(n):
        if not P.diag:
            return
        a('s_memrealtime %s' % s(sST, 2))
        a('s_waitcnt lgkmcnt(0)')
        a('v_writelane_b32 v%d, %s, %d' % (VS, s(sST), n))
    def stamp_flush():
        if not P.diag:
            return
        a('s_mov_b64 exec, -1')
        a('s_mul_i32 s100, s2, 12'); a('s_add_u32 s100, s100, %s' % s(sW)); a('s_lshl_b32 s100, s100, 7')
        a('s_add_u32 s100, s100, 0x%x' % DIAG)
        a('v_lshlrev_b32 v70, 2, %s' % v(vL))
        a('s_mov_b32 exec_hi, 0')
        a('buffer_store_dword v%d, v70, %s, s100 offen' % (VS, s(rWS, 4)))
    def red32(xs, ts, op):
        for d in ('quad_perm:[1,0,3,2]', 'quad_perm:[2,3,0,1]', 'row_ror:4', 'row_ror:8'):
            for x in xs:
                a('%s_dpp %s, %s, %s %s%s' % (op, v(x), v(x), v(x), d, DPP))
        for x, t in zip(xs, ts):
            a('v_mov_b32 %s, %s' % (v(t), v(x)))
        for x, t in zip(xs, ts):
            a('v_permlane16_swap_b32 %s, %s' % (v(x), v(t)))
        for x, t in zip(xs, ts):
            a('%s %s, %s, %s' % (op, v(x), v(x), v(t)))
    def redquads64(xs, ts, op):
        for d in ('row_ror:4', 'row_ror:8'):
            for x in xs:
                a('%s_dpp %s, %s, %s %s%s' % (op, v(x), v(x), v(x), d, DPP))
        for sw in ('v_permlane16_swap_b32', 'v_permlane32_swap_b32'):
            for x, t in zip(xs, ts):
                a('v_mov_b32 %s, %s' % (v(t), v(x)))
            for x, t in zip(xs, ts):
                a('%s %s, %s' % (sw, v(x), v(t)))
            for x, t in zip(xs, ts):
                a('%s %s, %s, %s' % (op, v(x), v(x), v(t)))
    def red8(xs, op):
        for d in ('quad_perm:[1,0,3,2]', 'quad_perm:[2,3,0,1]', 'row_half_mirror'):
            for x in xs:
                a('%s_dpp %s, %s, %s %s%s' % (op, v(x), v(x), v(x), d, DPP))
    def delta(dst, src):
        for d in range(4):
            a('v_and_b32 %s, %s, %s' % (v(dst + d), v(src), v(MASK + d)))
    def mfma(d, A, B, c=None):
        a('v_mfma_f32_16x16x32_bf16 %s, %s, %s, %s' % (v(d, 4), v(A, 4), v(B, 4), '0' if c is None else v(d, 4)))
    def masks(t0, t1):
        a('v_and_b32 %s, 1, %s' % (v(t0), v(vL)))
        a('v_lshlrev_b32 %s, 4, %s' % (v(t0), v(t0)))
        a('v_mov_b32 %s, 0xffff' % v(t1))
        a('v_lshlrev_b32 %s, %s, %s' % (v(t0), v(t0), v(t1)))
        for d in range(4):
            smask(0x0303 << (2 * d))
            a('v_cndmask_b32 %s, 0, %s, %s' % (v(MASK + d), v(t0), s(sM, 2)))
    def epoch_load():
        a('s_add_u32 s72, %s, 0x%x' % (s(pWS), EP)); a('s_addc_u32 s73, %s, 0' % s(pWS + 1))
        a('s_load_dwordx2 %s, s[72:73], 0' % s(sTG0, 2))
    def epoch_tags():
        a('s_add_u32 %s, %s, 1' % (s(sTG0), s(sTG0)))
        a('s_add_u32 %s, %s, 0x9e3779b9' % (s(sTG1), s(sTG1)))
        a('s_and_b32 s72, %s, 0xfff' % s(sTG0))
        a('s_and_b32 s73, %s, 0xfff' % s(sTG1))
        a('s_bfe_u32 s74, %s, 0xc000c' % s(sTG1))
        a('s_lshr_b32 s75, %s, 20' % s(sTG1))
    def encode(dst, src, vm):
        for r in range(4):
            a('v_add_u32 %s, 0x800, %s' % (v(dst + r), v(src + r)))
        for r in range(4):
            a('v_and_or_b32 %s, %s, %s, %s' % (v(dst + r), v(dst + r), v(vm), s(sTK + r)))
    def decode(regs, t):
        for g in regs:
            for r in range(4):
                a('v_xor_b32 %s, %s, %s' % (v(g + r), s(sTK + r), v(g + r)))
        flat = [g + r for g in regs for r in range(4)]
        a('v_or3_b32 %s, %s, %s, %s' % (v(t), v(flat[0]), v(flat[1]), v(flat[2])))
        k = 3
        while k + 1 < len(flat):
            a('v_or3_b32 %s, %s, %s, %s' % (v(t), v(t), v(flat[k]), v(flat[k + 1]))); k += 2
        if k < len(flat):
            a('v_or_b32 %s, %s, %s' % (v(t), v(t), v(flat[k])))
        a('v_and_b32 %s, 0xfff, %s' % (v(t), v(t)))
        a('v_cmp_ne_u32 vcc, 0, %s' % v(t))
    def poll(name, load, check, lds=False, sleep=0, masked=False, first_done=False):
        a('s_mov_b32 %s, 0x%x' % (s(sSPIN), P.spin))
        if first_done:
            a('s_branch L_%s_chk' % name)
        elif sleep or masked:
            a('s_branch L_%s_go' % name)
        a.label('L_%s_spin' % name)
        if masked:
            a('s_mov_b64 exec, vcc')
        if sleep:
            a('s_sleep %d' % sleep)
        a.label('L_%s_go' % name)
        load()
        if lds:
            a('s_waitcnt lgkmcnt(0)')
        else:
            a.wait_vm0()
        a.label('L_%s_chk' % name)
        check()
        a('s_sub_u32 %s, %s, 1' % (s(sSPIN), s(sSPIN)))
        a('s_cbranch_scc1 L_%s_ok' % name)
        a('s_cbranch_vccnz L_%s_spin' % name)
        a.label('L_%s_ok' % name)
        if masked:
            a('s_mov_b64 exec, -1')
    def lds_count(flag, t0, t1):
        a('v_mov_b32 %s, 0' % v(t0)); a('v_mov_b32 %s, 1' % v(t1))
        a('s_mov_b64 exec, 1')
        a('ds_add_u32 %s, %s offset:%d' % (v(t0), v(t1), flag))
        a('s_mov_b64 exec, -1')
    def lds_wait(name, flag, n, t0, tz, sleep):
        a('v_mov_b32 %s, 0' % v(tz))
        poll(name, lambda: a('ds_read_b32 %s, %s offset:%d' % (v(t0), v(tz), flag)), lambda: a('v_cmp_gt_u32 vcc, %d, %s' % (n, v(t0))), lds=True, sleep=sleep)
    def newpath(name):
        a.label(name); a.hist = []; a.vm = []
    WSB = (DIAG + 0x80000) if P.diag else WS_BYTES

    K1 = NAME + '_kernel'
    a.raw('.amdgcn_target "amdgcn-amd-amdhsa--gfx950"')
    a.raw('.text'); a.raw('.globl ' + K1); a.raw('.p2align 8'); a.raw('.type %s,@function' % K1)
    a.label(K1)
    a('s_cmp_ge_u32 s2, 256'); a('s_cbranch_scc1 L_end')
    if P.until:
        a('s_memrealtime s[78:79]')
    a('s_load_dwordx16 s[16:31], s[0:1], 0')
    a('s_load_dwordx8 s[32:39], s[0:1], 64')
    a('s_load_dwordx4 s[40:43], s[0:1], 96')
    a('v_lshrrev_b32 v2, 6, v0')
    a('v_and_b32 %s, 63, v0' % v(vL))
    a('v_readfirstlane_b32 %s, v2' % s(sW))
    a('s_and_b32 %s, s2, 7' % s(sT0))
    a('s_lshr_b32 %s, s2, 3' % s(sT1))
    a('s_and_b32 %s, %s, 3' % (s(sH), s(sT1)))
    a('s_lshl_b32 %s, %s, 2' % (s(sT2), s(sT0)))
    a('s_add_u32 %s, %s, %s' % (s(sH), s(sH), s(sT2)))
    a('s_lshr_b32 %s, %s, 2' % (s(sS), s(sT1)))
    a('s_lshl_b32 %s, %s, 3' % (s(sHG), s(sH)))
    if P.diag:
        a('v_mov_b32 v%d, 0' % VS)
    a('s_cmp_lt_u32 %s, 4' % s(sW)); a('s_cbranch_scc1 L_helper')

    vKo, vVo = 2, 3
    BQ = 16; QV = 32; SC = 40; SACC = [48, 52]; OA = [56, 60]; T = list(range(64, 70))
    RB = 72; RN = (NV - RB) // 4
    sSW = 14
    a('s_sub_u32 %s, %s, 4' % (s(sSW), s(sW)))
    a('s_lshl_b32 %s, %s, 20' % (s(sKV), s(sH)))
    a('s_lshl_b32 %s, %s, 17' % (s(sT2), s(sS))); a('s_add_u32 %s, %s, %s' % (s(sKV), s(sKV), s(sT2)))
    a('s_lshl_b32 %s, %s, 12' % (s(sT2), s(sSW))); a('s_add_u32 %s, %s, %s' % (s(sKV), s(sKV), s(sT2)))
    a('v_lshrrev_b32 %s, 4, %s' % (v(T[1]), v(vL)))
    a('v_lshlrev_b32 %s, 4, %s' % (v(vVo), v(vL)))
    a('v_bfe_u32 %s, %s, 2, 2' % (v(T[0]), v(vL)))
    a('v_lshlrev_b32 %s, 8, %s' % (v(vKo), v(T[0])))
    a('v_lshl_add_u32 %s, %s, 6, %s' % (v(vKo), v(T[1]), v(vKo)))
    a('v_and_b32 %s, 3, %s' % (v(T[0]), v(vL)))
    a('v_lshl_add_u32 %s, %s, 4, %s' % (v(vKo), v(T[0]), v(vKo)))
    a('s_waitcnt lgkmcnt(0)')
    srd(rK, pK, 1 << 26)
    stamp(0)
    ip = [0]; cp = [0]
    def issue_one():
        j = ip[0]; ip[0] += 1
        assert j - RN < cp[0]
        n, i = j >> 2, j & 3
        if i == 0:
            g = n & 7
            a('s_add_u32 %s, %s, 0x%x' % (s(sG), s(sKV), ((g >> 2) << 25) + ((g & 3) << 15)))
        a('buffer_load_dwordx4 %s, %s, %s, %s offen offset:%d%s' % (
            v(RB + 4 * (j % RN), 4), v(vKo if j < 32 else vVo), s(rK if j < 32 else rV, 4), s(sG), 1024 * i, FL[P.kfl if j < 32 else P.vfl]), tag='L%d' % j)
    B = P.batch
    for _ in range(D):
        issue_one()
    epoch_load()
    srd(rV, pV, 1 << 26)
    srd(rWS, pWS, WSB)
    a('s_mov_b32 %s, 0x%x' % (s(sC), f2u(math.log2(math.e) / math.sqrt(128.0))))
    a('v_lshl_add_u32 %s, %s, 2, %s' % (v(T[2]), v(T[1]), v(T[0])))
    a('v_lshlrev_b32 %s, 4, %s' % (v(T[2]), v(T[2])))
    a('v_mov_b32 %s, 0' % v(T[3]))
    masks(T[0], T[1])
    a('s_barrier')
    assert P.pre <= RN
    while ip[0] < P.pre:
        a.wait_vm('L%d' % (ip[0] - D + B - 1))
        for _ in range(B):
            issue_one()
        if ip[0] - B < P.prog_at <= ip[0]:
            lds_count(FP, T[0], T[1])
    stamp(1)
    poll('fq', lambda: a('ds_read_b32 %s, %s offset:%d' % (v(T[0]), v(T[3]), FQ)), lambda: a('v_cmp_eq_u32 vcc, 0, %s' % v(T[0])), lds=True, sleep=1)
    a('ds_read_b128 %s, %s offset:%d' % (v(QV, 4), v(T[2]), QB))
    a('ds_read_b128 %s, %s offset:%d' % (v(QV + 4, 4), v(T[2]), QB + 256))
    epoch_tags()
    a('s_waitcnt lgkmcnt(0)')
    def qfrag(b):
        for i in range(4):
            smask(0xf << (4 * i))
            for d in range(4):
                a('v_cndmask_b32 %s, 0, %s, %s' % (v(BQ + 4 * i + d), v(QV + 4 * b + d), s(sM, 2)))
    stamp(2)
    def score(n):
        acc = SACC[n & 1]
        a('v_mov_b32_dpp %s, %s quad_perm:[0,0,0,0]%s' % (v(SC + n), v(acc), DPP))
        for c in range(1, 4):
            a('v_add_f32_dpp %s, %s, %s quad_perm:[%d,%d,%d,%d]%s' % (v(SC + n), v(acc + c), v(SC + n), c, c, c, c, DPP))
    def refill(j, depth=None):
        cp[0] = j + 1
        if (j + 1) % B == 0:
            while ip[0] < min(64, j + 1 + (depth or D)):
                issue_one()
    for n in range(8):
        if n % 4 == 0:
            qfrag(n >> 2)
        for i in range(4):
            j = 4 * n + i
            a.wait_vm('L%d' % j)
            mfma(SACC[n & 1], RB + 4 * (j % RN), BQ + 4 * i, None if i == 0 else 1)
            if n == 0 and i < P.kick:
                cp[0] = j + 1
                issue_one()
            refill(j, P.dmid if j == 31 else None)
        if n > 0:
            score(n - 1)
    score(7)
    stamp(3)
    ML = 16; vMC = 18; vHM = 24; vOW = 28; vSCL = 29; vRO = 31; QR = 72; LSR = 20; vRW, vRR, vOO = 25, 26, 27
    for b in range(2):
        a('v_max3_f32 %s, %s, %s, %s' % (v(vMC + b), v(SC + 4 * b), v(SC + 4 * b + 1), v(SC + 4 * b + 2)))
        a('v_max_f32 %s, %s, %s' % (v(vMC + b), v(vMC + b), v(SC + 4 * b + 3)))
    redquads64([vMC, vMC + 1], [T[0], T[1]], 'v_max_f32')
    for b in range(2):
        a('v_mul_f32 %s, %s, %s' % (v(vMC + b), s(sC), v(vMC + b)))
    for n in range(8):
        a('v_fma_f32 %s, %s, %s, -%s' % (v(SC + n), v(SC + n), s(sC), v(vMC + (n >> 2))))
    for n in range(8):
        a('v_exp_f32 %s, %s' % (v(SC + n), v(SC + n)))
    for b in range(2):
        L_ = ML + b
        a('v_add_f32 %s, %s, %s' % (v(L_), v(SC + 4 * b), v(SC + 4 * b + 1)))
        a('v_add_f32 %s, %s, %s' % (v(L_), v(L_), v(SC + 4 * b + 2)))
        a('v_add_f32 %s, %s, %s' % (v(L_), v(L_), v(SC + 4 * b + 3)))
    for n in range(8):
        a('v_cvt_pk_bf16_f32 %s, %s, %s' % (v(SC + n), v(SC + n), v(SC + n)))
    sOP = 88
    def tail_prep():
        redquads64([ML, ML + 1], [T[0], T[1]], 'v_add_f32')
        a('s_lshl_b32 %s, %s, 4' % (s(sT0), s(sSW)))
        a('v_mov_b32 %s, %s' % (v(T[0]), s(sT0)))
        a('ds_write_b128 %s, %s offset:%d' % (v(T[0]), v(ML, 4), LS))
        a('v_subrev_u32 v0, 256, v0')
        a('v_lshrrev_b32 %s, 5, v0' % v(T[1]))
        a('v_and_b32 %s, 15, %s' % (v(T[2]), v(vL)))
        a('v_lshlrev_b32 %s, 5, %s' % (v(T[2]), v(T[2])))
        a('v_and_b32 %s, 16, %s' % (v(T[3]), v(vL)))
        a('v_add_u32 %s, %s, %s' % (v(T[2]), v(T[2]), v(T[3])))
        a('v_lshl_add_u32 %s, %s, 9, %s' % (v(vOW), v(T[1]), v(T[2])))
        a('s_add_u32 %s, %s, %s' % (s(sOP), s(sHG), s(sS)))
        a('s_lshl_b32 %s, %s, 10' % (s(sOP), s(sOP)))
        a('s_add_u32 %s, %s, 0x%x' % (s(sOP), s(sOP), OX))
        a('v_mov_b32 %s, 0xfffff000' % v(vHM))
        a('v_lshrrev_b32 %s, 3, %s' % (v(vRO), v(vL)))
        a('v_lshl_add_u32 %s, %s, 3, %s' % (v(vRO), v(vRO), s(sSW)))
        a('v_mul_u32_u24 %s, 0x1200, %s' % (v(vRO), v(vRO)))
        a('s_and_b32 s89, %s, 3' % s(sH))
        a('s_lshl_b32 %s, %s, 2' % (s(sT0), s(sSW)))
        a('s_add_u32 s89, s89, %s' % s(sT0))
        a('s_lshl_b32 s89, s89, 3')
        a('s_add_u32 s89, s89, %s' % s(sS))
        a('s_lshl_b32 s89, s89, 10')
        a('s_and_b32 %s, s2, 7' % s(sT0))
        a('s_lshl_b32 %s, %s, 7' % (s(sT0), s(sT0)))
        a('s_add_u32 s89, s89, %s' % s(sT0))
        a('s_add_u32 s89, s89, 0x%x' % OX)
        a('v_and_b32 %s, 7, v0' % v(T[0]))
        a('v_lshl_add_u32 %s, %s, 4, %s' % (v(vRO), v(T[0]), v(vRO)))
        a('s_lshl_b32 s96, s2, 7')
        for k in range(1, 4):
            a('s_add_u32 s%d, s96, %d' % (96 + k, k * 64 * 4608))
        a('v_lshlrev_b32 %s, 4, %s' % (v(vRW), v(T[0])))
        a('s_lshl_b32 %s, %s, 7' % (s(sT0), s(sSW)))
        a('v_add_u32 %s, %s, %s' % (v(vRW), s(sT0), v(vRW)))
        a('v_and_b32 %s, 31, %s' % (v(vRR), v(vL)))
        a('v_lshlrev_b32 %s, 1, %s' % (v(vOO), v(vRR)))
        a('s_lshl_b32 %s, s2, 6' % s(sT0))
        a('v_add_u32 %s, %s, %s' % (v(vOO), s(sT0), v(vOO)))
        a('v_lshlrev_b32 %s, 2, %s' % (v(vRR), v(vRR)))
        a('v_lshrrev_b32 %s, 5, %s' % (v(T[0]), v(vL)))
        a('v_lshl_add_u32 %s, %s, 9, %s' % (v(vRR), v(T[0]), v(vRR)))
        a('v_add_u32 %s, %d, %s' % (v(vRR), RED, v(vRR)))
    def ls_check(r, t):
        a('v_min_u32 %s, %s, %s' % (v(t), v(r), v(r + 1)))
        a('v_cmp_eq_u32 vcc, 0, %s' % v(t))
    def scale_prep():
        a('v_and_b32 %s, 7, %s' % (v(T[1]), v(vL)))
        a('v_lshlrev_b32 %s, 4, %s' % (v(T[1]), v(T[1])))
        poll('ls', lambda: a('ds_read_b128 %s, %s offset:%d' % (v(LSR, 4), v(T[1]), LS)), lambda: ls_check(LSR, T[0]), lds=True, sleep=1)
        red8([LSR + 2, LSR + 3], 'v_max_f32')
        for b in range(2):
            a('v_sub_f32 %s, %s, %s' % (v(LSR + 2 + b), v(vMC + b), v(LSR + 2 + b)))
        a('v_exp_f32 %s, %s' % (v(LSR + 2), v(LSR + 2)))
        a('v_exp_f32 %s, %s' % (v(vSCL), v(LSR + 3)))
        for r in range(4):
            a('v_mul_f32 %s, %s, %s' % (v(OA[0] + r), v(OA[0] + r), v(LSR + 2)))
    for n in range(8, 16):
        for r in range(4):
            j = 4 * n + r
            A = AF[r & 1]
            for d in range(4):
                a('v_and_b32_dpp %s, %s, %s row_newbcast:%d%s' % (v(A + d), v(SC + n - 8), v(MASK + d), 4 * r, DPP))
            a.wait_vm('L%d' % j)
            mfma(OA[(n - 8) >> 2], A, RB + 4 * (j % RN), None if (n & 3) == 0 and r == 0 else 1)
            refill(j)
            if j == P.defer_at:
                lds_count(FD, T[0], T[1])
        if n == 8:
            tail_prep()
        if n == 13:
            scale_prep()
    stamp(4)
    a('s_mov_b32 exec_lo, 0')
    for r in range(4):
        a('v_mul_f32 %s, %s, %s' % (v(OA[0] + r), v(OA[1] + r), v(vSCL)))
    a('s_mov_b32 exec_lo, -1')
    a('ds_write_b128 %s, %s offset:%d' % (v(vOW), v(OA[0], 4), OBUF))
    a('s_waitcnt lgkmcnt(0)')
    a('s_barrier')
    a('s_cmp_lg_u32 %s, 0' % s(sSW)); a('s_cbranch_scc1 L_pubbed')
    for w in range(8):
        a('ds_read_b128 %s, %s offset:%d' % (v(QR + 4 * w, 4), v(vVo), OBUF + 1024 * w))
    for w in range(0, 8, 2):
        a('s_waitcnt lgkmcnt(%d)' % (6 - w))
        for r in (0, 2):
            a('v_pk_add_f32 %s, %s, %s' % (v(QR + 4 * w + r, 2), v(QR + 4 * w + r, 2), v(QR + 4 * w + 4 + r, 2)))
    for st in (2, 4):
        for w in range(0, 8, 2 * st):
            for r in (0, 2):
                a('v_pk_add_f32 %s, %s, %s' % (v(QR + 4 * w + r, 2), v(QR + 4 * w + r, 2), v(QR + 4 * (w + st) + r, 2)))
    encode(QR, QR, vHM)
    a('buffer_store_dwordx4 %s, %s, %s, %s offen sc1' % (v(QR, 4), v(vVo), s(rWS, 4), s(sOP)))
    newpath('L_pubbed')
    stamp(5)
    if P.xprobe:
        a('s_cmp_lg_u32 s2, %d' % P.xprobe); a('s_cbranch_scc1 L_xp')
        a('s_getreg_b32 s99, hwreg(HW_REG_XCC_ID)'); a('s_and_b32 s99, s99, 15'); a('s_add_u32 s99, s99, 1')
        a('v_mov_b32 v14, s99'); a('v_mov_b32 v12, 0')
        a('global_store_dword v12, v14, %s sc1' % s(pDBG, 2))
        a('s_waitcnt vmcnt(0)')
        a('s_lshl_b32 s99, s2, 7'); a('s_add_u32 s99, s99, %d' % (3 * 64 * 4608))
        a.label('L_xp')
    a('s_cmp_ge_u32 s2, 36'); a('s_cbranch_scc1 L_fin')
    R, t_ = 104, 13
    a('s_mov_b64 exec, 1')
    poll('w', lambda: a('buffer_load_dwordx4 %s, %s, %s, s89 offen sc1' % (v(R, 4), v(vVo), s(rWS, 4))), lambda: decode([R], t_), sleep=P.w_sleep)
    a('s_mov_b64 exec, -1')
    if P.y_delay:
        a('s_sleep %d' % P.y_delay)
    def y_load():
        for k in range(4):
            a('buffer_load_dwordx4 %s, %s, %s, s%d offen sc1' % (v(R + 4 * k, 4), v(vRO), s(rWS, 4), 96 + k))
    poll('y', y_load, lambda: decode([R + 4 * k for k in range(4)], t_), masked=True)
    for (x, y) in ((0, 4), (8, 12), (0, 8)):
        for r in (0, 2):
            a('v_pk_add_f32 %s, %s, %s' % (v(R + x + r, 2), v(R + x + r, 2), v(R + y + r, 2)))
    for r in range(4):
        a('v_add_f32_dpp %s, %s, %s row_ror:8%s' % (v(R + r), v(R + r), v(R + r), DPP))
    a('v_permlane16_swap_b32 %s, %s' % (v(R), v(R + 1)))
    a('v_permlane16_swap_b32 %s, %s' % (v(R + 2), v(R + 3)))
    a('v_add_f32 %s, %s, %s' % (v(R), v(R), v(R + 1)))
    a('v_add_f32 %s, %s, %s' % (v(R + 2), v(R + 2), v(R + 3)))
    a('v_permlane32_swap_b32 %s, %s' % (v(R), v(R + 2)))
    a('v_add_f32 %s, %s, %s' % (v(R), v(R), v(R + 2)))
    a('v_lshrrev_b32 %s, 4, %s' % (v(t_), v(vL)))
    a('v_lshl_add_u32 %s, %s, 2, %s' % (v(t_), v(t_), v(vRW)))
    a('ds_write_b32 %s, %s offset:%d' % (v(t_), v(R), RED))
    a('s_waitcnt lgkmcnt(0)')
    a('s_barrier')
    a('s_cmp_lg_u32 %s, 0' % s(sSW)); a('s_cbranch_scc1 L_fin')
    a('ds_read2_b32 %s, %s offset0:0 offset1:32' % (v(R, 2), v(vRR)))
    a('ds_read2_b32 %s, %s offset0:64 offset1:96' % (v(R + 2, 2), v(vRR)))
    a('s_waitcnt lgkmcnt(0)')
    a('v_add_f32 %s, %s, %s' % (v(R), v(R), v(R + 1)))
    a('v_add_f32 %s, %s, %s' % (v(R + 2), v(R + 2), v(R + 3)))
    a('v_add_f32 %s, %s, %s' % (v(R), v(R), v(R + 2)))
    a('v_mov_b32 %s, %s' % (v(R + 1), v(R)))
    a('v_permlane32_swap_b32 %s, %s' % (v(R), v(R + 1)))
    a('v_add_f32 %s, %s, %s' % (v(R), v(R), v(R + 1)))
    a('v_cvt_pk_bf16_f32 %s, %s, %s' % (v(R), v(R), v(R)))
    a('s_mov_b32 exec_hi, 0')
    a('global_store_short %s, %s, %s' % (v(vOO), v(R), s(pOUT, 2)))
    a('s_cmp_lg_u32 s2, 0'); a('s_cbranch_scc1 L_fin')
    a('s_mov_b64 exec, 1')
    a('v_mov_b32 v14, %s' % s(sTG0)); a('v_mov_b32 v15, %s' % s(sTG1))
    a('v_mov_b32 v12, 0x%x' % EP)
    a('global_store_dwordx2 v12, v[14:15], %s sc1' % s(pWS, 2))
    if P.endspin:
        a('s_memrealtime s[26:27]'); a('s_waitcnt lgkmcnt(0)'); a('s_mov_b32 s97, s26')
        a.label('L_espin')
        a('s_memrealtime s[26:27]'); a('s_waitcnt lgkmcnt(0)')
        a('s_sub_u32 s96, s26, s97'); a('s_cmp_lt_u32 s96, %d' % P.endspin); a('s_cbranch_scc1 L_espin')
    if P.xprobe:
        a('s_sleep 64')
        a('v_mov_b32 v12, 0')
        a('global_load_dword v14, v12, %s sc1' % s(pDBG, 2))
        a('s_waitcnt vmcnt(0)')
        a('v_readfirstlane_b32 s98, v14')
        a('s_getreg_b32 s99, hwreg(HW_REG_XCC_ID)'); a('s_and_b32 s99, s99, 15'); a('s_add_u32 s99, s99, 1')
        a('s_cmp_eq_u32 s98, s99'); a('s_cbranch_scc1 L_fin')
        a('s_memrealtime s[26:27]'); a('s_waitcnt lgkmcnt(0)'); a('s_mov_b32 s97, s26')
        a.label('L_xspin')
        a('s_memrealtime s[26:27]'); a('s_waitcnt lgkmcnt(0)')
        a('s_sub_u32 s96, s26, s97'); a('s_cmp_lt_u32 s96, 3000'); a('s_cbranch_scc1 L_xspin')
    a.label('L_fin'); a.hist = []
    if P.until:
        a('s_cmp_lg_u32 s2, %d' % P.until_wg); a('s_cbranch_scc1 L_unt')
        a('s_cmp_lg_u32 %s, 0' % s(sSW)); a('s_cbranch_scc1 L_unt')
        a.label('L_uspin')
        a('s_memrealtime s[26:27]'); a('s_waitcnt lgkmcnt(0)')
        a('s_sub_u32 s96, s26, s78'); a('s_cmp_lt_u32 s96, %d' % P.until); a('s_cbranch_scc1 L_uspin')
        a.label('L_unt')
    stamp(6)
    stamp_flush()
    a('s_endpgm')

    newpath('L_helper')
    vG, vN, vBB = 2, 3, 16
    T = list(range(17, 29))
    tO = T[11]
    vHM = 29
    XS, GW = 30, 40
    XQ = 50
    QA = 72; BIG = 76
    sCB, sRB, sLID, sC0 = 60, 61, 62, 63
    def oob_unless(dst, src, cmp):
        a(cmp)
        a('v_mov_b32 %s, 0x%x' % (v(tO), OOB))
        a('v_cndmask_b32 %s, %s, %s, vcc' % (v(dst), v(tO), v(src)))
    a('v_lshrrev_b32 %s, 4, %s' % (v(vG), v(vL)))
    a('v_and_b32 %s, 15, %s' % (v(vN), v(vL)))
    a('v_bfe_u32 %s, %s, 3, 1' % (v(vBB), v(vL)))
    a('s_add_u32 %s, %s, %s' % (s(sLID), s(sHG), s(sS)))
    a('s_mul_i32 %s, %s, 9363' % (s(sCB), s(sLID)))
    a('s_lshr_b32 %s, %s, 16' % (s(sCB), s(sCB)))
    a('s_mul_i32 %s, %s, 7' % (s(sT0), s(sCB)))
    a('s_sub_u32 %s, %s, %s' % (s(sRB), s(sLID), s(sT0)))
    vXs, vGw = T[5], T[6]
    a('v_and_b32 %s, 31, %s' % (v(vGw), v(vL)))
    a('v_mul_u32_u24 %s, 36, %s' % (v(vGw), v(vGw)))
    a('v_lshrrev_b32 %s, 5, %s' % (v(vXs), v(vL)))
    a('v_mul_u32_u24 %s, 0x480, %s' % (v(vXs), v(vXs)))
    a('v_add_u32 %s, %s, %s' % (v(vXs), v(vXs), v(vGw)))
    def stat_loads():
        for (dst, off, base) in ((XS, vXs, pX), (GW, vGw, pGW)):
            a('global_load_dwordx4 %s, %s, %s' % (v(dst, 4), v(off), s(base, 2)), tag='st')
            a('global_load_dwordx4 %s, %s, %s offset:16' % (v(dst + 4, 4), v(off), s(base, 2)), tag='st')
            a('global_load_dword %s, %s, %s offset:32' % (v(dst + 8), v(off), s(base, 2)), tag='st')
    def common_setup():
        epoch_load()
        a('s_barrier')
        srd(rWS, pWS, WSB)
        masks(T[0], T[1])
        a('v_mov_b32 %s, 0xfffff000' % v(vHM))
        a('s_mov_b32 %s, 0xffff0000' % s(sHI))
        a('s_mov_b32 %s, 0xff00ff00' % s(sBB)); a('s_mov_b32 %s, 0xff00ff00' % s(sBB + 1))
        a('v_lshrrev_b32 %s, 5, %s' % (v(T[0]), v(vL)))
        a('v_lshlrev_b32 %s, 9, %s' % (v(T[0]), v(T[0])))
        a('v_lshl_add_u32 %s, %s, 5, %s' % (v(T[0]), v(vN), v(T[0])))
        a('v_and_b32 %s, 16, %s' % (v(T[1]), v(vL)))
        a('v_add_u32 %s, %s, %s' % (v(T[10]), v(T[1]), v(T[0])))
        a('s_waitcnt lgkmcnt(0)')
        epoch_tags()
    S1, GD, t0, t1, t2, t3 = T[4], T[5], T[6], T[7], T[0], T[1]
    vOMG = T[9]
    def stats(full):
        a('v_mov_b32 %s, 0' % v(GD))
        if full:
            a('v_mov_b32 %s, 0' % v(S1))
        for k in range(9):
            a('v_lshlrev_b32 %s, 16, %s' % (v(t0), v(XS + k)))
            a('v_and_b32 %s, %s, %s' % (v(t1), s(sHI), v(XS + k)))
            a('v_lshlrev_b32 %s, 16, %s' % (v(t2), v(GW + k)))
            a('v_and_b32 %s, %s, %s' % (v(t3), s(sHI), v(GW + k)))
            a('v_fmac_f32 %s, %s, %s' % (v(GD), v(t0), v(t2)))
            if full:
                a('v_add_f32 %s, %s, %s' % (v(S1), v(S1), v(t0)))
            a('v_fmac_f32 %s, %s, %s' % (v(GD), v(t1), v(t3)))
            if full:
                a('v_add_f32 %s, %s, %s' % (v(S1), v(S1), v(t1)))
        red32([GD, S1] if full else [GD], [t0, t1], 'v_add_f32')
        a('v_mul_f32 %s, 0x%x, %s' % (v(GD), f2u(-math.log2(math.e)), v(GD)))
        a('v_exp_f32 %s, %s' % (v(GD), v(GD)))
        a('v_add_f32 %s, 1.0, %s' % (v(GD), v(GD)))
        a('v_rcp_f32 %s, %s' % (v(GD), v(GD)))
        a('v_sub_f32 %s, 1.0, %s' % (v(vOMG), v(GD)))
        a('v_readlane_b32 %s, %s, 0' % (s(sG0), v(GD))); a('v_readlane_b32 %s, %s, 32' % (s(sG1), v(GD)))
    a('s_cmp_eq_u32 %s, 1' % s(sW)); a('s_cbranch_scc1 L_h1')
    a('s_cmp_lg_u32 %s, 0' % s(sW)); a('s_cbranch_scc1 L_h23')
    a('v_mul_u32_u24 %s, 18, %s' % (v(T[0]), v(vG)))
    a('v_lshlrev_b32 %s, 13, %s' % (v(T[1]), v(T[0])))
    a('v_lshl_add_u32 %s, %s, 4, %s' % (v(T[1]), v(vN), v(T[1])))
    if P.no_wq:
        a('v_mov_b32 %s, 0x%x' % (v(T[1]), OOB))
    a('v_mul_u32_u24 %s, 0x480, %s' % (v(T[2]), v(vBB)))
    a('v_lshl_add_u32 %s, %s, 1, %s' % (v(T[2]), v(T[0]), v(T[2])))
    a('s_mul_i32 %s, %s, 144' % (s(sT0), s(sS)))
    a('v_add_u32 %s, %s, %s' % (v(T[2]), s(sT0), v(T[2])))
    a('s_mul_i32 %s, %s, %d' % (s(sT0), s(sS), 72 * 8192))
    a('s_lshl_b32 %s, %s, 8' % (s(sT1), s(sH)))
    a('s_add_u32 %s, %s, %s' % (s(sT0), s(sT0), s(sT1)))
    a('s_waitcnt lgkmcnt(0)')
    stamp(0)
    srd(rWA, pWQ, 576 * 8192)
    a('global_load_dwordx4 %s, %s, %s' % (v(XQ, 4), v(T[2]), s(pX, 2)), tag='xq')
    a('global_load_dwordx4 %s, %s, %s offset:16' % (v(XQ + 4, 4), v(T[2]), s(pX, 2)), tag='xq')
    a('global_load_dword %s, %s, %s offset:32' % (v(XQ + 8), v(T[2]), s(pX, 2)), tag='xq')
    for i in range(18):
        a('buffer_load_dwordx4 %s, %s, %s, %s offen%s' % (v(BIG + 4 * i, 4), v(T[1]), s(rWA, 4), s(sT0), wnt), tag='wq%d' % i)
        if i < 17:
            a('s_add_u32 %s, %s, 0x2000' % (s(sT0), s(sT0)))
    stat_loads()
    common_setup()
    a('s_mov_b32 s88, 0x01000100'); a('s_mov_b32 s89, 0x03020302')
    a('s_lshl_b32 %s, %s, 10' % (s(sT0), s(sLID)))
    a('s_add_u32 %s, %s, 0x%x' % (s(sT0), s(sT0), QX))
    a.wait_vm('xq')
    for i in range(18):
        A = AF[i & 1]
        a('v_perm_b32 %s, %s, %s, %s' % (v(T[0]), v(XQ + i // 2), v(XQ + i // 2), 's89' if i & 1 else 's88'))
        delta(A, T[0])
        a.wait_vm('wq%d' % i)
        mfma(QA, A, BIG + 4 * i, None if i == 0 else 1)
    encode(QA, QA, vHM)
    a('buffer_store_dwordx4 %s, %s, %s, %s offen sc1' % (v(QA, 4), v(T[10]), s(rWS, 4), s(sT0)))
    stamp(8)
    a.wait_vm0()
    stats(False)
    lds_wait('fp', FP, P.prog_n, T[0], T[1], 2)
    GQ = BIG
    a('v_lshlrev_b32 %s, 4, %s' % (v(T[10]), v(vL)))
    a('s_lshl_b32 s88, %s, 10' % s(sHG))
    a('s_add_u32 s88, s88, 0x%x' % QX)
    a('s_add_u32 s89, s88, 4096')
    def q_load():
        for k in range(8):
            a('buffer_load_dwordx4 %s, %s, %s, %s offen offset:%d sc1' % (v(GQ + 4 * k, 4), v(T[10]), s(rWS, 4), 's88' if k < 4 else 's89', 1024 * (k % 4)))
    poll('q', q_load, lambda: decode([GQ + 4 * k for k in range(8)], T[0]), sleep=P.q_sleep)
    for st in (1, 2, 4):
        for w in range(0, 8, 2 * st):
            for r in (0, 2):
                a('v_pk_add_f32 %s, %s, %s' % (v(GQ + 4 * w + r, 2), v(GQ + 4 * w + r, 2), v(GQ + 4 * (w + st) + r, 2)))
    a('v_cvt_pk_bf16_f32 %s, %s, %s' % (v(GQ), v(GQ), v(GQ + 1)))
    a('v_cvt_pk_bf16_f32 %s, %s, %s' % (v(GQ + 1), v(GQ + 2), v(GQ + 3)))
    a('v_lshlrev_b32 %s, 3, %s' % (v(T[10]), v(vL)))
    a('ds_write_b64 %s, %s offset:%d' % (v(T[10]), v(GQ, 2), QB))
    a('v_mov_b32 %s, 0' % v(T[0])); a('v_mov_b32 %s, 1' % v(T[1]))
    a('s_waitcnt lgkmcnt(0)')
    a('ds_write_b32 %s, %s offset:%d' % (v(T[0]), v(T[1]), FQ))
    stamp(9)
    a('s_branch L_mid')
    newpath('L_h1')
    a('v_mul_u32_u24 %s, 21, %s' % (v(T[0]), v(vG)))
    a('v_mul_u32_u24 %s, 0x2400, %s' % (v(T[1]), v(T[0])))
    a('v_lshl_add_u32 %s, %s, 4, %s' % (v(T[1]), v(vN), v(T[1])))
    a('s_cmp_lt_u32 %s, %d' % (s(sCB), 0 if P.no_w1 else 36))
    a('s_cselect_b32 %s, 0, 0x%x' % (s(sT1), OOB))
    a('v_or_b32 %s, %s, %s' % (v(T[1]), s(sT1), v(T[1])))
    a('s_mul_i32 %s, %s, 84' % (s(sT2), s(sRB)))
    a('v_add_u32 %s, %s, %s' % (v(T[8]), s(sT2), v(T[0])))
    a('v_mul_u32_u24 %s, %d, %s' % (v(T[2]), YP, v(vBB)))
    a('v_lshl_add_u32 %s, %s, 2, %s' % (v(T[8]), v(T[8]), v(T[2])))
    a('s_mul_i32 %s, %s, 9216' % (s(sT0), s(sT2)))
    a('s_lshl_b32 %s, %s, 8' % (s(sT1), s(sCB)))
    a('s_add_u32 %s, %s, %s' % (s(sT0), s(sT0), s(sT1)))
    a('s_waitcnt lgkmcnt(0)')
    stamp(0)
    stat_loads()
    srd(rWA, pW1, 576 * 9216)
    for i in range(21):
        a('buffer_load_dwordx4 %s, %s, %s, %s offen%s' % (v(BIG + 4 * i, 4), v(T[1]), s(rWA, 4), s(sT0), wnt), tag='w1_%d' % i)
        if i < 20:
            a('s_add_u32 %s, %s, 0x2400' % (s(sT0), s(sT0)))
    vYW = T[3]
    a('v_lshrrev_b32 %s, 5, %s' % (v(vYW), v(vL)))
    a('v_mul_u32_u24 %s, %d, %s' % (v(vYW), YP, v(vYW)))
    a('v_lshl_add_u32 %s, %s, 1, %s' % (v(vYW), v(vGw), v(vYW)))
    common_setup()
    a.wait_vm('st')
    stats(True)
    a('v_mul_f32 %s, 0x%x, %s' % (v(S1), f2u(1.0 / 576), v(S1)))
    S2 = GD
    a('v_mov_b32 %s, 0' % v(S2))
    for k in range(9):
        a('v_lshlrev_b32 %s, 16, %s' % (v(XQ + 2 * k), v(XS + k)))
        a('v_and_b32 %s, %s, %s' % (v(XQ + 2 * k + 1), s(sHI), v(XS + k)))
        a('v_sub_f32 %s, %s, %s' % (v(XQ + 2 * k), v(XQ + 2 * k), v(S1)))
        a('v_sub_f32 %s, %s, %s' % (v(XQ + 2 * k + 1), v(XQ + 2 * k + 1), v(S1)))
        a('v_fmac_f32 %s, %s, %s' % (v(S2), v(XQ + 2 * k), v(XQ + 2 * k)))
        a('v_fmac_f32 %s, %s, %s' % (v(S2), v(XQ + 2 * k + 1), v(XQ + 2 * k + 1)))
    red32([S2], [t0], 'v_add_f32')
    a('v_mov_b32 %s, 0x%x' % (v(t0), f2u(1e-5)))
    a('v_fmac_f32 %s, 0x%x, %s' % (v(t0), f2u(1.0 / 576), v(S2)))
    a('v_rsq_f32 %s, %s' % (v(S2), v(t0)))
    for k in range(18):
        a('v_mul_f32 %s, %s, %s' % (v(XQ + k), v(XQ + k), v(S2)))
    for k in range(18):
        a('v_cvt_pk_bf16_f32 %s, %s, %s' % (v(XQ + k), v(XQ + k), v(XQ + k)))
    for k in range(9):
        a('ds_write_b64 %s, %s offset:%d' % (v(vYW), v(XQ + 2 * k, 2), YT + 8 * k))
    a('s_waitcnt lgkmcnt(0)')
    a('v_add_u32 %s, %d, %s' % (v(T[8]), YT, v(T[8])))
    YR = 30
    for k in range(11):
        a('ds_read2_b32 %s, %s offset0:%d offset1:%d' % (v(YR + 2 * k, 2), v(T[8]), 2 * k, 2 * k + 1))
    a('s_lshl_b32 %s, %s, 10' % (s(sT0), s(sLID)))
    a('s_add_u32 %s, %s, 0x%x' % (s(sT0), s(sT0), HX))
    a('s_waitcnt lgkmcnt(0)')
    for i in range(21):
        A = AF[i & 1]
        delta(A, YR + i)
        a.wait_vm('w1_%d' % i)
        mfma(QA, A, BIG + 4 * i, None if i == 0 else 1)
    encode(QA, QA, vHM)
    a('buffer_store_dwordx4 %s, %s, %s, %s offen sc1' % (v(QA, 4), v(T[10]), s(rWS, 4), s(sT0)))
    stamp(10)
    a('s_branch L_mid')
    newpath('L_h23')
    a('v_mov_b32 %s, 0' % v(T[0]))
    a('v_lshlrev_b32 %s, 2, %s' % (v(T[1]), v(vL)))
    a('ds_write_b32 %s, %s offset:%d' % (v(T[1]), v(T[0]), LS))
    a('v_lshlrev_b32 %s, 2, %s' % (v(T[1]), v(vN)))
    a('ds_write_b32 %s, %s offset:%d' % (v(T[1]), v(T[0]), YT + 576 * 4))
    a('ds_write_b32 %s, %s offset:%d' % (v(T[1]), v(T[0]), YT + YP + 576 * 4))
    a('s_waitcnt lgkmcnt(0)')
    stamp(0)
    stat_loads()
    common_setup()
    a.wait_vm0()
    stats(False)
    newpath('L_mid')
    a('v_and_b32 %s, 7, %s' % (v(T[1]), v(vL)))
    a('v_lshlrev_b32 %s, 4, %s' % (v(T[1]), v(T[1])))
    XG = 144
    a('s_lshl_b32 %s, %s, 5' % (s(sT2), s(sHG)))
    a('s_add_u32 %s, %s, 0x%x' % (s(sT2), s(sT2), MLX))
    poll('ls2', lambda: a('ds_read_b128 %s, %s offset:%d' % (v(XG, 4), v(T[1]), LS)), lambda: ls_check(XG, T[0]), lds=True, sleep=8)
    a('s_cmp_lg_u32 %s, 1' % s(sW)); a('s_cbranch_scc1 L_mlpub')
    a('v_mov_b32 %s, %s' % (v(XG + 4), v(XG + 2))); a('v_mov_b32 %s, %s' % (v(XG + 5), v(XG + 3)))
    red8([XG + 4, XG + 5], 'v_max_f32')
    for b in range(2):
        a('v_sub_f32 %s, %s, %s' % (v(XG + 2 + b), v(XG + 2 + b), v(XG + 4 + b)))
    for b in range(2):
        a('v_exp_f32 %s, %s' % (v(XG + 2 + b), v(XG + 2 + b)))
    for b in range(2):
        a('v_mul_f32 %s, %s, %s' % (v(XG + b), v(XG + b), v(XG + 2 + b)))
    red8([XG, XG + 1], 'v_add_f32')
    a('v_cmp_eq_u32 vcc, 1, %s' % v(vL))
    a('v_cndmask_b32 %s, %s, %s, vcc' % (v(XG + 4), v(XG + 4), v(XG + 5)))
    a('v_cndmask_b32 %s, %s, %s, vcc' % (v(XG + 6), v(XG), v(XG + 1)))
    a('v_mov_b32 %s, %s' % (v(XG + 5), s(sTG0))); a('v_mov_b32 %s, %s' % (v(XG + 7), s(sTG1)))
    oob_unless(T[1], T[1], 'v_cmp_gt_u32 vcc, 2, %s' % v(vL))
    a('s_lshl_b32 %s, %s, 5' % (s(sT0), s(sS)))
    a('s_add_u32 %s, %s, %s' % (s(sT0), s(sT0), s(sT2)))
    a('buffer_store_dwordx4 %s, %s, %s, %s offen sc1' % (v(XG + 4, 4), v(T[1]), s(rWS, 4), s(sT0)))
    newpath('L_mlpub')
    a('s_lshl_b32 %s, %s, 4' % (s(sC0), s(sRB)))
    a('s_min_u32 %s, %s, 4' % (s(sT0), s(sRB)))
    a('s_lshl_b32 %s, %s, 2' % (s(sT0), s(sT0)))
    a('s_add_u32 %s, %s, %s' % (s(sC0), s(sC0), s(sT0)))
    vC8 = T[8]
    a('v_and_b32 %s, 1, %s' % (v(T[0]), v(vG)))
    a('v_lshlrev_b32 %s, 3, %s' % (v(T[0]), v(T[0])))
    a('v_lshl_add_u32 %s, %s, 4, %s' % (v(vC8), v(vN), v(T[0])))
    srd(rB2, pB2, 1152)
    vB2 = 30
    a('s_lshl_b32 %s, %s, 8' % (s(sT1), s(sW)))
    a('s_cmp_eq_u32 s2, 0')
    a('s_cselect_b32 %s, %s, 0x%x' % (s(sT1), s(sT1), OOB))
    a('v_add_u32 %s, %s, %s' % (v(T[1]), s(sT1), v(vC8)))
    a('buffer_load_dwordx2 %s, %s, %s, 0 offen' % (v(vB2, 2), v(T[1]), s(rB2, 4)))
    a('buffer_load_dwordx2 %s, %s, %s, 0 offen offset:256' % (v(vB2 + 2, 2), v(T[1]), s(rB2, 4)))
    HF = 48
    for k in range(20):
        a('v_mov_b32 %s, 0' % v(HF + k))
    a('s_cmp_ge_u32 %s, 36' % s(sCB)); a('s_cbranch_scc1 L_noh')
    srd(rB1, pB1, 9216)
    B1 = 34
    a('s_lshl_b32 %s, %s, 7' % (s(sT0), s(sCB)))
    a('s_add_u32 %s, %s, %s' % (s(sT0), s(sT0), s(sC0)))
    a('s_lshl_b32 %s, %s, 1' % (s(sT0), s(sT0)))
    a('v_lshlrev_b32 %s, 3, %s' % (v(T[0]), v(vG)))
    a('buffer_load_dwordx2 %s, %s, %s, %s offen' % (v(B1, 2), v(T[0]), s(rB1, 4), s(sT0)))
    a('v_lshlrev_b32 %s, 1, %s' % (v(T[0]), v(vG)))
    a('buffer_load_ushort %s, %s, %s, %s offen offset:32' % (v(B1 + 2), v(T[0]), s(rB1, 4), s(sT0)))
    a('v_and_b32 %s, 7, %s' % (v(T[2]), v(vL)))
    a('v_min_u32 %s, 6, %s' % (v(T[2]), v(T[2])))
    a('v_lshlrev_b32 %s, 10, %s' % (v(T[2]), v(T[2])))
    a('v_lshl_add_u32 %s, %s, 9, %s' % (v(T[2]), v(vBB), v(T[2])))
    a('v_lshl_add_u32 %s, %s, 4, %s' % (v(T[3]), v(vG), v(T[2])))
    a('s_mul_i32 %s, %s, %d' % (s(sT1), s(sCB), 7 * 1024))
    a('s_lshl_b32 %s, %s, 2' % (s(sT2), s(sC0)))
    a('s_add_u32 %s, %s, %s' % (s(sT1), s(sT1), s(sT2)))
    a('s_add_u32 %s, %s, 0x%x' % (s(sT1), s(sT1), HX))
    a('s_cmp_lt_u32 %s, 4' % s(sRB))
    a('s_cselect_b32 %s, 64, 0' % s(sT2))
    a('s_add_u32 %s, %s, %s' % (s(sT2), s(sT2), s(sT1)))
    HG = 72
    def h_load():
        a('buffer_load_dwordx4 %s, %s, %s, %s offen sc1' % (v(HG, 4), v(T[3]), s(rWS, 4), s(sT1)))
        a('buffer_load_dwordx4 %s, %s, %s, %s offen sc1' % (v(HG + 4, 4), v(T[2]), s(rWS, 4), s(sT2)))
    poll('h', h_load, lambda: decode([HG, HG + 4], T[0]), sleep=P.h_sleep)
    for k in range(1, 4):
        a('v_cmp_eq_u32 vcc, %d, %s' % (k, v(vG)))
        a('v_cndmask_b32 %s, %s, %s, vcc' % (v(HG + 4), v(HG + 4), v(HG + 4 + k)))
    smask(0x7f7f)
    HV = [HG + k for k in range(5)]
    for x in HV:
        a('v_cndmask_b32 %s, 0, %s, %s' % (v(x), v(x), s(sM, 2)))
    red8(HV, 'v_add_f32')
    Z = [80 + k for k in range(5)]
    for k in range(5):
        if k == 4:
            a('v_lshlrev_b32 %s, 16, %s' % (v(Z[k]), v(B1 + 2)))
        elif k & 1:
            a('v_and_b32 %s, %s, %s' % (v(Z[k]), s(sHI), v(B1 + k // 2)))
        else:
            a('v_lshlrev_b32 %s, 16, %s' % (v(Z[k]), v(B1 + k // 2)))
        a('v_add_f32 %s, %s, %s' % (v(HV[k]), v(HV[k]), v(Z[k])))
    a('v_mov_b32 %s, %s' % (v(T[0]), s(sG0))); a('v_mov_b32 %s, %s' % (v(T[1]), s(sG1)))
    a('v_cndmask_b32 %s, %s, %s, %s' % (v(T[0]), v(T[0]), v(T[1]), s(sBB, 2)))
    a('v_sub_f32 %s, 1.0, %s' % (v(T[0]), v(T[0])))
    kz = -2.0 * math.sqrt(2.0 / math.pi) * math.log2(math.e)
    steps = [
        lambda x, z: a('v_mul_f32 %s, %s, %s' % (v(z), v(x), v(x))),
        lambda x, z: a('v_mul_f32 %s, 0x%x, %s' % (v(z), f2u(0.044715), v(z))),
        lambda x, z: a('v_add_f32 %s, 1.0, %s' % (v(z), v(z))),
        lambda x, z: a('v_mul_f32 %s, %s, %s' % (v(z), v(z), v(x))),
        lambda x, z: a('v_mul_f32 %s, 0x%x, %s' % (v(z), f2u(kz), v(z))),
        lambda x, z: a('v_exp_f32 %s, %s' % (v(z), v(z))),
        lambda x, z: a('v_add_f32 %s, 1.0, %s' % (v(z), v(z))),
        lambda x, z: a('v_rcp_f32 %s, %s' % (v(z), v(z))),
        lambda x, z: a('v_mul_f32 %s, %s, %s' % (v(x), v(x), v(T[0]))),
        lambda x, z: a('v_mul_f32 %s, %s, %s' % (v(x), v(x), v(z))),
        lambda x, z: a('v_cvt_pk_bf16_f32 %s, %s, %s' % (v(x), v(x), v(x))),
    ]
    for st in steps:
        for k in range(5):
            st(HV[k], Z[k])
    for k in range(4):
        delta(HF + 4 * k, HV[k])
    a('s_cmp_ge_u32 %s, 4' % s(sRB)); a('s_cbranch_scc1 L_noh')
    delta(HF + 16, HV[4])
    newpath('L_noh')
    a.wait_vm0()
    PA = [36, 40]
    for k in range(2):
        for r in range(4):
            if r & 1:
                a('v_and_b32 %s, %s, %s' % (v(PA[k] + r), s(sHI), v(vB2 + 2 * k + r // 2)))
            else:
                a('v_lshlrev_b32 %s, 16, %s' % (v(PA[k] + r), v(vB2 + 2 * k + r // 2)))
            a('v_mul_f32 %s, %s, %s' % (v(PA[k] + r), v(PA[k] + r), v(vOMG)))
    srd(rWO, pWO, 4096 * 1152)
    srd(rW2, pW2, 4608 * 1152)
    vW2o, vW2o2, vWoo, vW2h, vW2h2, vWoh, vYS, vYH, vXA, vXM, vWT = 30, 31, 32, 33, 34, 35, 44, 45, 46, 47, 68
    sW2, sW2b, sWO, sYS, sOG = 88, 89, 100, 101, 15
    a('v_mul_u32_u24 %s, 0x1200, %s' % (v(vWoo), v(vG)))
    a('v_lshl_add_u32 %s, %s, 4, %s' % (v(vWoo), v(vN), v(vWoo)))
    if P.no_def:
        a('v_mov_b32 %s, 0x%x' % (v(vWoo), OOB))
    a('s_cmp_lt_u32 %s, 36' % s(sCB))
    a('s_cselect_b32 %s, 0, 0x%x' % (s(sT0), OOB))
    a('v_or_b32 %s, %s, %s' % (v(vW2o), s(sT0), v(vWoo)))
    a('s_cmp_lt_u32 %s, 4' % s(sRB))
    a('s_cselect_b32 %s, %s, 0x%x' % (s(sT0), s(sT0), OOB))
    a('v_mul_u32_u24 %s, 0x480, %s' % (v(vW2o2), v(vG)))
    a('v_lshl_add_u32 %s, %s, 4, %s' % (v(vW2o2), v(vN), v(vW2o2)))
    a('v_or_b32 %s, %s, %s' % (v(vW2o2), s(sT0), v(vW2o2)))
    a('v_lshrrev_b32 %s, 5, %s' % (v(T[1]), v(vL)))
    a('v_mul_u32_u24 %s, 0x900, %s' % (v(T[1]), v(T[1])))
    a('v_lshl_add_u32 %s, %s, 1, %s' % (v(vYS), v(vC8), v(T[1])))
    a('v_cmp_gt_u32 vcc, 8, %s' % v(vN))
    a('v_mov_b32 %s, 0x%x' % (v(tO), OOB))
    for d_, s_ in ((vW2h, vW2o), (vW2h2, vW2o2), (vWoh, vWoo), (vYH, vYS)):
        a('v_cndmask_b32 %s, %s, %s, vcc' % (v(d_), v(tO), v(s_)))
    a('s_lshl_b32 %s, %s, 8' % (s(sT1), s(sW)))
    a('s_min_u32 %s, %s, 35' % (s(sW2), s(sCB)))
    a('s_lshl_b32 %s, %s, 7' % (s(sW2), s(sW2)))
    a('s_add_u32 %s, %s, %s' % (s(sW2), s(sW2), s(sC0)))
    a('s_mul_i32 %s, %s, 0x480' % (s(sW2), s(sW2)))
    a('s_add_u32 %s, %s, %s' % (s(sW2), s(sW2), s(sT1)))
    a('s_cmp_lt_u32 %s, 4' % s(sRB))
    a('s_cselect_b32 %s, %d, 0' % (s(sW2b), 16 * 1152))
    a('s_add_u32 %s, %s, %s' % (s(sW2b), s(sW2b), s(sW2)))
    a('s_mul_i32 %s, %s, %d' % (s(sWO), s(sLID), 16 * 1152))
    a('s_add_u32 %s, %s, %s' % (s(sWO), s(sWO), s(sT1)))
    a('s_mul_i32 %s, s2, 4608' % s(sYS))
    a('s_lshl_b32 %s, %s, 9' % (s(sT1), s(sW)))
    a('s_add_u32 %s, %s, %s' % (s(sYS), s(sYS), s(sT1)))
    a('s_lshl_b32 %s, %s, 10' % (s(sOG), s(sHG)))
    a('s_add_u32 %s, %s, 0x%x' % (s(sOG), s(sOG), OX))
    a('v_and_b32 %s, 7, %s' % (v(T[1]), v(vL)))
    a('v_lshlrev_b32 %s, 5, %s' % (v(vXM), v(T[1])))
    a('v_lshl_add_u32 %s, %s, 4, %s' % (v(vXM), v(vBB), v(vXM)))
    a('v_lshlrev_b32 %s, 10, %s' % (v(vXA), v(T[1])))
    a('v_lshl_add_u32 %s, %s, 9, %s' % (v(vXA), v(vBB), v(vXA)))
    a('v_lshl_add_u32 %s, %s, 4, %s' % (v(vXA), v(vG), v(vXA)))
    a('s_lshl_b32 %s, %s, 6' % (s(sT1), s(sS)))
    a('v_add_u32 %s, %s, %s' % (v(vXA), s(sT1), v(vXA)))
    stamp(11)
    a('s_lshl_b32 s7, %s, 5' % s(sHG))
    a('s_add_u32 s7, s7, 0x%x' % MLX)
    def ml_load():
        a('buffer_load_dwordx4 %s, %s, %s, %s offen sc1' % (v(XG, 4), v(vXM), s(rWS, 4), 's7'))
    def ml_check():
        a('v_xor_b32 %s, %s, %s' % (v(T[2]), s(sTG0), v(XG + 1)))
        a('v_xor_b32 %s, %s, %s' % (v(T[3]), s(sTG1), v(XG + 3)))
        a('v_or_b32 %s, %s, %s' % (v(T[2]), v(T[2]), v(T[3])))
        a('v_cmp_ne_u32 vcc, 0, %s' % v(T[2]))
    lds_wait('fd', FD, P.defer_n, T[0], T[4], 2)
    stamp(7)
    ml_load()
    WD = 72
    WH = 108
    def wloads(dst, o2, o2b, oo, extra):
        for i in range(4):
            a('buffer_load_dwordx4 %s, %s, %s, %s offen offset:%d%s' % (v(dst + 4 * i, 4), v(o2), s(rW2, 4), s(sW2), 1152 * i + extra, wnt))
        a('buffer_load_dwordx4 %s, %s, %s, %s offen offset:%d%s' % (v(dst + 16, 4), v(o2b), s(rW2, 4), s(sW2b), extra, wnt))
        for i in range(4):
            a('buffer_load_dwordx4 %s, %s, %s, %s offen offset:%d%s' % (v(dst + 20 + 4 * i, 4), v(oo), s(rWO, 4), s(sWO), 1152 * i + extra, wnt))
    wloads(WD, vW2o, vW2o2, vWoo, 0)
    a('s_cmp_lg_u32 %s, 3' % s(sW)); a('s_cbranch_scc1 L_now')
    wloads(WH, vW2h, vW2h2, vWoh, 256)
    newpath('L_now')
    a('s_barrier')
    a.wait_vm0()
    stamp(12)
    for i in range(5):
        mfma(PA[0], HF + 4 * i, WD + 4 * i, 1)
    a('s_cmp_lg_u32 %s, 3' % s(sW)); a('s_cbranch_scc1 L_now2')
    for i in range(5):
        mfma(PA[1], HF + 4 * i, WH + 4 * i, 1)
    a.label('L_now2')
    XO = 148
    o_load = lambda: a('buffer_load_dwordx4 %s, %s, %s, %s offen sc1' % (v(XO, 4), v(vXA), s(rWS, 4), s(sOG)))
    o_load()
    poll('ml', ml_load, ml_check, sleep=4, first_done=True)
    a('v_mov_b32 %s, %s' % (v(vWT), v(XG)))
    red8([vWT], 'v_max_f32')
    a('v_sub_f32 %s, %s, %s' % (v(vWT), v(XG), v(vWT)))
    a('v_exp_f32 %s, %s' % (v(vWT), v(vWT)))
    a('v_mul_f32 %s, %s, %s' % (v(XG + 2), v(XG + 2), v(vWT)))
    red8([XG + 2], 'v_add_f32')
    a('v_rcp_f32 %s, %s' % (v(XG + 2), v(XG + 2)))
    a('v_mov_b32 %s, %s' % (v(T[0]), s(sG0))); a('v_mov_b32 %s, %s' % (v(T[1]), s(sG1)))
    a('v_cndmask_b32 %s, %s, %s, %s' % (v(T[0]), v(T[0]), v(T[1]), s(sBB, 2)))
    a('v_mul_f32 %s, %s, %s' % (v(vWT), v(vWT), v(XG + 2)))
    a('v_mul_f32 %s, %s, %s' % (v(vWT), v(vWT), v(T[0])))
    a.wait_vm0()
    poll('o', o_load, lambda: decode([XO], T[0]), masked=True, first_done=True)
    stamp(13)
    U = [XO + i for i in range(4)]
    for x in U:
        a('v_mul_f32 %s, %s, %s' % (v(x), v(x), v(vWT)))
    red8(U, 'v_add_f32')
    AQ = 48
    for i in range(4):
        a('v_cvt_pk_bf16_f32 %s, %s, %s' % (v(U[i]), v(U[i]), v(U[i])))
    for i in range(4):
        delta(AQ + 4 * i, U[i])
    for i in range(4):
        mfma(PA[0], AQ + 4 * i, WD + 20 + 4 * i, 1)
    a('s_cmp_lg_u32 %s, 3' % s(sW)); a('s_cbranch_scc1 L_now3')
    for i in range(4):
        mfma(PA[1], AQ + 4 * i, WH + 20 + 4 * i, 1)
    encode(PA[1], PA[1], vHM)
    a('buffer_store_dwordx4 %s, %s, %s, %s offen offset:512 sc1' % (v(PA[1], 4), v(vYH), s(rWS, 4), s(sYS)))
    a.label('L_now3')
    a('s_nop 5')
    encode(PA[0], PA[0], vHM)
    a('buffer_store_dwordx4 %s, %s, %s, %s offen sc1' % (v(PA[0], 4), v(vYS), s(rWS, 4), s(sYS)))
    stamp(14)
    stamp_flush()
    a.label('L_end')
    a('s_endpgm')
    if P.extra:
        a.raw('.globl nop_kernel'); a.raw('.p2align 8'); a.raw('.type nop_kernel,@function'); a.label('nop_kernel'); a('s_endpgm')
    a.raw('.section .rodata,"a"')
    if P.extra:
        for ln in ('.p2align 6', '.amdhsa_kernel nop_kernel', '  .amdhsa_next_free_vgpr 8', '  .amdhsa_next_free_sgpr 16', '  .amdhsa_accum_offset 8',
                   '  .amdhsa_group_segment_fixed_size 0', '  .amdhsa_kernarg_size 112', '  .amdhsa_user_sgpr_count 2', '  .amdhsa_user_sgpr_kernarg_segment_ptr 1',
                   '  .amdhsa_system_sgpr_workgroup_id_x 1', '.end_amdhsa_kernel'):
            a.raw(ln)
    a.raw('.p2align 6')
    a.raw('.amdhsa_kernel ' + K1)
    a.raw('  .amdhsa_next_free_vgpr %d' % NV)
    a.raw('  .amdhsa_next_free_sgpr 102')
    a.raw('  .amdhsa_accum_offset %d' % NV)
    a.raw('  .amdhsa_group_segment_fixed_size 0')
    a.raw('  .amdhsa_kernarg_size 112')
    a.raw('  .amdhsa_user_sgpr_count 2')
    a.raw('  .amdhsa_user_sgpr_kernarg_segment_ptr 1')
    a.raw('  .amdhsa_system_sgpr_workgroup_id_x 1')
    a.raw('  .amdhsa_float_denorm_mode_32 3')
    a.raw('.end_amdhsa_kernel')
    launch = '; @launch grid=(256,1,1) block=(768,1,1) lds=%d\n' % LDS_BYTES
    if P.extra:
        k = '; @launch kernel=%s grid=(256,1,1) block=(768,1,1) lds=%d\n' % (K1, LDS_BYTES)
        n = '; @launch kernel=nop_kernel grid=(8,1,1) block=(64,1,1) lds=0\n'
        launch = {1: n + k, 2: k + n, 3: k}[P.extra]
    return HEADER + launch + a.text()

def parse(argv=None):
    ap = argparse.ArgumentParser()
    ap.add_argument('-o', default=None)
    for k, d in (('depth', 4), ('batch', 2), ('pre', 22), ('dmid', 6), ('kick', 0), ('kfl', 1), ('vfl', 1), ('wfl', 1),
                 ('diag', 0), ('endspin', 0), ('until', 0), ('until_wg', 0), ('extra', 0), ('xprobe', 0), ('no_w1', 0), ('no_wq', 0), ('no_def', 0), ('defer_at', 61), ('defer_n', 8), ('q_sleep', 8), ('h_sleep', 16), ('prog_at', 14), ('prog_n', 4), ('w_sleep', 4), ('y_delay', 16)):
        ap.add_argument('--' + k, type=int, default=d)
    ap.add_argument('--spin', type=lambda x: int(x, 0), default=0x40000)
    return ap.parse_args(argv)

if __name__ == '__main__':
    P = parse()
    txt = gen(P)
    out = P.o or os.path.join(os.path.dirname(os.path.abspath(__file__)), '..', 'cdna_kernels', NAME + '.s')
    open(out, 'w').write(txt)
    print('wrote', out, len(txt), 'bytes; lds', LDS_BYTES)
```
